```python
import torch

def _softmax(x, axis=-1):
    return torch.softmax(x, dim=axis)
def _gelu(x):
    return torch.nn.functional.gelu(x, approximate="tanh")
def _silu(x):
    return torch.nn.functional.silu(x)
def _sigmoid(x):
    return torch.sigmoid(x)
def _layernorm(x, axis=-1, eps=1e-5):
    m = x.mean(dim=axis, keepdim=True)
    v = x.var(dim=axis, keepdim=True, unbiased=False)
    return (x - m) / torch.sqrt(v + eps)
def _scatter_add(tgt, idx, src, axis=0):
    return tgt.clone().index_add_(axis, idx, src)
def _segment_sum(src, seg, n):
    out = torch.zeros((n,) + src.shape[1:], dtype=src.dtype)
    return out.index_add_(0, seg, src)
def _pad(x, pw):
    flat = tuple(v for pair in reversed(pw) for v in pair)
    return torch.nn.functional.pad(x, flat)

kernel_name = 'concat_heads__linear_attn_block__ssm_conv_s5__prompt'

def setup_inputs():

    _w = (lambda a: (lambda t: t.to(torch.bfloat16) if t.is_floating_point() else t)(torch.as_tensor(a)))
    def _A_setup():
        B, S, D = 1, 2048, 640
        return {
            "x": _w((lambda *s: torch.randn(*s, dtype=torch.bfloat16) * 0.05)(B, S, D)),
            "wqkv": _w((lambda *s: torch.randn(*s, dtype=torch.bfloat16) * 0.4)(D, 3 * D)),
            "wo": _w((lambda *s: torch.randn(*s, dtype=torch.bfloat16) * 0.05)(D, D)),
        }
    _A_in = _A_setup()

    def _B_setup():
        B, S, D = 1, 2048, 640
        P = D
        Lambda_re = -0.5 * (lambda _x: torch.exp(torch.as_tensor(_x)))((lambda *s: torch.randn(*s, dtype=torch.bfloat16) * 0.2)(P))
        Lambda_im = (lambda *s: torch.randn(*s, dtype=torch.bfloat16) * 0.8)(P) * 1.0
        B_re = (lambda *s: torch.randn(*s, dtype=torch.bfloat16) * 0.4)(P, D) * (D ** -0.5)
        B_im = (lambda *s: torch.randn(*s, dtype=torch.bfloat16) * 0.2)(P, D) * (D ** -0.5)
        C_re = (lambda *s: torch.randn(*s, dtype=torch.bfloat16) * 0.2)(D, P) * (P ** -0.5)
        C_im = (lambda *s: torch.randn(*s, dtype=torch.bfloat16) * 0.4)(D, P) * (P ** -0.5)
        log_dt = (lambda *s: torch.randn(*s, dtype=torch.bfloat16) * 0.2)(P) * 0.3 - 2.0
        Dskip = (lambda *s: torch.randn(*s, dtype=torch.bfloat16) * 0.05)(D)
        return {
            "x": _w((lambda *s: torch.randn(*s, dtype=torch.bfloat16) * 0.05)(B, S, D)),
            "Lambda_re": _w(Lambda_re),
            "Lambda_im": _w(Lambda_im),
            "B_re": _w(B_re),
            "B_im": _w(B_im),
            "C_re": _w(C_re),
            "C_im": _w(C_im),
            "log_dt": _w(log_dt),
            "Dskip": _w(Dskip),
        }
    _B_in = _B_setup()

    return {
        "A_x": _A_in["x"],
        "A_wqkv": _A_in["wqkv"],
        "A_wo": _A_in["wo"],
        "B_x": _B_in["x"],
        "B_Lambda_re": _B_in["Lambda_re"],
        "B_Lambda_im": _B_in["Lambda_im"],
        "B_B_re": _B_in["B_re"],
        "B_B_im": _B_in["B_im"],
        "B_C_re": _B_in["C_re"],
        "B_C_im": _B_in["C_im"],
        "B_log_dt": _B_in["log_dt"],
        "B_Dskip": _B_in["Dskip"],
    }

def reference(A_x, A_wqkv, A_wo, B_x, B_Lambda_re, B_Lambda_im, B_B_re, B_B_im, B_C_re, B_C_im, B_log_dt, B_Dskip):
    def _A_ref(x, wqkv, wo):
        B, S, D = x.shape
        H = 32; Dh = D // H
        qkv = (lambda x, *d: x.permute(*d))((x @ wqkv).reshape(B, S, 3, H, Dh), 2, 0, 3, 1, 4)
        q, k, v = qkv[0], qkv[1], qkv[2]
        phi = lambda t: torch.where(t > 0, t + 1, torch.exp(t)) + 1e-6
        pq, pk = phi(q), phi(k)
        kv = torch.einsum("bhsd,bhse->bhde", pk, v)
        z = torch.einsum("bhsd->bhd", pk)
        num = torch.einsum("bhqd,bhde->bhqe", pq, kv)
        den = torch.einsum("bhqd,bhd->bhq", pq, z)[..., None] + 1e-6
        o = num / den
        return (lambda x, *d: x.permute(*d))(o, 0, 2, 1, 3).reshape(B, S, D) @ wo

    def _B_ref(x, Lambda_re, Lambda_im, B_re, B_im, C_re, C_im, log_dt, Dskip):
        Bsz, L, H = x.shape
        Lam = Lambda_re + 1j * Lambda_im
        Bmat = B_re + 1j * B_im
        Cmat = C_re + 1j * C_im
        dt = torch.exp(log_dt)
        Lam_bar = torch.exp(dt * Lam)
        B_bar = ((Lam_bar - 1.0) / Lam)[:, None] * Bmat
        Bu = torch.einsum("bld,pd->blp", x + 0j, B_bar)
        h = torch.zeros_like(Bu[:, 0, :])
        hs = []
        for t in range(L):
            h = Lam_bar[None, :] * h + Bu[:, t, :]
            hs.append(h)
        hseq = torch.stack(hs, 1)
        y = 2.0 * torch.einsum("blp,dp->bld", hseq, Cmat).real + x * Dskip[None, None, :]
        return y

    a = _A_ref(A_x, A_wqkv, A_wo)
    b = _B_ref(B_x, B_Lambda_re, B_Lambda_im, B_B_re, B_B_im, B_C_re, B_C_im, B_log_dt, B_Dskip)
    return torch.concatenate([a, b], axis=-1)
```

```python
import re

REG_RE = re.compile(r"^(-?)(?:abs\()?([vas])(\d+)\)?$")
RNG_RE = re.compile(r"^(-?)([vas])\[(\d+):(\d+)\]$")
TRANS = ("v_exp_f32", "v_log_f32", "v_rcp_f32", "v_rsq_f32", "v_sqrt_f32", "v_sin_f32", "v_cos_f32")


def regs_of(tok):
    tok = tok.strip()
    m = REG_RE.match(tok)
    if m:
        return [(m.group(2), int(m.group(3)))]
    m = RNG_RE.match(tok)
    if m:
        return [(m.group(2), i) for i in range(int(m.group(3)), int(m.group(4)) + 1)]
    if tok == "vcc":
        return [("s", "vcc")]
    if tok == "exec":
        return [("s", "exec")]
    if tok == "m0":
        return [("s", "m0")]
    return []


class I:
    def __init__(self, text, tag=None):
        self.text = text.strip()
        self.tag = tag
        self.kind = None
        self.defs = []
        self.uses = []
        self.srcc = []
        self.store_data = []
        self.parse()

    def parse(self):
        t = self.text
        if t.startswith("@"):
            self.kind = "pseudo"
            return
        if t.startswith(";") or t == "":
            self.kind = "comment"
            return
        if t.endswith(":"):
            self.kind = "label"
            return
        t = t.split(";")[0].strip()
        sp = t.split(None, 1)
        op = sp[0]
        self.op = op
        rest = sp[1] if len(sp) > 1 else ""
        rest_nomod = re.sub(r"\b(op_sel|op_sel_hi|neg_lo|neg_hi|bitop3):(\[[^\]]*\]|\S+)", "", rest)
        ops = []
        for o in rest_nomod.split(","):
            o = o.strip()
            if o:
                ops.append(o.split()[0])
        R = [regs_of(o) for o in ops]
        flat = lambda L: [x for l in L for x in l]
        if op.startswith("v_mfma"):
            self.kind = "mfma"
            self.defs = R[0]
            self.uses = flat(R[1:])
            self.srcab = flat(R[1:3])
            self.srcc = R[3]
        elif op.startswith("ds_read"):
            self.kind = "dsr"
            self.defs = R[0]
            self.uses = flat(R[1:])
        elif op.startswith("ds_write"):
            self.kind = "dsw"
            self.uses = flat(R)
        elif op.startswith("buffer_load"):
            if re.search(r"\blds\b", rest):
                self.kind = "dma"
                self.uses = flat(R) + [("s", "m0")]
            else:
                self.kind = "vld"
                self.defs = R[0]
                self.uses = flat(R[1:])
        elif op.startswith("buffer_store"):
            self.kind = "vst"
            self.uses = flat(R)
            if "x3" in op or "x4" in op:
                self.store_data = R[0]
        elif op.startswith("s_load") or op in ("s_memtime", "s_memrealtime"):
            self.kind = "smem"
            self.defs = R[0]
            self.uses = flat(R[1:])
        elif op in ("s_waitcnt",):
            self.kind = "wait"
        elif op in ("s_barrier",):
            self.kind = "barrier"
        elif op == "s_nop":
            self.kind = "nop"
            self.n = int(ops[0]) + 1
        elif op.startswith("s_cbranch") or op in ("s_branch", "s_endpgm"):
            self.kind = "branch"
            if "vcc" in op:
                self.uses = [("s", "vcc")]
        elif op.startswith("s_"):
            self.kind = "salu"
            if op.startswith("s_cmp") or op in ("s_setprio", "s_sleep"):
                self.uses = flat(R)
            else:
                self.defs = R[0]
                self.uses = flat(R[1:])
                if "saveexec" in op:
                    self.defs = R[0] + [("s", "exec")]
        elif op.startswith("v_"):
            self.kind = "valu"
            self.defs = R[0]
            self.uses = flat(R[1:])
            if op.startswith("v_fmac") or op.startswith("v_writelane"):
                self.uses += R[0]
            if "permlane" in op:
                self.defs = R[0] + R[1]
                self.uses = R[0] + R[1]
            self.trans = op.split("_e")[0] in TRANS or op in TRANS
            self.dpp = "row_" in rest or "quad_perm" in rest or "dpp" in op
        else:
            raise ValueError("unknown instruction: " + self.text)


class Stream:
    def __init__(self):
        self.items = []

    def __call__(self, text, tag=None):
        for l in text.split("\n"):
            if l.strip():
                self.items.append(I(l, tag))

    def add(self, items):
        for x in items:
            if isinstance(x, I):
                self.items.append(x)
            elif isinstance(x, (list, tuple)):
                self.add(x)
            else:
                self(x)


def mk(text, tag=None):
    return [I(l, tag) for l in text.split("\n") if l.strip()]


def insert_waits(items):
    out = []
    vm = []
    lg = []
    stats = {"waits": 0}

    def emit(nv, nl):
        parts = []
        if nv is not None:
            parts.append(f"vmcnt({min(nv, 63)})")
        if nl is not None:
            parts.append(f"lgkmcnt({min(nl, 15)})")
        if parts:
            if out and out[-1].kind == "wait" and getattr(out[-1], "gen", False):
                p = out.pop()
                nv2, nl2 = p.nv, p.nl
                nv = nv if nv2 is None else (nv2 if nv is None else min(nv, nv2))
                nl = nl if nl2 is None else (nl2 if nl is None else min(nl, nl2))
                parts = []
                if nv is not None:
                    parts.append(f"vmcnt({min(nv, 63)})")
                if nl is not None:
                    parts.append(f"lgkmcnt({min(nl, 15)})")
            w = I("s_waitcnt " + " ".join(parts))
            w.gen = True
            w.nv, w.nl = nv, nl
            out.append(w)
            stats["waits"] += 1

    for it in items:
        if it.kind == "pseudo":
            p = it.text.split()
            if p[0] == "@waittag":
                idx = [i for i, (d, t) in enumerate(vm) if t in p[1:]]
                if idx:
                    n = len(vm) - 1 - max(idx)
                    if n < 63:
                        emit(n, None)
                    del vm[: max(idx) + 1]
            elif p[0] == "@waitvm0":
                if vm:
                    emit(0, None)
                vm.clear()
            elif p[0] == "@waitlgkm0":
                if lg:
                    emit(None, 0)
                lg.clear()
            elif p[0] == "@drained":
                vm.clear()
            else:
                raise ValueError(it.text)
            continue
        if it.kind in ("comment", "label") or it.tag == "opaque":
            out.append(it)
            continue
        if it.kind == "wait":
            m = re.search(r"vmcnt\((\d+)\)", it.text)
            if m:
                n = int(m.group(1))
                if len(vm) > n:
                    del vm[: len(vm) - n]
            m = re.search(r"lgkmcnt\((\d+)\)", it.text)
            if m:
                n = int(m.group(1))
                if n == 0:
                    lg.clear()
                elif not any(s for _, s in lg) and len(lg) > n:
                    del lg[: len(lg) - n]
            out.append(it)
            continue
        touch = set(it.uses) | set(it.defs)
        nv = nl = None
        idx = [i for i, (d, t) in enumerate(vm) if d & touch]
        if idx:
            k = max(idx)
            n = len(vm) - 1 - k
            if n < 63:
                nv = n
            del vm[: k + 1]
        idx = [i for i, (d, s) in enumerate(lg) if d & touch]
        if idx:
            k = max(idx)
            if any(s for _, s in lg):
                nl = 0
                lg.clear()
            else:
                nl = len(lg) - 1 - k
                del lg[: k + 1]
        emit(nv, nl)
        out.append(it)
        if it.kind in ("vld", "vst", "dma"):
            vm.append((set(it.defs), it.tag))
        elif it.kind in ("dsr", "dsw"):
            lg.append((set(it.defs), False))
        elif it.kind == "smem":
            lg.append((set(it.defs), True))
    return out


def isv(r):
    return r[0] in ("v", "a")


def need_states(p, c):
    n = 0
    pd, cu, cd = set(p.defs), set(c.uses), set(c.defs)
    if p.kind == "valu":
        pv = {r for r in pd if isv(r)}
        ps = {r for r in pd if not isv(r)}
        if c.kind == "mfma" and pv & cu:
            n = max(n, 2)
        if c.kind == "valu":
            if p.trans and pv & cu:
                n = max(n, 1)
            if ("permlane" in c.op or c.dpp) and pv & cu:
                n = max(n, 2)
            if c.op.startswith(("v_readlane", "v_readfirstlane")) and pv & cu:
                n = max(n, 1)
            if ps & cu:
                n = max(n, 4 if c.op.startswith(("v_readlane", "v_writelane")) else 2)
        if c.kind in ("vld", "vst", "dma") and ps & cu:
            n = max(n, 5)
        if c.kind in ("salu", "branch", "smem") and ps & cu:
            n = max(n, 4)
    elif p.kind == "mfma":
        if c.kind == "mfma":
            if pd & set(c.srcab):
                n = max(n, 8)
            if pd & set(c.srcc) and p.defs != c.srcc:
                n = max(n, 6)
            if pd & cd and not (pd & set(c.srcc)):
                n = max(n, 8)
        elif c.kind in ("valu", "vld", "vst", "dma", "dsr", "dsw"):
            if pd & (cu | cd):
                n = max(n, 8)
            if c.kind in ("valu", "vld", "dsr") and set(p.srcc) & cd:
                n = max(n, 3)
    elif p.kind == "salu":
        if ("s", "m0") in pd and c.kind == "dma":
            n = max(n, 1)
    elif p.kind == "vst":
        if set(p.store_data) & cd:
            n = max(n, 2)
    return n


def insert_nops(items):
    out = []
    added = 0
    for it in items:
        if it.kind in ("comment",):
            out.append(it)
            continue
        if it.kind == "label":
            out.append(it)
            continue
        need = 0
        dist = 0
        for p in reversed(out):
            if p.kind in ("comment", "label"):
                continue
            if dist >= 9:
                break
            r = need_states(p, it)
            if r > dist:
                need = max(need, r - dist)
            dist += p.n if p.kind == "nop" else 1
        if need:
            out.append(I(f"s_nop {need - 1}"))
            added += need
        out.append(it)
    return out, added


def finalize(stream):
    items = insert_waits(stream.items)
    items, added = insert_nops(items)
    return items, added


def interleave(backbone, *filler_plans):
    slots = [[] for _ in backbone]
    for items, start, end in filler_plans:
        n = len(items)
        if n == 0:
            continue
        end = min(end, len(backbone) - 1)
        span = end - start + 1
        for i, x in enumerate(items):
            slots[start + (i * span) // n].append(x)
    out = []
    for b, s in zip(backbone, slots):
        out.append(b)
        out.extend(s)
    return out


def groups(text):
    out = []
    for l in text.split("\n"):
        l = l.strip()
        if not l:
            continue
        if l.startswith("+"):
            out[-1].append(I(l[1:]))
        else:
            out.append([I(l)])
    return out
```

```python
import sys, struct
from fw import *

KN = "concat_heads__linear_attn_block__ssm_conv_s5__prompt_kernel"
K = 1024

WS_E = 0x010000
WS_HF = 0x040000
WS_PF = 0x060000
WS_AF = 0x080000
WS_KV = 0x0A0000
WS_P = 0x100000
WS_PQ = 0x400000
WS_H = 0x800000
WS_TS = 0x1000000
OOB = 0x80000000

SLOT = 36 * K
CH = [40 * K, 60 * K, 80 * K, 0, 20 * K, 100 * K, 120 * K, 140 * K, 40 * K, 60 * K]
SCAN = 108 * K
TBUF = 120 * K
XCH = 112 * K
XS = 10496
KVL = 112 * K

SX, SW, SC, SWS, SO, SD = 36, 40, 44, 48, 52, 56
SP0, SP1, SP2, SP3 = 60, 64, 68, 72
sW, sRB, sCB, sNON, sT0, sT1, sCNT = 76, 77, 78, 79, 80, 81, 82
sA128 = 83
sAW = 88
sHX0, sHX1, sHW0, sHW1 = 93, 94, 95, 96
sMX, sMW = 97, 98
sETA, sXCD = 99, 100
sT2 = 101
sF0, sF1 = 3, 35
SE = SP0

XA, WA, WQ, WO = 16, 20, 25, 30
RX, RW = 35, 39
vL16, vNA, vNV = 45, 46, 47
ACC = 176
AX, AW = 0, 160

LOG2E = 1.4426950408889634
def f2u(x):
    return "0x%08x" % struct.unpack("<I", struct.pack("<f", x))[0]

def v(b, n=1): return f"v{b}" if n == 1 else f"v[{b}:{b+n-1}]"
def a(b, n=1): return f"a{b}" if n == 1 else f"a[{b}:{b+n-1}]"
def s(b, n=1): return f"s{b}" if n == 1 else f"s[{b}:{b+n-1}]"
MF = "v_mfma_f32_16x16x32_bf16"


class Gen:
    def __init__(self, ts=False, opt=None):
        self.ts = ts
        self.opt = opt or {}
        self.nlab = 0

    def lab(self, b):
        self.nlab += 1
        return f"L_{b}_{self.nlab}"

    def stamp(self, S, k):
        if self.ts:
            assert k < 13
            S(f"s_memtime s[{4+2*k}:{5+2*k}]")

    def dump_stamps(self, S):
        if not self.ts:
            return
        S("s_memrealtime s[30:31]")
        S("s_waitcnt lgkmcnt(0)")
        S("v_mov_b32 v1, 0")
        for k in range(13):
            S(f"v_writelane_b32 v1, s{4+2*k}, {k}")
        S("v_writelane_b32 v1, s32, 14")
        S("v_writelane_b32 v1, s30, 15")
        S(f"s_lshl_b32 s3, s2, 10\ns_add_u32 s3, s3, {WS_TS}")
        S(f"v_lshl_add_u32 v2, v0, 2, s3")
        S(f"buffer_store_dword v1, v2, {s(SWS,4)}, 0 offen")

    def prologue(self, S):
        S("s_cmp_ge_u32 s2, 256\ns_cbranch_scc1 L_end")
        S("s_load_dwordx16 s[4:19], s[0:1], 0")
        S("s_load_dwordx8 s[20:27], s[0:1], 64")
        S("s_load_dwordx4 s[28:31], s[0:1], 96")
        S("s_load_dwordx2 s[32:33], s[0:1], 112")
        if self.ts:
            S("s_memrealtime s[34:35]")
        S(f"""v_lshrrev_b32 v2, 6, v0
v_and_b32 v1, 63, v0
v_readfirstlane_b32 {s(sW)}, v2
s_and_b32 {s(sXCD)}, s2, 7
s_lshr_b32 s3, s2, 3
s_lshr_b32 {s(sCB)}, s3, 2
s_and_b32 s3, s3, 3
s_and_b32 {s(sT0)}, {s(sXCD)}, 3
s_lshl_b32 {s(sRB)}, {s(sT0)}, 2
s_add_u32 {s(sRB)}, {s(sRB)}, s3
s_mul_i32 s3, s3, 20
s_mul_i32 {s(sT0)}, {s(sT0)}, 5
s_add_u32 s3, s3, {s(sT0)}
s_mul_i32 {s(sT0)}, {s(sCB)}, 10
s_add_u32 s3, s3, {s(sT0)}
s_lshr_b32 s3, s3, 3""")
        if self.opt.get("norot"):
            S("s_mov_b32 s3, 0")
        S(f"""s_sub_u32 {s(sT0)}, s3, 10
s_cselect_b32 s3, s3, {s(sT0)}
s_sub_u32 {s(sT0)}, s3, 5
s_cselect_b32 s3, s3, {s(sT0)}
s_cselect_b32 {s(sETA)}, 0, 1""")
        for c in range(5):
            S(f"""s_add_u32 {s(sT0)}, s3, {c}
s_sub_u32 {s(sT1)}, {s(sT0)}, 5
s_cselect_b32 {s(sT0)}, {s(sT0)}, {s(sT1)}
s_lshl_b32 {s(sA128+c)}, {s(sT0)}, 7""")
        S(f"""s_mul_i32 {s(sHX0)}, {s(sETA)}, 640
s_sub_u32 {s(sHX1)}, 640, {s(sHX0)}
s_lshl_b32 {s(sMX)}, {s(sW)}, 12
s_mul_i32 {s(sMW)}, {s(sW)}, 5120""")
        S(f"""v_lshrrev_b32 v2, 3, v1
v_lshrrev_b32 v3, 4, v1
v_and_b32 v4, 15, v1
v_and_b32 v5, 7, v1
v_xor_b32 v5, v5, v3
v_lshlrev_b32 v5, 4, v5
v_lshlrev_b32 {v(vL16)}, 4, v1
v_lshrrev_b32 v6, 1, v4
v_xor_b32 v6, v6, v3
v_lshlrev_b32 v6, 4, v6
v_lshl_add_u32 v6, v4, 7, v6
v_add_u32 {v(RX)}, {s(sMX)}, v6
v_xor_b32 {v(RX+2)}, 64, {v(RX)}
v_add_u32 {v(RX+1)}, 0x10000, {v(RX)}
v_add_u32 {v(RX+3)}, 0x10000, {v(RX+2)}""")
        S(f"""s_lshl_b32 s3, s2, 8
v_or_b32 v7, s3, v0
v_mov_b32 v8, {OOB}
v_cmp_eq_u32 vcc, 0, v7
v_cndmask_b32_e64 {v(vNA)}, v8, 0, vcc""")
        S(f"""s_lshl_b32 {s(sT0)}, {s(sRB)}, 7
s_lshl_b32 {s(sT1)}, {s(sW)}, 5
s_add_u32 {s(sT0)}, {s(sT0)}, {s(sT1)}
s_mul_i32 {s(sT2)}, {s(sT0)}, 1280""")
        S(f"s_cmp_ge_u32 {s(sXCD)}, 4\ns_cbranch_scc1 L_sideB")

    def srd(self, S, d, p, n):
        S(f"s_mov_b32 {s(d)}, {s(p)}\ns_mov_b32 {s(d+1)}, {s(p+1)}\ns_mov_b32 {s(d+2)}, {n}\ns_mov_b32 {s(d+3)}, 0x20000")

    def common_srds(self, S):
        self.srd(S, SWS, 32, "0x10000000")
        self.srd(S, SO, 28, 2048 * 5120)
        self.srd(S, SD, 30, 256)
        if self.ts:
            S("s_mov_b32 s32, s34")

    def x_addrs(self, S, side):
        if side == "A":
            S("v_mul_u32_u24 v7, 1280, v2")
            crow = [8 * i for i in range(4)]
        else:
            S("v_lshrrev_b32 v7, 5, v1\nv_and_b32 v8, 3, v2\nv_lshl_add_u32 v7, v7, 3, v8\nv_mul_u32_u24 v7, 1280, v7")
            crow = [16 * (i & 1) + 4 * (i >> 1) for i in range(4)]
        S(f"v_add3_u32 v7, v7, v5, {s(sT2)}\nv_xor_b32 v8, 64, v7")
        for i in range(4):
            S(f"v_add_u32 {v(XA+i)}, {crow[i]*1280 - 1024*i}, v{7 + (i & 1)}")

    def dma_stage(self, st, side):
        slot = (st % 3) * SLOT
        tag = f"st{st}"
        hx = sHX0 if st < 5 else sHX1
        L = []
        for i in range(4):
            pre = f"s_add_u32 m0, {s(sMX)}, {slot}\ns_add_u32 {s(sT0)}, {s(sA128 + st % 5)}, {s(hx)}\n" if i == 0 else ""
            L.append(mk(pre + f"buffer_load_dwordx4 {v(XA+i)}, {s(SX,4)}, {s(sT0)} offen offset:{1024*i} lds", tag))
        so = sT0
        pre2 = ""
        if side == "A":
            so = sT1
            hw = sHW0 if st < 5 else sHW1
            pre2 = f"s_add_u32 {s(sT1)}, {s(sAW + st % 5)}, {s(hw)}\n"
        L += self.dma_w(slot + 16 * K, WA, SW, so, tag, pre2)
        return L

    def dma_w(self, ldsbase, areg, srd, so, tag, pre2="", extra=""):
        L = []
        for i in range(5):
            pre = ""
            if i == 0:
                pre = f"s_add_u32 m0, {s(sMW)}, {ldsbase}\n" + pre2
            if i == 4:
                pre = f"s_add_u32 m0, {s(sMW)}, {ldsbase + 4096}\n"
            L.append(mk(pre + f"buffer_load_dwordx4 {v(areg+i)}, {s(srd,4)}, {s(so)} offen offset:{1024*(i&3)}{extra} lds", tag))
        return L

    def reads(self, h, side):
        st, kk = h >> 1, h & 1
        slot = (st % 3) * SLOT
        fs = h & 1
        L = []
        for i in range(2):
            off = slot + 2048 * i
            L.append(I(f"ds_read_b128 {a(AX + (h*2+i)*4, 4)}, {v(RX + 2*kk + (off >> 16))} offset:{off & 0xffff}"))
        for n in range(10):
            d = AW + 40 * fs + 4 * n
            if side == "B":
                off = slot + 16 * K + 2048 * n
                L.append(I(f"ds_read_b128 {a(d,4)}, {v(RW + 2*kk + (off >> 16))} offset:{off & 0xffff}"))
            else:
                L += self.tr_frag(d, slot + 16 * K + kk * 10240, n)
        return L

    def tr_frag(self, d, base, u, dst="a"):
        L = []
        for j in range(2):
            off = base + 1280 * j + 32 * u
            r = a(d + 2 * j, 2) if dst == "a" else v(d + 2 * j, 2)
            L.append(I(f"ds_read_b64_tr_b16 {r}, {v(RW + 3*(u & 1) + (off >> 16))} offset:{off & 0xffff}"))
        return L

    def mfmas(self, h, side, epsq=None):
        L = []
        for n in range(10):
            for i in range(2):
                c = ACC + (n * 2 + i) * 4
                cin = v(c, 4)
                if h == 0:
                    cin = v(epsq, 4) if (side == "A" and n < 5) else "0"
                L.append(I(f"{MF} {v(c,4)}, {a(AX + (h*2+i)*4, 4)}, {a(AW + 40*(h & 1) + 4*n, 4)}, {cin}"))
        return L

    def nonce_make(self):
        return mk(f"""v_add_u32 {v(vNV)}, 0x9E3779B1, {v(vNV)}
v_cmp_eq_u32 vcc, 0, {v(vNV)}
v_cndmask_b32_e64 {v(vNV)}, {v(vNV)}, 1, vcc
buffer_store_dword {v(vNV)}, {v(vNA)}, {s(SWS,4)}, 0 offen sc1
buffer_store_dword {v(vNV)}, {v(vNA)}, {s(SD,4)}, 0 offen sc1""")

    def nonce_get(self, S):
        done = self.lab("nonce")
        lp = self.lab("nlp")
        S(f"v_readfirstlane_b32 {s(sNON)}, {v(vNV)}")
        S(f"""s_cmp_lg_u32 {s(sNON)}, 0
s_cbranch_scc1 {done}
s_mov_b32 {s(sCNT)}, 0x40000
{lp}:
buffer_load_dword {v(vNV)}, off, {s(SD,4)}, 0 sc1
s_waitcnt vmcnt(0)
v_readfirstlane_b32 {s(sNON)}, {v(vNV)}
s_cmp_lg_u32 {s(sNON)}, 0
s_cbranch_scc1 {done}
s_sub_u32 {s(sCNT)}, {s(sCNT)}, 1
s_cbranch_scc0 {lp}
{done}:""", tag="opaque")

    def mainloop(self, S, side, early, fillers, tail_chunks, epsq=None):
        S(f"buffer_load_dword {v(vNV)}, {v(vNA)}, {s(SWS,4)}, 0 offen sc1")
        S.add(self.dma_stage(0, side))
        S.add(self.dma_stage(1, side))
        S.add(early)
        self.stamp(S, 0)
        S("@waittag st0\ns_barrier")
        self.stamp(S, 1)
        S.add(self.reads(0, side))
        q = {h: [] for h in range(21)}
        q[0] = self.dma_stage(2, side)
        for st in range(7):
            d = self.dma_stage(st + 3, side)
            q[2 * st + 1] += d[:5]
            q[2 * st + 2] += d[5:]
        q[15] += tail_chunks[0]
        q[17] += tail_chunks[1]
        q[18] += tail_chunks[2]
        q[19] += tail_chunks[3]
        q[1] = [self.nonce_make()] + q[1]
        q[14] = q[14] + [mk(f"buffer_load_dword {v(vNV)}, off, {s(SD,4)}, 0 sc1")]
        f0, f1 = 2, 18
        nf = len(fillers)
        for h in range(20):
            st = h >> 1
            if h & 1:
                if st + 1 < 10:
                    S(f"@waittag st{st+1}")
                S("@waitlgkm0\ns_barrier")
            else:
                S("@waitlgkm0")
            if h in (5, 11):
                self.stamp(S, 2 if h == 5 else 3)
            rd = self.reads(h + 1, side) if h < 19 else []
            fl = []
            if f0 <= h <= f1:
                lo = (h - f0) * nf // (f1 - f0 + 1)
                hi = (h - f0 + 1) * nf // (f1 - f0 + 1)
                fl = fillers[lo:hi]
            S.add(interleave(self.mfmas(h, side, epsq), (rd, 0, 11 if side == "B" else 14), (q[h], 1, 19), (fl, 2, 19)))
        S.add(tail_chunks[4])

    def poll_flags(self, S, areg, nloads, dreg, step=0):
        lp, done = self.lab("poll"), self.lab("pdone")
        S(f"s_mov_b32 {s(sCNT)}, 0x40000\n{lp}:")
        for k in range(nloads):
            S(f"buffer_load_dword {v(dreg+k)}, {v(areg+k)}, {s(SWS,4)}, 0 offen sc1")
        S("s_waitcnt vmcnt(0)")
        S(f"v_xor_b32 {v(dreg)}, {s(sNON)}, {v(dreg)}")
        for k in range(1, nloads):
            S(f"v_xor_b32 {v(dreg+k)}, {s(sNON)}, {v(dreg+k)}\nv_or_b32 {v(dreg)}, {v(dreg)}, {v(dreg+k)}")
        S(f"""v_cmp_ne_u32 vcc, 0, {v(dreg)}
s_cbranch_vccz {done}
s_sub_u32 {s(sCNT)}, {s(sCNT)}, 1
s_cbranch_scc0 {lp}
{done}:""")

    def store_out(self, S, acc, side):
        S(f"""v_and_b32 v4, 15, v0
v_bfe_u32 v3, v0, 4, 2
v_mul_u32_u24 v4, 5120, v4
v_lshl_add_u32 v4, v3, 4, v4
s_lshl_b32 {s(sT0)}, {s(sRB)}, 7
s_lshl_b32 {s(sT1)}, {s(sW)}, 5
s_add_u32 {s(sT0)}, {s(sT0)}, {s(sT1)}
s_mul_i32 {s(sT0)}, {s(sT0)}, 5120
s_mul_i32 {s(sT1)}, {s(sCB)}, 320
s_add_u32 {s(sT0)}, {s(sT0)}, {s(sT1)}
s_add_u32 {s(sT0)}, {s(sT0)}, {2560 if side == 'B' else 0}
v_add_u32 v4, {s(sT0)}, v4
v_add_u32 v5, {16*5120}, v4""")
        for i in range(2):
            for n in range(5):
                S(f"buffer_store_dwordx4 {v(acc + (n*2+i)*4, 4)}, v{4+i}, {s(SO,4)}, 0 offen offset:{64*n}")

    def side_B(self):
        S = Stream()
        S("L_sideB:")
        CST = 48
        CL8, CL128, CCF = 88, 90, 92
        vSCW, vSCC, vSCH, vEP, vTW, vTB, vHS, vHF, vHP = 25, 26, 27, 28, 29, 30, 32, 33, 34
        vSEG, vXS = 94, 95
        PRM = 96
        VE = 116
        VX = 121
        CW = 126
        vHW, vGRP, vDS = 128, 129, 131
        RC = 132
        BIG = 136
        self.x_addrs(S, "B")
        S(f"""s_and_b32 {s(sT0)}, {s(sW)}, 1
s_lshl_b32 {s(sT1)}, {s(sT0)}, 6
v_xor_b32 v7, {s(sT1)}, v5
s_mul_i32 {s(sT0)}, {s(sT0)}, 40
s_mul_i32 {s(sT1)}, {s(sCB)}, 80
s_add_u32 {s(sT0)}, {s(sT0)}, {s(sT1)}
s_mul_i32 {s(sT0)}, {s(sT0)}, 1280
v_mul_u32_u24 v8, 1280, v2
v_add3_u32 v7, v7, v8, {s(sT0)}
v_xor_b32 v8, 64, v7""")
        for i in range(5):
            S(f"v_add_u32 {v(WA+i)}, {8*i*1280 - 1024*(i & 3)}, v{7 + (i & 1)}")
        S(f"""v_subrev_u32 {v(RW)}, {s(sMX)}, {v(RX)}
v_xor_b32 {v(RW+2)}, 64, {v(RW)}
v_add_u32 {v(RW+1)}, 0x10000, {v(RW)}
v_add_u32 {v(RW+3)}, 0x10000, {v(RW+2)}""")
        S(f"""s_mul_i32 {s(sT0)}, {s(sCB)}, 160
v_lshl_add_u32 v9, v4, 1, {s(sT0)}
v_min_u32 v11, 59, v1
v_mul_u32_u24 {v(vGRP)}, 205, v11
v_lshrrev_b32 {v(vGRP)}, 12, {v(vGRP)}
v_mul_u32_u24 v8, 20, {v(vGRP)}
v_sub_u32 v11, v11, v8
s_mul_i32 {s(sT1)}, {s(sW)}, 20
v_add_u32 v11, {s(sT1)}, v11
v_lshl_add_u32 v10, v11, 1, {s(sT0)}""")
        self.srd(S, SX, 10, 2048 * 1280)
        S(f"""s_cmp_ge_u32 {s(sW)}, 2
s_cselect_b32 {s(SW)}, s18, s16
s_cselect_b32 {s(SW+1)}, s19, s17
s_cselect_b32 {s(SC)}, s22, s20
s_cselect_b32 {s(SC+1)}, s23, s21
s_mov_b32 {s(SW+2)}, {640*1280}
s_mov_b32 {s(SW+3)}, 0x20000""")
        self.common_srds(S)
        S(f"s_mov_b32 {s(SC+2)}, {640*1280}\ns_mov_b32 {s(SC+3)}, 0x20000")
        self.srd(S, SP0, 12, 1280)
        self.srd(S, SP1, 14, 1280)
        self.srd(S, SP2, 24, 1280)
        self.srd(S, SP3, 26, 1280)
        early = []
        for t in range(6):
            for k, sp in enumerate((SP0, SP1, SP2)):
                ad, off = ("v9", 32 * t) if t < 5 else ("v10", 0)
                early += mk(f"buffer_load_ushort {v(PRM + 3*t + k)}, {ad}, {s(sp,4)}, 0 offen offset:{off}")

        F = []
        def f(t): F.extend(groups(t))
        F0, F1 = s(sF0), s(sF1)
        f(f"""s_lshl_b32 {F0}, {s(sW)}, 2
v_add_u32 {v(vSEG)}, {F0}, v3
v_mul_u32_u24 v2, 640, {v(vSEG)}
v_lshl_add_u32 v2, v4, 3, v2
v_add_u32 {v(vSCW)}, {SCAN}, v2
v_lshlrev_b32 v2, 3, v11
v_add_u32 {v(vSCC)}, {SCAN}, v2
v_mul_u32_u24 v5, 640, {v(vGRP)}
v_add_u32 {v(vHW)}, {v(vSCC)}, v5
v_lshlrev_b32 v2, 3, v4
v_add_u32 {v(vSCH)}, {SCAN + 10240}, v2
v_lshlrev_b32 {v(vSEG)}, 3, {v(vSEG)}
v_cvt_f32_u32 {v(vSEG)}, {v(vSEG)}""")
        f(f"""s_mul_i32 {F0}, {s(sCB)}, 1280
s_mul_i32 {F1}, {s(sRB)}, 10240
s_add_u32 {F0}, {F0}, {F1}
v_lshl_add_u32 v2, v11, 4, {F0}
v_mov_b32 v5, {OOB}
v_cmp_gt_u32 vcc, 20, v1
+v_cndmask_b32 {v(vEP)}, v5, v2, vcc
v_mul_u32_u24 v5, 51200, {v(vGRP)}
v_add_u32 v2, v2, v5""")
        for j in range(5):
            f(f"v_add_u32 {v(VE+j)}, {((j - 15) * 10240) & 0xffffffff:#x}, v2")
        f(f"""s_mul_i32 {F0}, {s(sW)}, 10240
s_add_u32 {F0}, {F0}, {TBUF}
v_bfe_u32 v2, v4, 1, 2
v_lshrrev_b32 v5, 3, v4
v_lshlrev_b32 v5, 1, v5
v_xor_b32 v2, v2, v5
v_xor_b32 v2, v2, v3
v_lshlrev_b32 v2, 4, v2
v_lshl_add_u32 v2, v4, 6, v2
v_add_u32 {v(vTW)}, {F0}, v2
v_and_b32 v2, 1, v3
v_bfe_u32 v5, v1, 2, 2
v_lshl_add_u32 v6, v2, 3, v5
v_lshlrev_b32 v6, 6, v6
v_lshrrev_b32 v5, 1, v5
v_bfe_u32 v7, v1, 1, 1
v_xor_b32 v5, v5, v7
v_lshl_add_u32 v5, v2, 1, v5
v_lshl_add_u32 v6, v5, 4, v6
v_and_b32 v5, 1, v1
v_lshl_add_u32 v6, v5, 3, v6
v_lshrrev_b32 v5, 1, v3
v_lshl_add_u32 v6, v5, 10, v6
v_add_u32 {v(vTB)}, {F0}, v6
v_xor_b32 {v(vTB+1)}, 32, {v(vTB)}""")
        f(f"""s_lshl_b32 {F0}, {s(sRB)}, 2
s_add_u32 {F0}, {F0}, {s(sW)}
s_mul_i32 {s(sAW)}, {F0}, 81920
s_add_u32 {s(sAW)}, {s(sAW)}, {WS_H}
s_mul_i32 {F1}, {s(sCB)}, 10240
s_add_u32 {F1}, {F1}, {s(sAW)}
v_add_u32 {v(vHS)}, {F1}, {v(vL16)}
s_lshl_b32 {F0}, {F0}, 10
s_add_u32 {F0}, {F0}, {WS_HF}
v_and_b32 v2, 7, v1
v_lshlrev_b32 v2, 7, v2
v_add_u32 {v(vHP)}, {F0}, v2
s_lshl_b32 {F1}, {s(sCB)}, 7
s_add_u32 {F0}, {F0}, {F1}
v_mov_b32 v2, {F0}
v_mov_b32 v5, {OOB}
v_cmp_eq_u32 vcc, 0, v1
+v_cndmask_b32 {v(vHF)}, v5, v2, vcc""")
        f(f"""v_and_b32 v2, 1, v3
v_lshrrev_b32 v5, 1, v4
v_xor_b32 v2, v2, v5
v_lshlrev_b32 v2, 4, v2
v_lshl_add_u32 v2, v4, 7, v2
v_lshrrev_b32 v5, 1, v3
v_mul_u32_u24 v5, 10240, v5
v_add_u32 {v(RC)}, v5, v2
v_xor_b32 {v(RC+1)}, 32, {v(RC)}
v_xor_b32 {v(RC+2)}, 64, {v(RC)}
v_xor_b32 {v(RC+3)}, 96, {v(RC)}""")
        f(f"""s_lshl_b32 {F0}, {s(sRB)}, 7
s_lshl_b32 {F1}, {s(sW)}, 5
s_add_u32 {F0}, {F0}, {F1}
s_mul_i32 {F0}, {F0}, 1280
s_mul_i32 {F1}, {s(sCB)}, 160
v_lshl_add_u32 {v(vDS)}, v3, 3, {F1}
v_mul_u32_u24 v2, 1280, v4
v_add3_u32 {v(vXS)}, v2, {v(vDS)}, {F0}""")

        def power(n, dr, di):
            t = ""
            if n is None:
                t += "v_mov_b32 v12, v8\nv_mov_b32 v13, v9\n"
            else:
                t += f"v_mul_f32 v12, {n}, v8\nv_mul_f32 v13, {n}, v9\n"
            t += f"""v_exp_f32 v12, v12
v_fract_f32 v13, v13
v_cos_f32 v14, v13
v_sin_f32 v15, v13
v_mul_f32 {v(dr)}, v12, v14
v_mul_f32 {v(di)}, v12, v15"""
            return t
        for t in range(6):
            lr, li, ld = PRM + 3 * t, PRM + 3 * t + 1, PRM + 3 * t + 2
            c = CST + 8 * t
            f(f"""v_lshlrev_b32 {v(ld)}, 16, {v(ld)}
v_lshlrev_b32 {v(lr)}, 16, {v(lr)}
v_lshlrev_b32 {v(li)}, 16, {v(li)}
v_mul_f32 v2, {f2u(LOG2E)}, {v(ld)}
v_exp_f32 v2, v2
v_cvt_pk_bf16_f32 v2, v2, v2
v_and_b32 v2, 0xffff0000, v2
v_mul_f32 v8, v2, {v(lr)}
v_mul_f32 v9, v2, {v(li)}
v_mul_f32 v8, {f2u(LOG2E)}, v8
v_mul_f32 v9, 0.15915494, v9""")
            Lr, Li = (c, c + 2) if t < 5 else (6, 7)
            cf = c + 4 if t < 5 else CCF
            f(power(None, Lr, Li))
            f(f"""v_add_f32 v2, -1.0, {v(Lr)}
v_mul_f32 v5, {v(lr)}, {v(lr)}
v_fmac_f32 v5, {v(li)}, {v(li)}
v_rcp_f32 v5, v5
v_mul_f32 v10, v2, {v(lr)}
v_fmac_f32 v10, {v(Li)}, {v(li)}
v_add_f32 v5, v5, v5
v_mul_f32 {v(cf)}, v10, v5
v_mul_f32 v10, {v(Li)}, {v(lr)}
v_fma_f32 v10, -v2, {v(li)}, v10
v_mul_f32 {v(cf+1)}, v10, v5""")
            if t < 5:
                f(f"""v_mul_f32 v2, {v(Li)}, {v(Li)}
v_fma_f32 {v(c+1)}, {v(Lr)}, {v(Lr)}, -v2
v_mul_f32 v2, {v(Lr)}, {v(Li)}
v_add_f32 {v(c+3)}, v2, v2""")
                f(power(v(vSEG), c + 6, c + 7))
            else:
                f(power(f2u(8.0), CL8, CL8 + 1))
                f(power(f2u(128.0), CL128, CL128 + 1))
                f(f"""v_sub_u32 v10, 2, {v(vGRP)}
v_mul_u32_u24 v10, 640, v10
v_cvt_f32_u32 v10, v10""")
                f(power("v10", 6, 7))
                f(f"""v_mul_f32 {v(CW)}, {v(CCF)}, v6
v_mul_f32 {v(CW+1)}, {v(CCF)}, v7
v_fma_f32 {v(CW)}, -{v(CCF+1)}, v7, {v(CW)}
v_fmac_f32 {v(CW+1)}, {v(CCF+1)}, v6""")
        f(f"""s_add_u32 {s(SE)}, {s(SWS)}, {WS_E}
+s_addc_u32 {s(SE+1)}, {s(SWS+1)}, 0
s_mov_b32 {s(SE+2)}, 163840""")

        def cchunk(k):
            pre = f"""s_add_u32 {s(sT1)}, {s(sAW+2)}, {k}
s_sub_u32 {s(sT2)}, {s(sT1)}, 10
s_cselect_b32 {s(sT1)}, {s(sT1)}, {s(sT2)}
s_lshl_b32 {s(sT1)}, {s(sT1)}, 7
"""
            return self.dma_w(CH[k], WA, SC, sT1, f"c{k}", pre)
        S(f"s_mul_i32 {s(sAW+2)}, {s(sCB)}, 5\ns_lshr_b32 {s(sAW+2)}, {s(sAW+2)}, 2")
        self.mainloop(S, "B", early, F, [cchunk(k) for k in range(5)])
        self.stamp(S, 4)

        re = lambda t, k: ACC + (t * 2 + (k >> 1)) * 4 + 2 * (k & 1)
        im = lambda t, k: ACC + ((t + 5) * 2 + (k >> 1)) * 4 + 2 * (k & 1)
        HI = "op_sel:[1,0,0] op_sel_hi:[1,1,1]"
        NEG = "neg_lo:[1,0,0] neg_hi:[1,0,0]"
        T0 = BIG
        cur = None
        for k in range(1, 4):
            dst = T0 if k & 1 else 96
            for t in range(5):
                c = CST + 8 * t
                sr, si = (re(t, 0), im(t, 0)) if k == 1 else (cur + 4 * t, cur + 4 * t + 2)
                S(f"v_pk_fma_f32 {v(dst+4*t,2)}, {v(c,2)}, {v(sr,2)}, {v(re(t,k),2)} {HI}")
                S(f"v_pk_fma_f32 {v(dst+4*t+2,2)}, {v(c,2)}, {v(si,2)}, {v(im(t,k),2)} {HI}")
            for t in range(5):
                c = CST + 8 * t
                sr, si = (re(t, 0), im(t, 0)) if k == 1 else (cur + 4 * t, cur + 4 * t + 2)
                S(f"v_pk_fma_f32 {v(dst+4*t,2)}, {v(c+2,2)}, {v(si,2)}, {v(dst+4*t,2)} {HI} {NEG}")
                S(f"v_pk_fma_f32 {v(dst+4*t+2,2)}, {v(c+2,2)}, {v(sr,2)}, {v(dst+4*t+2,2)} {HI}")
            cur = dst
        EE = 96
        for t in range(5):
            c, b = CST + 8 * t, cur + 4 * t
            S(f"v_fma_f32 {v(EE+2*t)}, {v(c)}, {v(b)}, {v(b+1)}\nv_fma_f32 {v(EE+2*t+1)}, {v(c)}, {v(b+2)}, {v(b+3)}")
        for t in range(5):
            c, b = CST + 8 * t, cur + 4 * t
            S(f"v_fma_f32 {v(EE+2*t)}, -{v(c+2)}, {v(b+2)}, {v(EE+2*t)}\nv_fmac_f32 {v(EE+2*t+1)}, {v(c+2)}, {v(b)}")
            S(f"ds_write_b64 {v(vSCW)}, {v(EE+2*t,2)} offset:{128*t}")
        self.nonce_get(S)
        S("@waitlgkm0\ns_barrier")
        ch = lambda j: BIG + 2 * j
        for j in range(16):
            S(f"ds_read_b64 {v(ch(j),2)}, {v(vSCC)} offset:{640*j}")
        for j in range(1, 16):
            p, c = ch(j - 1), ch(j)
            S(f"""v_fmac_f32 {v(c)}, {v(CL8)}, {v(p)}
v_fmac_f32 {v(c+1)}, {v(CL8)}, {v(p+1)}
v_fma_f32 {v(c)}, -{v(CL8+1)}, {v(p+1)}, {v(c)}
v_fmac_f32 {v(c+1)}, {v(CL8+1)}, {v(p)}""")
            if j == 1:
                S(f"v_mov_b32 {v(BIG+32)}, {s(sNON)}\nv_mov_b32 {v(BIG+33)}, {s(sNON)}")
        S(f"buffer_store_dwordx4 {v(BIG+30,4)}, {v(vEP)}, {s(SE,4)}, 0 offen sc1")
        self.stamp(S, 5)
        S(f"v_mov_b32 v2, 0\nv_mov_b32 v3, 0\nds_write_b64 {v(vSCC)}, v[2:3]")
        for j in range(15):
            c = ch(j)
            d = 4 + 2 * (j & 3)
            S(f"""v_mul_f32 {v(d)}, {v(CCF)}, {v(c)}
v_mul_f32 {v(d+1)}, {v(CCF)}, {v(c+1)}
v_fma_f32 {v(d)}, -{v(CCF+1)}, {v(c+1)}, {v(d)}
v_fmac_f32 {v(d+1)}, {v(CCF+1)}, {v(c)}
ds_write_b64 {v(vSCC)}, {v(d,2)} offset:{640*(j+1)}""")
        LO = "op_sel:[0,0] op_sel_hi:[0,1]"
        for t in range(5):
            cf = CST + 8 * t + 4
            for k in range(4):
                d = 2 + 2 * (k & 1)
                S(f"""v_pk_mul_f32 {v(d,2)}, {v(cf,2)}, {v(re(t,k),2)} op_sel:[1,0] op_sel_hi:[1,1]
v_pk_mul_f32 {v(re(t,k),2)}, {v(cf,2)}, {v(re(t,k),2)} {LO}
v_pk_fma_f32 {v(re(t,k),2)}, {v(cf,2)}, {v(im(t,k),2)}, {v(re(t,k),2)} {HI} {NEG}
v_pk_fma_f32 {v(im(t,k),2)}, {v(cf,2)}, {v(im(t,k),2)}, {v(d,2)} op_sel:[0,0,0] op_sel_hi:[0,1,1]""")
        for x in range(7, 0, -1):
            for t in range(5):
                c = CST + 8 * t
                ur, ui = re(t, x >> 1) + (x & 1), im(t, x >> 1) + (x & 1)
                pr, pi = re(t, (x - 1) >> 1) + ((x - 1) & 1), im(t, (x - 1) >> 1) + ((x - 1) & 1)
                S(f"""v_fmac_f32 {v(ur)}, {v(c)}, {v(pr)}
v_fmac_f32 {v(ui)}, {v(c)}, {v(pi)}
v_fma_f32 {v(ur)}, -{v(c+2)}, {v(pi)}, {v(ur)}
v_fmac_f32 {v(ui)}, {v(c+2)}, {v(pr)}""")
        SL = 100
        S("@waitlgkm0\ns_barrier")
        for t in range(5):
            S(f"ds_read_b64 {v(SL+2*t,2)}, {v(vSCW)} offset:{128*t}")
        self.stamp(S, 6)
        S(f"v_mov_b32 v2, {s(sNON)}")
        for j in range(5):
            S(f"v_cmp_le_i32 vcc, 0, {v(VE+j)}\nv_cndmask_b32_e64 {v(VX+j)}, 0, v2, vcc")
        S("@waitlgkm0")
        lp, done = self.lab("epoll"), self.lab("edone")
        S(f"s_mov_b32 {s(sCNT)}, 0x40000\n{lp}:")
        for j in range(5):
            S(f"buffer_load_dwordx4 {v(BIG+4*j,4)}, {v(VE+j)}, {s(SE,4)}, 0 offen sc1")
        S("s_waitcnt vmcnt(0)")
        for j in range(5):
            d, hp = BIG + 4 * j, BIG + 4 * j - 4
            S(f"v_xor_b32 {v(d+2)}, {v(d+2)}, {v(VX+j)}")
            if j:
                S(f"""v_fmac_f32 {v(d)}, {v(CL128)}, {v(hp)}
v_fmac_f32 {v(d+1)}, {v(CL128)}, {v(hp+1)}
v_or_b32 {v(d+2)}, {v(d+2)}, {v(hp+2)}
v_fma_f32 {v(d)}, -{v(CL128+1)}, {v(hp+1)}, {v(d)}
v_fmac_f32 {v(d+1)}, {v(CL128+1)}, {v(hp)}""")
        hp = BIG + 16
        S(f"""v_cmp_ne_u32 vcc, 0, {v(hp+2)}
v_mul_f32 v4, {v(CW)}, {v(hp)}
v_mul_f32 v5, {v(CW)}, {v(hp+1)}
v_fma_f32 v4, -{v(CW+1)}, {v(hp+1)}, v4
v_fmac_f32 v5, {v(CW+1)}, {v(hp)}
s_cbranch_vccz {done}
s_sub_u32 {s(sCNT)}, {s(sCNT)}, 1
s_cbranch_scc0 {lp}
{done}:""")
        S(f"""ds_write_b64 {v(vHW)}, v[4:5] offset:10240
@waitlgkm0
s_barrier""")
        self.stamp(S, 7)
        HH = BIG
        for t in range(5):
            for g in range(3):
                S(f"ds_read_b64 {v(HH+10*g+2*t,2)}, {v(vSCH)} offset:{128*t + 640*g}")
        for g in (1, 2):
            for t in range(5):
                S(f"v_pk_add_f32 {v(HH+2*t,2)}, {v(HH+2*t,2)}, {v(HH+10*g+2*t,2)}")
        for t in range(5):
            ls, h_, sl = CST + 8 * t + 6, HH + 2 * t, SL + 2 * t
            S(f"""v_fmac_f32 {v(sl)}, {v(ls)}, {v(h_)}
v_fmac_f32 {v(sl+1)}, {v(ls)}, {v(h_+1)}
v_fma_f32 {v(sl)}, -{v(ls+1)}, {v(h_+1)}, {v(sl)}
v_fmac_f32 {v(sl+1)}, {v(ls+1)}, {v(h_)}""")
        for t in range(5):
            c, sl = CST + 8 * t, SL + 2 * t
            S(f"v_pk_fma_f32 {v(re(t,0),2)}, {v(c,2)}, {v(sl,2)}, {v(re(t,0),2)} op_sel:[0,0,0] op_sel_hi:[1,0,1]")
            S(f"v_pk_fma_f32 {v(im(t,0),2)}, {v(c,2)}, {v(sl,2)}, {v(im(t,0),2)} op_sel:[0,1,0] op_sel_hi:[1,1,1]")
        for t in range(5):
            c, sl = CST + 8 * t, SL + 2 * t
            S(f"v_pk_fma_f32 {v(re(t,0),2)}, {v(c+2,2)}, {v(sl,2)}, {v(re(t,0),2)} op_sel:[0,1,0] op_sel_hi:[1,1,1] {NEG}")
            S(f"v_pk_fma_f32 {v(im(t,0),2)}, {v(c+2,2)}, {v(sl,2)}, {v(im(t,0),2)} op_sel:[0,0,0] op_sel_hi:[1,0,1]")
        for k in range(1, 4):
            for t in range(5):
                c = CST + 8 * t
                S(f"v_pk_fma_f32 {v(re(t,k),2)}, {v(c,2)}, {v(re(t,k-1),2)}, {v(re(t,k),2)} {HI}")
                S(f"v_pk_fma_f32 {v(im(t,k),2)}, {v(c,2)}, {v(im(t,k-1),2)}, {v(im(t,k),2)} {HI}")
            for t in range(5):
                c = CST + 8 * t
                S(f"v_pk_fma_f32 {v(re(t,k),2)}, {v(c+2,2)}, {v(im(t,k-1),2)}, {v(re(t,k),2)} {HI} {NEG}")
                S(f"v_pk_fma_f32 {v(im(t,k),2)}, {v(c+2,2)}, {v(re(t,k-1),2)}, {v(im(t,k),2)} {HI}")
        CV = 48
        for t in range(5):
            for ri in range(2):
                d = CV + 4 * (2 * t + ri)
                for k in range(4):
                    r = re(t, k) if ri == 0 else im(t, k)
                    n = "" if ri == 0 else "-"
                    S(f"v_cvt_pk_bf16_f32 {v(d+k)}, {n}{v(r)}, {n}{v(r+1)}")
                S(f"ds_write_b128 {v(vTW)}, {v(d,4)} offset:{1024*(2*t+ri)}")
        HFR = ACC
        for t in range(5):
            for i in range(2):
                d = HFR + 4 * (2 * t + i)
                for j in range(2):
                    S(f"ds_read_b64_tr_b16 {v(d+2*j,2)}, {v(vTB + (i ^ j))} offset:{2048*t + 256*j}")
        S(f"v_add_u32 v2, 4096, {v(vHS)}\nv_add_u32 v3, 8192, {v(vHS)}")
        for m in range(10):
            ad = [v(vHS), "v2", "v3"][m >> 2]
            S(f"buffer_store_dwordx4 {v(HFR+4*m,4)}, {ad}, {s(SWS,4)}, 0 offen offset:{1024*(m & 3)} sc1", tag="hst")
        S("@waitlgkm0\ns_barrier")
        S(f"v_mov_b32 v4, {s(sNON)}")
        S("@waittag hst")
        S(f"buffer_store_dword v4, {v(vHF)}, {s(SWS,4)}, 0 offen sc1")
        self.stamp(S, 8)
        XK, DK = 48, 68
        S(f"v_add_u32 v2, {16*1280}, {v(vXS)}")
        for i in range(2):
            for n in range(5):
                S(f"buffer_load_dwordx2 {v(XK + 2*(5*i+n), 2)}, {[v(vXS), 'v2'][i]}, {s(SX,4)}, 0 offen offset:{32*n}")
        for n in range(5):
            S(f"buffer_load_dwordx2 {v(DK + 2*n, 2)}, {v(vDS)}, {s(SP3,4)}, 0 offen offset:{32*n}")
        for k in (5, 6, 7):
            S.add(cchunk(k))
        AC2 = ACC + 40
        for n in range(5):
            S(f"""v_lshlrev_b32 v4, 16, {v(DK+2*n)}
v_and_b32 v5, 0xffff0000, {v(DK+2*n)}
v_lshlrev_b32 v6, 16, {v(DK+2*n+1)}
v_and_b32 v7, 0xffff0000, {v(DK+2*n+1)}""")
            for i in range(2):
                x = XK + 2 * (5 * i + n)
                c = AC2 + (n * 2 + i) * 4
                S(f"""v_lshlrev_b32 v8, 16, {v(x)}
v_and_b32 v9, 0xffff0000, {v(x)}
v_lshlrev_b32 v10, 16, {v(x+1)}
v_and_b32 v11, 0xffff0000, {v(x+1)}
v_pk_mul_f32 v[8:9], v[8:9], v[4:5]
v_pk_mul_f32 v[10:11], v[10:11], v[6:7]
v_cvt_pk_bf16_f32 v12, v8, v9
v_cvt_pk_bf16_f32 v13, v10, v11
v_lshlrev_b32 {v(c)}, 16, v12
v_and_b32 {v(c+1)}, 0xffff0000, v12
v_lshlrev_b32 {v(c+2)}, 16, v13
v_and_b32 {v(c+3)}, 0xffff0000, v13""")
        S(f"v_add_u32 v14, {s(sAW)}, {v(vL16)}\nv_add_u32 v15, 4096, v14")
        for k in range(3):
            for j in range(4):
                S(f"v_add_u32 {v(96 + 4*k + j)}, {k * 0x10000}, {v(RC + j)}")
        self.poll_flags(S, vHP, 1, 4)
        self.stamp(S, 9)
        DEPTH = self.opt.get("hdepth", 6)
        def hload(u):
            c, tl = u >> 2, u & 3
            L = []
            pre = ""
            if tl == 0:
                pre = f"""s_add_u32 {s(sT0)}, {s(sAW+2)}, {c}
s_sub_u32 {s(sAW+3)}, {s(sT0)}, 10
s_cselect_b32 {s(sT0)}, {s(sT0)}, {s(sAW+3)}
s_lshl_b32 {s(sT0)}, {s(sT0)}, 13
"""
            for i in range(2):
                off = tl * 2048 + i * 1024
                d = ((u % 32) * 2 + i) * 4
                L.append(mk(pre + f"buffer_load_dwordx4 {a(d,4)}, v{14 + (off >> 12)}, {s(SWS,4)}, {s(sT0)} offen offset:{off & 4095} sc1"))
                pre = ""
            return L
        CF = 108
        def creads(u):
            c, tl = u >> 2, u & 3
            L = []
            for n in range(5):
                off = CH[c] + 2048 * n
                L.append(I(f"ds_read_b128 {v(CF + 20*(u & 1) + 4*n, 4)}, {v(96 + 4*(off >> 16) + tl)} offset:{off & 0xffff}"))
            return L
        for u in range(DEPTH):
            S.add(hload(u))
        S("@waittag c0 c1 c2 c3 c4 c5 c6 c7\ns_barrier")
        S.add(creads(0))
        for u in range(40):
            pre = []
            if u == 7:
                S("@waitlgkm0\ns_barrier")
            if u == 31:
                S("@waittag c8 c9\ns_barrier")
            mf = []
            for n in range(5):
                for i in range(2):
                    c = AC2 + (n * 2 + i) * 4
                    mf.append(I(f"{MF} {v(c,4)}, {v(CF + 20*(u & 1) + 4*n, 4)}, {a(((u % 32)*2+i)*4, 4)}, {v(c,4)}"))
            ld = hload(u + DEPTH) if u + DEPTH < 40 else []
            if 8 <= u < 18:
                ld = ld + [(cchunk(8) + cchunk(9))[u - 8]]
            rd = creads(u + 1) if u < 39 else []
            S.add(interleave(mf, (rd, 0, 4), (ld, 2, 9)))
        self.stamp(S, 10)
        self.store_out(S, AC2, "B")
        self.stamp(S, 11)
        self.dump_stamps(S)
        S("s_endpgm")
        return S

    def phi_pairs(self, S, pairs, EPS, CPH):
        G = 4
        for b in range(0, len(pairs), G):
            blk = pairs[b:b + G]
            for x, (c, d) in enumerate(blk):
                S(f"v_pk_fma_f32 {v(2+2*x,2)}, {v(c,2)}, {v(CPH,2)}, {v(CPH,2)} op_sel:[0,0,1] op_sel_hi:[1,0,1]")
            for x, (c, d) in enumerate(blk):
                S(f"v_exp_f32 {v(2+2*x)}, {v(2+2*x)} clamp\nv_max_f32 {v(c)}, {v(EPS)}, {v(c)}")
                S(f"v_exp_f32 {v(3+2*x)}, {v(3+2*x)} clamp\nv_max_f32 {v(c+1)}, {v(EPS)}, {v(c+1)}")
            for x, (c, d) in enumerate(blk):
                S(f"v_pk_add_f32 {v(c,2)}, {v(c,2)}, {v(2+2*x,2)}")
            for x, (c, d) in enumerate(blk):
                S(f"v_cvt_pk_bf16_f32 {v(d)}, {v(c)}, {v(c+1)}")

    def side_A(self):
        S = Stream()
        EPSQ, CPH, EPSD = 48, 52, 56
        vXW, PKS, PKO, PKX, V0, V1O, V1X = 60, 61, 62, 63, 64, 65, 66
        PS, PO, P2, vPF, vPP, vRL, vKF, vPQ, vAF, vAP, vKS, vPL, vKR = 67, 68, 69, 70, 71, 72, 73, 74, 75, 76, 78, 79, 80
        UQ = 82
        sWO = SP0
        sC4K = SP0 + 5
        self.x_addrs(S, "A")
        S(f"""s_mul_i32 {s(sT0)}, {s(sW)}, {16*3840}
s_mul_i32 {s(sT1)}, {s(sCB)}, 160
s_add_u32 {s(sT0)}, {s(sT0)}, {s(sT1)}""")
        for i in range(5):
            r, h, c = UQ + 3 * i, UQ + 3 * i + 1, UQ + 3 * i + 2
            S(f"""v_add_u32 v7, {64*i}, v1
v_mul_u32_u24 {v(r)}, 3277, v7
v_lshrrev_b32 {v(r)}, 16, {v(r)}
v_mul_u32_u24 v8, 20, {v(r)}
v_sub_u32 v7, v7, v8
v_lshrrev_b32 v8, 1, v7
v_lshrrev_b32 v9, 3, {v(r)}
v_xor_b32 v8, v8, v9
v_add_u32 {v(h)}, 3, v8
v_lshrrev_b32 {v(h)}, 3, {v(h)}
v_mul_u32_u24 v9, 5, {v(h)}
v_sub_u32 v8, v8, v9
v_and_b32 v7, 1, v7
v_lshlrev_b32 v7, 4, v7
v_lshl_add_u32 {v(c)}, v8, 5, v7
v_mul_u32_u24 v7, 3840, {v(r)}
v_mul_u32_u24 v8, 1280, {v(h)}
v_add3_u32 v7, v7, v8, {v(c)}
v_add_u32 v7, {s(sT0)}, v7
v_add_u32 {v(WA+i)}, {1280 - 1024*(i & 3) & 0xffffffff:#x}, v7""")
        for c in range(5):
            S(f"s_mul_i32 {s(sAW+c)}, {s(sA128+c)}, 1920")
        S(f"s_mul_i32 {s(sHW0)}, {s(sHX0)}, 1920\ns_mul_i32 {s(sHW1)}, {s(sHX1)}, 1920")
        S(f"""v_bfe_u32 v7, v1, 2, 2
v_lshl_add_u32 v7, v3, 3, v7
v_mul_u32_u24 v7, 320, v7
v_and_b32 v8, 3, v1
v_lshl_add_u32 v7, v8, 3, v7
v_and_b32 v8, 1, v3
v_lshlrev_b32 v8, 5, v8
v_add_u32 {v(RW)}, v7, v8
v_sub_u32 {v(RW+3)}, v7, v8
v_add_u32 {v(RW+1)}, 0x10000, {v(RW)}
v_add_u32 {v(RW+4)}, 0x10000, {v(RW+3)}""")
        for k in range(4):
            S(f"v_mov_b32 {v(EPSQ+k)}, {f2u(1e-6)}")
        self.srd(S, SX, 4, 2048 * 1280)
        self.srd(S, SW, 6, 640 * 3840)
        self.common_srds(S)
        self.srd(S, SC, 8, 640 * 1280)

        F = []
        def f(t): F.extend(groups(t))
        F0, F1 = s(sF0), s(sF1)
        f(f"""s_mul_i32 {F0}, {s(sW)}, {16*3840}
s_mul_i32 {F1}, {s(sCB)}, 160
s_add_u32 {F0}, {F0}, {F1}""")
        for i in range(5):
            r, h, c = UQ + 3 * i, UQ + 3 * i + 1, UQ + 3 * i + 2
            f(f"""v_xor_b32 v7, {s(sETA)}, {v(h)}
v_mul_u32_u24 v7, 320, v7
v_add_u32 v7, v7, {v(r)}
v_mul_u32_u24 v7, 3840, v7
v_add3_u32 v7, v7, {v(c)}, {F0}
v_subrev_u32 {v(WQ+i)}, {1024*(i & 3)}, v7""")
        f(f"s_lshl_b32 {F0}, {s(sW)}, 1")
        for i in range(5):
            r, h, c = UQ + 3 * i, UQ + 3 * i + 1, UQ + 3 * i + 2
            f(f"""v_lshrrev_b32 v7, 3, {v(r)}
v_add_u32 v7, {F0}, v7
v_and_b32 v7, 3, v7
v_mul_u32_u24 v7, 5, v7
v_and_b32 v8, 7, {v(r)}
v_mul_u32_u24 v8, 20, v8
v_mul_u32_u24 v9, 320, {v(h)}
v_add3_u32 v7, v7, v8, v9
v_mul_u32_u24 v7, 1280, v7
v_add3_u32 v7, v7, {v(c)}, {F1}
v_subrev_u32 {v(WO+i)}, {1024*(i & 3)}, v7""")
        T = lambda x: (160 * (x // 5) + x % 5) * 1280
        for c in range(5):
            f(f"""s_cmp_ge_u32 {s(sW)}, 2
+s_cselect_b32 {s(sWO+c)}, {s(sC4K)}, {s(sC4K+1)}""".replace(s(sC4K) + ",", "@1,").replace(s(sC4K + 1), "@2")
              .replace("s_cmp_ge_u32", f"s_mov_b32 {s(sWO+c)}, {T(2*c)}\n+s_cmp_ge_u32").replace("@1", str(T(2*c+1))).replace("@2", s(sWO + c)))
        f(f"""s_movk_i32 {s(sC4K)}, 0x1000
s_movk_i32 {s(sC4K+1)}, 0x2000
v_mov_b32 {v(CPH)}, {f2u(LOG2E)}
v_mov_b32 {v(CPH+1)}, {f2u(-1e-6*LOG2E)}
v_mov_b32 {v(EPSD)}, 0
v_mov_b32 {v(EPSD+1)}, {f2u(1e-6)}
v_mov_b32 {v(EPSD+2)}, 0
v_mov_b32 {v(EPSD+3)}, {f2u(1e-6)}""")
        f(f"""s_mul_i32 {F0}, {s(sW)}, {XS}
s_add_u32 {F0}, {F0}, {XCH}
v_add_u32 {v(vXW)}, {F0}, {v(vL16)}
v_and_b32 v7, 1, v1
v_mul_u32_u24 v8, 0x3f80, v7
v_lshl_or_b32 v8, v8, 16, v8
v_mov_b32 v9, v8
v_mov_b32 v10, v8
v_mov_b32 v11, v8
v_lshl_add_u32 v7, v7, 4, {F0}
ds_write_b128 v7, v[8:11] offset:10240""")
        def pk(dst, hh, aa):
            f(f"""{hh}
{aa}
v_mov_b32 v12, {XCH + 10240}
v_mov_b32 v7, {F1}
v_lshl_add_u32 v7, v7, 4, v4
v_mov_b32 v8, {F0}
v_lshlrev_b32 v9, 2, v8
v_sub_u32 v7, v7, v9
v_add_u32 v8, {F1}, v8
v_lshl_add_u32 v8, v8, 10, {v(vL16)}
v_add_u32 v8, {XCH}, v8
v_cmp_gt_u32 vcc, 20, v7
+v_cndmask_b32 {v(dst)}, v12, v8, vcc""")
        pk(PKS, f"s_mov_b32 {F0}, {s(sW)}", f"s_and_b32 {F1}, {s(sW)}, 1")
        pk(PKO, f"s_mov_b32 {F0}, {s(sW)}", f"s_andn2_b32 {F1}, 1, {s(sW)}")
        pk(PKX, f"s_xor_b32 {F0}, {s(sW)}, 1", f"s_and_b32 {F1}, {s(sW)}, 1")
        def coladdr(dst, col):
            return f"""v_lshrrev_b32 v9, 4, {col}
v_and_b32 v10, 15, {col}
v_lshlrev_b32 v10, 4, v10
v_lshl_add_u32 v10, v3, 8, v10
v_lshl_add_u32 v10, v9, 10, v10
v_add_u32 {dst}, {XCH + 5*1024}, v10"""
        f(f"""v_lshrrev_b32 v13, 2, v4
v_mul_u32_u24 v13, 5, v13
v_and_b32 v14, 3, v4
s_mul_i32 {F0}, {s(sW)}, 20
v_add3_u32 v7, v13, v14, {F0}
""" + coladdr(v(V0), "v7"))
        for dst, hh in ((V1O, f"s_mov_b32 {F0}, {s(sW)}"), (V1X, f"s_xor_b32 {F0}, {s(sW)}, 1")):
            f(f"""{hh}
s_and_b32 {F1}, {F0}, 1
s_lshl_b32 {F1}, {F1}, 1
s_mul_i32 {F0}, {F0}, 20
v_add3_u32 v7, v13, 4, {F0}
""" + coladdr("v8", "v7") + f"""
v_subrev_u32 v7, {F1}, v14
v_mov_b32 v9, {XCH + 10240}
v_mov_b32 v10, {XCH + 10256}
v_cmp_eq_u32 vcc, 1, v7
+v_cndmask_b32 v9, v9, v10, vcc
v_cmp_eq_u32 vcc, 0, v7
+v_cndmask_b32 {v(dst)}, v9, v8, vcc""")
        f(f"""s_lshl_b32 {F0}, {s(sCB)}, 2
s_add_u32 {F0}, {F0}, {s(sW)}
s_lshl_b32 {F1}, {F0}, 11
s_add_u32 {F1}, {F1}, {WS_PF}
v_lshl_add_u32 {v(vPP)}, v4, 7, {F1}
v_mov_b32 v7, {s(sRB)}
v_lshl_add_u32 v7, v7, 7, {F1}
v_mov_b32 v12, {OOB}
v_cmp_eq_u32 vcc, 0, v1
+v_cndmask_b32 {v(vPF)}, v12, v7, vcc
s_mul_i32 {F0}, {F0}, 49152
s_add_u32 {F0}, {F0}, {WS_P}
s_mul_i32 {F1}, {s(sRB)}, 3072
s_add_u32 {F1}, {F1}, {F0}
v_lshl_add_u32 v7, v1, 3, {F1}
v_cmp_gt_u32 vcc, 24, v1
+v_cndmask_b32 {v(vRL)}, v12, v7, vcc
s_mul_i32 {F1}, {s(sRB)}, 192
s_add_u32 {F0}, {F0}, {F1}""")
        for dst, q in ((PS, f"s_and_b32 {F1}, {s(sW)}, 1"), (PO, f"s_andn2_b32 {F1}, 1, {s(sW)}"), (P2, f"s_mov_b32 {F1}, 2")):
            f(f"""{q}
s_lshl_b32 {F1}, {F1}, 6
v_add_u32 v7, {F1}, v1
v_mul_u32_u24 v8, 5462, v7
v_lshrrev_b32 v8, 16, v8
v_mul_u32_u24 v9, 12, v8
v_sub_u32 v7, v7, v9
v_mul_u32_u24 v8, 3072, v8
v_lshl_add_u32 v7, v7, 4, v8
v_add_u32 {v(dst)}, {F0}, v7""")
        f(f"""s_mul_i32 {F0}, {s(sRB)}, 12
v_lshrrev_b32 v7, 1, v1
v_add_u32 v7, {F0}, v7
v_lshrrev_b32 v8, 6, v7
v_and_b32 v7, 63, v7
v_lshlrev_b32 v7, 4, v7
v_and_b32 v9, 1, v1
v_lshl_add_u32 v7, v9, 2, v7
s_lshr_b32 {F0}, {s(sW)}, 1
s_add_u32 {F0}, {F0}, 4
s_lshl_b32 {F0}, {F0}, 10
s_and_b32 {F1}, {s(sW)}, 1
s_lshl_b32 {F1}, {F1}, 3
s_add_u32 {F0}, {F0}, {F1}
s_lshl_b32 {F1}, {s(sW)}, 10
v_lshl_add_u32 v9, v8, 3, {F1}
v_mov_b32 v10, {F0}
v_cmp_gt_u32 vcc, 2, v8
+v_cndmask_b32 v9, v10, v9, vcc
s_mul_i32 {F0}, {s(sCB)}, 6144
s_add_u32 {F0}, {F0}, {WS_KV}
v_add3_u32 v7, v7, v9, {F0}
v_cmp_gt_u32 vcc, 24, v1
+v_cndmask_b32 {v(vKF)}, v12, v7, vcc""")
        f(f"""s_lshl_b32 {F0}, {s(sRB)}, 2
s_add_u32 {F0}, {F0}, {s(sW)}
s_mul_i32 {F0}, {F0}, 40960
s_add_u32 {F0}, {F0}, {WS_PQ}
v_add_u32 {v(vPL)}, {F0}, {v(vL16)}
s_mul_i32 {F1}, {s(sCB)}, 5120
v_add_u32 {v(vPQ)}, {F1}, {v(vPL)}
s_lshl_b32 {F0}, {s(sRB)}, 3
s_add_u32 {F0}, {F0}, {s(sCB)}
s_lshl_b32 {F0}, {F0}, 7
s_add_u32 {F0}, {F0}, {WS_AF}
v_mov_b32 v7, {F0}
v_cmp_eq_u32 vcc, 0, v0
+v_cndmask_b32 {v(vAF)}, v12, v7, vcc
v_lshlrev_b32 v7, 7, v1
v_add_u32 {v(vAP)}, {WS_AF}, v7
v_add_u32 {v(vAP+1)}, {WS_AF + 8192}, v7
s_mul_i32 {F0}, {s(sW)}, 12288
s_add_u32 {F0}, {F0}, {WS_KV}
v_add_u32 {v(vKS)}, {F0}, {v(vL16)}
v_add_u32 {v(vKR)}, {KVL}, {v(vL16)}""")

        qch = [self.dma_w(CH[c], WQ, SW, sAW + c, f"q{c}") for c in range(5)]
        self.mainloop(S, "A", [], F, qch, EPSQ)
        self.stamp(S, 4)
        FRG = 96
        self.phi_pairs(S, [(ACC + (n*2 + (k >> 1))*4 + 2*(k & 1), FRG + 4*n + k) for n in range(5) for k in range(4)], EPSQ, CPH)
        for n in range(5):
            S(f"ds_write_b128 {v(vXW)}, {v(FRG+4*n,4)} offset:{1024*n}")
        for n in range(5, 10):
            for k in range(4):
                c = ACC + (n*2 + (k >> 1))*4 + 2*(k & 1)
                S(f"v_cvt_pk_bf16_f32 {v(FRG+4*n+k)}, {v(c)}, {v(c+1)}")
            S(f"ds_write_b128 {v(vXW)}, {v(FRG+4*n,4)} offset:{1024*n}")
        self.nonce_get(S)
        S("@waittag q0 q1 q2 q3 q4\n@waitlgkm0\ns_barrier")
        DS, DO, D2 = 144, 148, 152
        G = lambda ks, x: a(AW + 24 * (ks & 1) + 4 * x, 4)
        def grd(ks):
            return [I(f"ds_read_b128 {G(ks,x)}, {v(r)} offset:{ks*XS}") for x, r in enumerate((PKS, V0, PKO, V1O, PKX, V1X))]
        S.add(grd(0))
        S.add(grd(1))
        for ks in range(4):
            z = lambda d: "0" if ks == 0 else v(d, 4)
            S(f"""{MF} {v(DS,4)}, {G(ks,0)}, {G(ks,1)}, {z(DS)}
{MF} {v(DO,4)}, {G(ks,2)}, {G(ks,1)}, {z(DO)}
{MF} {v(D2,4)}, {G(ks,0)}, {G(ks,3)}, {z(D2)}
{MF} {v(D2,4)}, {G(ks,4)}, {G(ks,5)}, {v(D2,4)}""")
            if ks < 2:
                S.add(grd(ks + 2))
        QA = ACC
        def qreads(u):
            c, hf, kk = u >> 2, (u >> 1) & 1, u & 1
            L = []
            for n in range(5):
                L += self.tr_frag(208 + 20 * (u & 1) + 4 * n, CH[c] + kk * 10240, 5 * hf + n)
            return L
        S.add(qreads(0))
        for d, ad in ((DS, PS), (DO, PO), (D2, P2)):
            S(f"buffer_store_dwordx4 {v(d,4)}, {v(ad)}, {s(SWS,4)}, 0 offen sc1", tag="pst")
        S(f"v_mov_b32 v15, {s(sNON)}")
        self.stamp(S, 5)
        RB = 96
        woch = [self.dma_w(CH[c], WO, SC, sWO + c, f"wo{c}") for c in range(5)]
        for u in range(20):
            c, hf, kk = u >> 2, (u >> 1) & 1, u & 1
            st = c + 5 * hf
            ex = []
            if (u & 3) == 3:
                S("@waitlgkm0\ns_barrier")
                ex = woch[c][:3]
            elif (u & 3) == 0 and u:
                ex = woch[c - 1][3:]
            if u == 3:
                S(f"@waittag pst\nbuffer_store_dword v15, {v(vPF)}, {s(SWS,4)}, 0 offen sc1")
            if u == 9:
                ex = [mk(f"buffer_load_dword v14, {v(vPP)}, {s(SWS,4)}, 0 offen sc1")]
            if u == 13:
                lp, done = self.lab("ppoll"), self.lab("pdone")
                S(f"v_cmp_ne_u32 vcc, v15, v14")
                S(f"""s_cbranch_vccz {done}
s_mov_b32 {s(sCNT)}, 0x40000
{lp}:
buffer_load_dword v14, {v(vPP)}, {s(SWS,4)}, 0 offen sc1
s_waitcnt vmcnt(0)
v_cmp_ne_u32 vcc, v15, v14
s_cbranch_vccz {done}
s_sub_u32 {s(sCNT)}, {s(sCNT)}, 1
s_cbranch_scc0 {lp}
{done}:""", tag="opaque")
            if u in (13, 14):
                ex = [mk(f"buffer_load_dwordx2 {v(RB+2*r,2)}, {v(vRL)}, {s(SWS,4)}, 0 offen offset:{192*r} sc1") for r in range(8*(u-13), 8*(u-13)+8)]
            mf = []
            for n in range(5):
                for i in range(2):
                    d = QA + (n * 2 + i) * 4
                    cin = v(EPSQ, 4) if u == 0 else v(d, 4)
                    mf.append(I(f"{MF} {v(d,4)}, {a(208 + 20*(u & 1) + 4*n, 4)}, {a(AX + ((2*st+kk)*2+i)*4, 4)}, {cin}"))
            S.add(interleave(mf, (qreads(u + 1) if u < 19 else [], 0, 7), (ex, 1, 9)))
        S.add(woch[4][3:])
        self.stamp(S, 6)
        for r in range(1, 16):
            S(f"v_pk_add_f32 {v(RB,2)}, {v(RB,2)}, {v(RB+2*r,2)}")
        S(f"v_cvt_pk_bf16_f32 {v(RB)}, {v(RB)}, {v(RB+1)}")
        S(f"buffer_store_dword {v(RB)}, {v(vKF)}, {s(SWS,4)}, 0 offen sc1")
        PQR = 136
        self.phi_pairs(S, [(QA + (n*2 + i)*4 + 2*k, PQR + 10*i + 2*n + k) for i in range(2) for n in range(5) for k in range(2)], EPSQ, CPH)
        for m in range(5):
            S(f"buffer_store_dwordx4 {v(PQR+4*m,4)}, {v(vPQ)}, {s(SWS,4)}, {s(sC4K) if m == 4 else 0} offen offset:{1024*(m & 3)} sc1")
        S("@waitvm0\ns_barrier")
        S(f"buffer_store_dword v15, {v(vAF)}, {s(SWS,4)}, 0 offen sc1")
        self.stamp(S, 7)
        self.poll_flags(S, vAP, 2, 4)
        self.stamp(S, 8)
        for x in range(12):
            if (x & 3) == 0:
                S(f"s_mul_i32 {s(sT0)}, {s(sW)}, 12288\ns_add_u32 m0, {s(sT0)}, {KVL + 4096*(x >> 2)}")
            so = [0, s(sC4K), s(sC4K + 1)][x >> 2]
            S(f"buffer_load_dwordx4 {v(vKS)}, {s(SWS,4)}, {so} offen offset:{1024*(x & 3)} sc1 lds", tag="kv")
        def pqload(x):
            pre = f"s_mov_b32 {s(sT1)}, {4096*(x >> 2)}\n" if (x & 3) == 0 else ""
            return mk(pre + f"buffer_load_dwordx4 {a(4*x,4)}, {v(vPL)}, {s(SWS,4)}, {s(sT1)} offen offset:{1024*(x & 3)} sc1")
        for x in range(10):
            S.add(pqload(x))
        S("@waittag kv\ns_barrier")
        self.stamp(S, 9)
        AC2, OF, DT = 216, 96, 176
        KF, WF = 160, 184
        def kvreads(H, m):
            cb = 2 * H + (m >> 1)
            fr = [cb * 6 + 2 * (m & 1), cb * 6 + 2 * (m & 1) + 1, cb * 6 + 4 + (m & 1)]
            return [I(f"ds_read_b128 {a(KF + 12*(m & 1) + 4*x, 4)}, {v(vKR)} offset:{1024*k}") for x, k in enumerate(fr)]
        def chain_mf(H, m, i):
            cb = 2 * H + (m >> 1)
            w0 = 20 * cb + 10 * i + 4 * (m & 1)
            d = DT + 16 * i
            k = KF + 12 * (m & 1)
            return mk(f"""{MF} {v(d,4)}, {a(k,4)}, {a(w0,4)}, 0
{MF} {v(d+4,4)}, {a(k+8,4)}, {a(w0,4)}, {v(EPSD,4)}
{MF} {v(d+8,4)}, {a(k+4,4)}, {a(w0+2,4)}, 0
{MF} {v(d+12,4)}, {a(k+8,4)}, {a(w0+2,4)}, {v(EPSD,4)}""")
        def chain_va(H, m, i):
            d = DT + 16 * i
            o = OF + 40 * (H & 1) + 20 * i
            t = f"v_rcp_f32 {v(d+5)}, {v(d+5)}\nv_rcp_f32 {v(d+15)}, {v(d+15)}\n"
            for e in range(5):
                ra, rb = (d + e, d + 8 + e) if e < 4 else (d + 4, d + 14)
                t += f"v_mul_f32 {v(ra)}, {v(ra)}, {v(d+5)}\nv_mul_f32 {v(rb)}, {v(rb)}, {v(d+15)}\n"
            for e in range(5):
                ra, rb = (d + e, d + 8 + e) if e < 4 else (d + 4, d + 14)
                t += f"v_cvt_pk_bf16_f32 {v(o + 4*e + m)}, {v(ra)}, {v(rb)}\n"
            return mk(t)
        def woreads(f):
            L = []
            for n in range(5):
                L += self.tr_frag(WF + 20 * (f & 1) + 4 * n, CH[(f % 10) >> 1] + (f & 1) * 10240, 5 * (f // 10) + n)
            return L
        def main_mf(f):
            H, e = f // 5, f % 5
            L = []
            for n in range(5):
                for i in range(2):
                    c = AC2 + (n * 2 + i) * 4
                    L.append(I(f"{MF} {v(c,4)}, {a(WF + 20*(f & 1) + 4*n, 4)}, {v(OF + 40*(H & 1) + 20*i + 4*e, 4)}, {'0' if f == 0 else v(c,4)}"))
            return L
        S.add(kvreads(0, 0))
        pend = []
        for H in range(5):
            mains = [x for e in range(5) for x in main_mf(5 * (H - 1) + e)] if H else []
            mrd = {}
            if H:
                for e in range(5):
                    f_ = 5 * (H - 1) + e
                    if f_ + 1 < 20:
                        for x, r in enumerate(woreads(f_ + 1)):
                            mrd.setdefault(10 * e + (x * 8) // 10, []).append(r)
            if H == 4:
                S.add(pend)
                pend = []
                for x, m_ in enumerate(mains):
                    S.add([m_] + mrd.get(x, []))
                break
            pq_next = [pqload(x) for x in range(10 * (H + 1), 10 * (H + 2))] if H < 3 else []
            mi = 0
            for un in range(8):
                m, i = un >> 1, un & 1
                bb = chain_mf(H, m, i)
                hi = (len(mains) * (un + 1)) // 8
                extra = []
                seq = [[x] for x in bb]
                while mi < hi:
                    seq.append([mains[mi]] + mrd.get(mi, []))
                    mi += 1
                fl = list(pend)
                side = []
                if i == 0:
                    nx = (H, m + 1) if m < 3 else (H + 1, 0)
                    if nx[0] < 4:
                        side += kvreads(*nx)
                if H == 0 and un == 6:
                    side += woreads(0)
                side += pq_next[(un * 10) // 8:((un + 1) * 10) // 8] if pq_next else []
                if un == 0 and H:
                    S.add(interleave(seq[:4], (fl, 0, 3)))
                    S.add(interleave(seq[4:], (side, 0, 99)))
                else:
                    S.add(interleave(seq, (fl, 0, 99), (side, 1, 99)))
                pend = chain_va(H, m, i)
        self.stamp(S, 10)
        self.store_out(S, AC2, "A")
        self.stamp(S, 11)
        self.dump_stamps(S)
        S("s_endpgm")
        return S


    def build(self):
        P = Stream()
        self.prologue(P)
        A = self.side_A()
        B = self.side_B()
        out = []
        tot = 0
        np_ = len(P.items)
        SA = Stream(); SA.items = P.items + A.items
        ia, na = finalize(SA)
        SB = Stream(); SB.items = P.items + B.items
        ib, nb = finalize(SB)
        k = next(i for i, x in enumerate(ib) if x.text == "L_sideB:")
        ka = next(i for i, x in enumerate(ia) if x.text.startswith("s_cbranch_scc1 L_sideB"))
        assert [x.text for x in ia[:ka + 1]] == [x.text for x in ib[:k]], "prologue mismatch"
        body = ia + ib[k:]
        hdr = open("concat_heads__linear_attn_block__ssm_conv_s5__prompt.s.ref").read().split("\n")
        hdr = [l for l in hdr if l.startswith(";") and "@launch" not in l]
        txt = "\n".join(hdr) + "\n; @launch grid=(256,1,1) block=(256,1,1) lds=163840\n"
        txt += f""".amdgcn_target "amdgcn-amd-amdhsa--gfx950"
.text
.globl {KN}
.p2align 8
.type {KN},@function
{KN}:
"""
        for x in body:
            txt += (x.text if x.kind == "label" else "    " + x.text) + "\n"
        txt += f"""L_end:
    s_endpgm
.section .rodata,"a"
.p2align 6
.amdhsa_kernel {KN}
  .amdhsa_next_free_vgpr 512
  .amdhsa_next_free_sgpr 102
  .amdhsa_accum_offset 256
  .amdhsa_group_segment_fixed_size 0
  .amdhsa_kernarg_size 120
  .amdhsa_user_sgpr_count 2
  .amdhsa_user_sgpr_kernarg_segment_ptr 1
  .amdhsa_system_sgpr_workgroup_id_x 1
.end_amdhsa_kernel
"""
        print(f"instructions: A {len(ia)} (nops {na}), B {len(ib)} (nops {nb})", file=sys.stderr)
        return txt


if __name__ == "__main__":
    import argparse
    ap = argparse.ArgumentParser()
    ap.add_argument("out")
    ap.add_argument("--ts", action="store_true")
    ap.add_argument("-o", action="append", default=[])
    ar = ap.parse_args()
    opt = {}
    for o in ar.o:
        k_, _, v_ = o.partition("=")
        opt[k_] = int(v_) if v_ else 1
    open(ar.out, "w").write(Gen(ar.ts, opt).build())
```

```python
import sys, struct
from fw import *

KN = "concat_heads__linear_attn_block__ssm_conv_s5__prompt_kernel"
K = 1024

WS_E = 0x010000
WS_HF = 0x040000
WS_PF = 0x060000
WS_AF = 0x080000
WS_KV = 0x0A0000
WS_P = 0x100000
WS_PQ = 0x400000
WS_H = 0x800000
WS_TS = 0x1000000
OOB = 0x80000000

SLOT = 36 * K
CH = [40 * K, 60 * K, 80 * K, 0, 20 * K, 100 * K, 120 * K, 140 * K, 40 * K, 60 * K]
SCAN = 108 * K
TBUF = 120 * K
XCH = 112 * K
XS = 10496
KVL = 112 * K

SX, SW, SC, SWS, SO, SD = 36, 40, 44, 48, 52, 56
SP0, SP1, SP2, SP3 = 60, 64, 68, 72
sW, sRB, sCB, sNON, sT0, sT1, sCNT = 76, 77, 78, 79, 80, 81, 82
sA128 = 83
sAW = 88
sHX0, sHX1, sHW0, sHW1 = 93, 94, 95, 96
sMX, sMW = 97, 98
sETA, sXCD = 99, 100
sT2 = 101
sF0, sF1 = 3, 35
SE = SP0

XA, WA, WQ, WO = 16, 20, 25, 30
RX, RW = 35, 39
vL16, vNA, vNV = 45, 46, 47
ACC = 176
AX, AW = 0, 160

LOG2E = 1.4426950408889634
def f2u(x):
    return "0x%08x" % struct.unpack("<I", struct.pack("<f", x))[0]

def v(b, n=1): return f"v{b}" if n == 1 else f"v[{b}:{b+n-1}]"
def a(b, n=1): return f"a{b}" if n == 1 else f"a[{b}:{b+n-1}]"
def s(b, n=1): return f"s{b}" if n == 1 else f"s[{b}:{b+n-1}]"
MF = "v_mfma_f32_16x16x32_bf16"


class Gen:
    def __init__(self, ts=False, opt=None):
        self.ts = ts
        self.opt = opt or {}
        self.nlab = 0

    def lab(self, b):
        self.nlab += 1
        return f"L_{b}_{self.nlab}"

    def stamp(self, S, k):
        if "pi" in self.opt:
            if k == self.opt["pi"]: S("s_memrealtime s[4:5]")
            if k == self.opt["pj"]: S("s_memrealtime s[6:7]")
        if self.ts:
            assert k < 13
            S(f"s_memtime s[{4+2*k}:{5+2*k}]")

    def dump_stamps(self, S):
        if "pi" in self.opt:
            l1, l2 = self.lab("pr"), self.lab("pr")
            t0 = "s32" if self.opt["pi"] < 0 else "s4"
            S(f"""s_memrealtime s[8:9]
s_waitcnt lgkmcnt(0)
s_cmp_lg_u32 s2, {self.opt["pwg"]}
s_cbranch_scc1 {l2}
s_sub_u32 s10, s6, {t0}
s_mul_i32 s10, s10, {self.opt["pscale"]}
s_min_u32 s10, s10, 20000
{l1}:
s_memrealtime s[12:13]
s_waitcnt lgkmcnt(0)
s_sub_u32 s11, s12, s8
s_cmp_lt_u32 s11, s10
s_cbranch_scc1 {l1}
{l2}:""")
        if not self.ts:
            return
        S("s_memrealtime s[30:31]")
        S("s_waitcnt lgkmcnt(0)")
        S("v_mov_b32 v1, 0")
        for k in range(13):
            S(f"v_writelane_b32 v1, s{4+2*k}, {k}")
        S("v_writelane_b32 v1, s32, 14")
        S("v_writelane_b32 v1, s30, 15")
        S(f"s_lshl_b32 s3, s2, 10\ns_add_u32 s3, s3, {WS_TS}")
        S(f"v_lshl_add_u32 v2, v0, 2, s3")
        S(f"buffer_store_dword v1, v2, {s(SWS,4)}, 0 offen")

    def prologue(self, S):
        S("s_cmp_ge_u32 s2, 256\ns_cbranch_scc1 L_end")
        S("s_load_dwordx16 s[4:19], s[0:1], 0")
        S("s_load_dwordx8 s[20:27], s[0:1], 64")
        S("s_load_dwordx4 s[28:31], s[0:1], 96")
        S("s_load_dwordx2 s[32:33], s[0:1], 112")
        if self.ts or "pi" in self.opt:
            S("s_memrealtime s[34:35]")
        S(f"""v_lshrrev_b32 v2, 6, v0
v_and_b32 v1, 63, v0
v_readfirstlane_b32 {s(sW)}, v2
s_and_b32 {s(sXCD)}, s2, 7
s_lshr_b32 s3, s2, 3
s_lshr_b32 {s(sCB)}, s3, 2
s_and_b32 s3, s3, 3
s_and_b32 {s(sT0)}, {s(sXCD)}, 3
s_lshl_b32 {s(sRB)}, {s(sT0)}, 2
s_add_u32 {s(sRB)}, {s(sRB)}, s3
s_mul_i32 s3, s3, 20
s_mul_i32 {s(sT0)}, {s(sT0)}, 5
s_add_u32 s3, s3, {s(sT0)}
s_mul_i32 {s(sT0)}, {s(sCB)}, 10
s_add_u32 s3, s3, {s(sT0)}
s_lshr_b32 s3, s3, 3""")
        if self.opt.get("norot"):
            S("s_mov_b32 s3, 0")
        S(f"""s_sub_u32 {s(sT0)}, s3, 10
s_cselect_b32 s3, s3, {s(sT0)}
s_sub_u32 {s(sT0)}, s3, 5
s_cselect_b32 s3, s3, {s(sT0)}
s_cselect_b32 {s(sETA)}, 0, 1""")
        for c in range(5):
            S(f"""s_add_u32 {s(sT0)}, s3, {c}
s_sub_u32 {s(sT1)}, {s(sT0)}, 5
s_cselect_b32 {s(sT0)}, {s(sT0)}, {s(sT1)}
s_lshl_b32 {s(sA128+c)}, {s(sT0)}, 7""")
        S(f"""s_mul_i32 {s(sHX0)}, {s(sETA)}, 640
s_sub_u32 {s(sHX1)}, 640, {s(sHX0)}
s_lshl_b32 {s(sMX)}, {s(sW)}, 12
s_mul_i32 {s(sMW)}, {s(sW)}, 5120""")
        S(f"""v_lshrrev_b32 v2, 3, v1
v_lshrrev_b32 v3, 4, v1
v_and_b32 v4, 15, v1
v_and_b32 v5, 7, v1
v_xor_b32 v5, v5, v3
v_lshlrev_b32 v5, 4, v5
v_lshlrev_b32 {v(vL16)}, 4, v1
v_lshrrev_b32 v6, 1, v4
v_xor_b32 v6, v6, v3
v_lshlrev_b32 v6, 4, v6
v_lshl_add_u32 v6, v4, 7, v6
v_add_u32 {v(RX)}, {s(sMX)}, v6
v_xor_b32 {v(RX+2)}, 64, {v(RX)}
v_add_u32 {v(RX+1)}, 0x10000, {v(RX)}
v_add_u32 {v(RX+3)}, 0x10000, {v(RX+2)}""")
        S(f"""s_lshl_b32 s3, s2, 8
v_or_b32 v7, s3, v0
v_mov_b32 v8, {OOB}
v_cmp_eq_u32 vcc, 0, v7
v_cndmask_b32_e64 {v(vNA)}, v8, 0, vcc""")
        S(f"""s_lshl_b32 {s(sT0)}, {s(sRB)}, 7
s_lshl_b32 {s(sT1)}, {s(sW)}, 5
s_add_u32 {s(sT0)}, {s(sT0)}, {s(sT1)}
s_mul_i32 {s(sT2)}, {s(sT0)}, 1280""")
        S(f"s_cmp_ge_u32 {s(sXCD)}, 4\ns_cbranch_scc1 L_sideB")

    def srd(self, S, d, p, n):
        S(f"s_mov_b32 {s(d)}, {s(p)}\ns_mov_b32 {s(d+1)}, {s(p+1)}\ns_mov_b32 {s(d+2)}, {n}\ns_mov_b32 {s(d+3)}, 0x20000")

    def common_srds(self, S):
        self.srd(S, SWS, 32, "0x10000000")
        self.srd(S, SO, 28, 2048 * 5120)
        self.srd(S, SD, 30, 256)
        if self.ts or "pi" in self.opt:
            S("s_mov_b32 s32, s34")

    def x_addrs(self, S, side):
        if side == "A":
            S("v_mul_u32_u24 v7, 1280, v2")
            crow = [8 * i for i in range(4)]
        else:
            S("v_lshrrev_b32 v7, 5, v1\nv_and_b32 v8, 3, v2\nv_lshl_add_u32 v7, v7, 3, v8\nv_mul_u32_u24 v7, 1280, v7")
            crow = [16 * (i & 1) + 4 * (i >> 1) for i in range(4)]
        S(f"v_add3_u32 v7, v7, v5, {s(sT2)}\nv_xor_b32 v8, 64, v7")
        for i in range(4):
            S(f"v_add_u32 {v(XA+i)}, {crow[i]*1280 - 1024*i}, v{7 + (i & 1)}")

    def dma_stage(self, st, side):
        slot = (st % 3) * SLOT
        tag = f"st{st}"
        hx = sHX0 if st < 5 else sHX1
        L = []
        for i in range(4):
            pre = f"s_add_u32 m0, {s(sMX)}, {slot}\ns_add_u32 {s(sT0)}, {s(sA128 + st % 5)}, {s(hx)}\n" if i == 0 else ""
            L.append(mk(pre + f"buffer_load_dwordx4 {v(XA+i)}, {s(SX,4)}, {s(sT0)} offen offset:{1024*i} lds", tag))
        so = sT0
        pre2 = ""
        if side == "A":
            so = sT1
            hw = sHW0 if st < 5 else sHW1
            pre2 = f"s_add_u32 {s(sT1)}, {s(sAW + st % 5)}, {s(hw)}\n"
        L += self.dma_w(slot + 16 * K, WA, SW, so, tag, pre2)
        return L

    def dma_w(self, ldsbase, areg, srd, so, tag, pre2="", extra=""):
        L = []
        for i in range(5):
            pre = ""
            if i == 0:
                pre = f"s_add_u32 m0, {s(sMW)}, {ldsbase}\n" + pre2
            if i == 4:
                pre = f"s_add_u32 m0, {s(sMW)}, {ldsbase + 4096}\n"
            L.append(mk(pre + f"buffer_load_dwordx4 {v(areg+i)}, {s(srd,4)}, {s(so)} offen offset:{1024*(i&3)}{extra} lds", tag))
        return L

    def reads(self, h, side):
        st, kk = h >> 1, h & 1
        slot = (st % 3) * SLOT
        fs = h & 1
        L = []
        for i in range(2):
            off = slot + 2048 * i
            L.append(I(f"ds_read_b128 {a(AX + (h*2+i)*4, 4)}, {v(RX + 2*kk + (off >> 16))} offset:{off & 0xffff}"))
        for n in range(10):
            d = AW + 40 * fs + 4 * n
            if side == "B":
                off = slot + 16 * K + 2048 * n
                L.append(I(f"ds_read_b128 {a(d,4)}, {v(RW + 2*kk + (off >> 16))} offset:{off & 0xffff}"))
            else:
                L += self.tr_frag(d, slot + 16 * K + kk * 10240, n)
        return L

    def tr_frag(self, d, base, u, dst="a"):
        L = []
        for j in range(2):
            off = base + 1280 * j + 32 * u
            r = a(d + 2 * j, 2) if dst == "a" else v(d + 2 * j, 2)
            L.append(I(f"ds_read_b64_tr_b16 {r}, {v(RW + 3*(u & 1) + (off >> 16))} offset:{off & 0xffff}"))
        return L

    def mfmas(self, h, side, epsq=None):
        L = []
        for n in range(10):
            for i in range(2):
                c = ACC + (n * 2 + i) * 4
                cin = v(c, 4)
                if h == 0:
                    cin = v(epsq, 4) if (side == "A" and n < 5) else "0"
                L.append(I(f"{MF} {v(c,4)}, {a(AX + (h*2+i)*4, 4)}, {a(AW + 40*(h & 1) + 4*n, 4)}, {cin}"))
        return L

    def nonce_make(self):
        return mk(f"""v_add_u32 {v(vNV)}, 0x9E3779B1, {v(vNV)}
v_cmp_eq_u32 vcc, 0, {v(vNV)}
v_cndmask_b32_e64 {v(vNV)}, {v(vNV)}, 1, vcc
buffer_store_dword {v(vNV)}, {v(vNA)}, {s(SWS,4)}, 0 offen sc1
buffer_store_dword {v(vNV)}, {v(vNA)}, {s(SD,4)}, 0 offen sc1""")

    def nonce_get(self, S):
        done = self.lab("nonce")
        lp = self.lab("nlp")
        S(f"v_readfirstlane_b32 {s(sNON)}, {v(vNV)}")
        S(f"""s_cmp_lg_u32 {s(sNON)}, 0
s_cbranch_scc1 {done}
s_mov_b32 {s(sCNT)}, 0x40000
{lp}:
buffer_load_dword {v(vNV)}, off, {s(SD,4)}, 0 sc1
s_waitcnt vmcnt(0)
v_readfirstlane_b32 {s(sNON)}, {v(vNV)}
s_cmp_lg_u32 {s(sNON)}, 0
s_cbranch_scc1 {done}
s_sub_u32 {s(sCNT)}, {s(sCNT)}, 1
s_cbranch_scc0 {lp}
{done}:""", tag="opaque")

    def mainloop(self, S, side, early, fillers, tail_chunks, epsq=None):
        S(f"buffer_load_dword {v(vNV)}, {v(vNA)}, {s(SWS,4)}, 0 offen sc1")
        S.add(self.dma_stage(0, side))
        S.add(self.dma_stage(1, side))
        S.add(early)
        self.stamp(S, 0)
        S("@waittag st0\ns_barrier")
        self.stamp(S, 1)
        S.add(self.reads(0, side))
        q = {h: [] for h in range(21)}
        q[0] = self.dma_stage(2, side)
        for st in range(7):
            d = self.dma_stage(st + 3, side)
            q[2 * st + 1] += d[:5]
            q[2 * st + 2] += d[5:]
        q[15] += tail_chunks[0]
        q[17] += tail_chunks[1]
        q[18] += tail_chunks[2]
        q[19] += tail_chunks[3]
        q[1] = [self.nonce_make()] + q[1]
        q[14] = q[14] + [mk(f"buffer_load_dword {v(vNV)}, off, {s(SD,4)}, 0 sc1")]
        f0, f1 = 2, 18
        nf = len(fillers)
        for h in range(20):
            st = h >> 1
            if h & 1:
                if st + 1 < 10:
                    S(f"@waittag st{st+1}")
                S("@waitlgkm0\ns_barrier")
            else:
                S("@waitlgkm0")
            if h in (5, 11):
                self.stamp(S, 2 if h == 5 else 3)
            rd = self.reads(h + 1, side) if h < 19 else []
            fl = []
            if f0 <= h <= f1:
                lo = (h - f0) * nf // (f1 - f0 + 1)
                hi = (h - f0 + 1) * nf // (f1 - f0 + 1)
                fl = fillers[lo:hi]
            S.add(interleave(self.mfmas(h, side, epsq), (rd, 0, 11 if side == "B" else 14), (q[h], 1, 19), (fl, 2, 19)))
        S.add(tail_chunks[4])

    def poll_flags(self, S, areg, nloads, dreg, step=0):
        lp, done = self.lab("poll"), self.lab("pdone")
        S(f"s_mov_b32 {s(sCNT)}, 0x40000\n{lp}:")
        for k in range(nloads):
            S(f"buffer_load_dword {v(dreg+k)}, {v(areg+k)}, {s(SWS,4)}, 0 offen sc1")
        S("s_waitcnt vmcnt(0)")
        S(f"v_xor_b32 {v(dreg)}, {s(sNON)}, {v(dreg)}")
        for k in range(1, nloads):
            S(f"v_xor_b32 {v(dreg+k)}, {s(sNON)}, {v(dreg+k)}\nv_or_b32 {v(dreg)}, {v(dreg)}, {v(dreg+k)}")
        S(f"""v_cmp_ne_u32 vcc, 0, {v(dreg)}
s_cbranch_vccz {done}
s_sub_u32 {s(sCNT)}, {s(sCNT)}, 1
s_cbranch_scc0 {lp}
{done}:""")

    def store_out(self, S, acc, side):
        S(f"""v_and_b32 v4, 15, v0
v_bfe_u32 v3, v0, 4, 2
v_mul_u32_u24 v4, 5120, v4
v_lshl_add_u32 v4, v3, 4, v4
s_lshl_b32 {s(sT0)}, {s(sRB)}, 7
s_lshl_b32 {s(sT1)}, {s(sW)}, 5
s_add_u32 {s(sT0)}, {s(sT0)}, {s(sT1)}
s_mul_i32 {s(sT0)}, {s(sT0)}, 5120
s_mul_i32 {s(sT1)}, {s(sCB)}, 320
s_add_u32 {s(sT0)}, {s(sT0)}, {s(sT1)}
s_add_u32 {s(sT0)}, {s(sT0)}, {2560 if side == 'B' else 0}
v_add_u32 v4, {s(sT0)}, v4
v_add_u32 v5, {16*5120}, v4""")
        for i in range(2):
            for n in range(5):
                S(f"buffer_store_dwordx4 {v(acc + (n*2+i)*4, 4)}, v{4+i}, {s(SO,4)}, 0 offen offset:{64*n}")

    def side_B(self):
        S = Stream()
        S("L_sideB:")
        CST = 48
        CL8, CL128, CCF = 88, 90, 92
        vSCW, vSCC, vSCH, vEP, vTW, vTB, vHS, vHF, vHP = 25, 26, 27, 28, 29, 30, 32, 33, 34
        vSEG, vXS = 94, 95
        PRM = 96
        VE = 116
        VX = 121
        CW = 126
        vHW, vGRP, vDS = 128, 129, 131
        RC = 132
        BIG = 136
        self.x_addrs(S, "B")
        S(f"""s_and_b32 {s(sT0)}, {s(sW)}, 1
s_lshl_b32 {s(sT1)}, {s(sT0)}, 6
v_xor_b32 v7, {s(sT1)}, v5
s_mul_i32 {s(sT0)}, {s(sT0)}, 40
s_mul_i32 {s(sT1)}, {s(sCB)}, 80
s_add_u32 {s(sT0)}, {s(sT0)}, {s(sT1)}
s_mul_i32 {s(sT0)}, {s(sT0)}, 1280
v_mul_u32_u24 v8, 1280, v2
v_add3_u32 v7, v7, v8, {s(sT0)}
v_xor_b32 v8, 64, v7""")
        for i in range(5):
            S(f"v_add_u32 {v(WA+i)}, {8*i*1280 - 1024*(i & 3)}, v{7 + (i & 1)}")
        S(f"""v_subrev_u32 {v(RW)}, {s(sMX)}, {v(RX)}
v_xor_b32 {v(RW+2)}, 64, {v(RW)}
v_add_u32 {v(RW+1)}, 0x10000, {v(RW)}
v_add_u32 {v(RW+3)}, 0x10000, {v(RW+2)}""")
        S(f"""s_mul_i32 {s(sT0)}, {s(sCB)}, 160
v_lshl_add_u32 v9, v4, 1, {s(sT0)}
v_min_u32 v11, 59, v1
v_mul_u32_u24 {v(vGRP)}, 205, v11
v_lshrrev_b32 {v(vGRP)}, 12, {v(vGRP)}
v_mul_u32_u24 v8, 20, {v(vGRP)}
v_sub_u32 v11, v11, v8
s_mul_i32 {s(sT1)}, {s(sW)}, 20
v_add_u32 v11, {s(sT1)}, v11
v_lshl_add_u32 v10, v11, 1, {s(sT0)}""")
        self.srd(S, SX, 10, 2048 * 1280)
        S(f"""s_cmp_ge_u32 {s(sW)}, 2
s_cselect_b32 {s(SW)}, s18, s16
s_cselect_b32 {s(SW+1)}, s19, s17
s_cselect_b32 {s(SC)}, s22, s20
s_cselect_b32 {s(SC+1)}, s23, s21
s_mov_b32 {s(SW+2)}, {640*1280}
s_mov_b32 {s(SW+3)}, 0x20000""")
        self.common_srds(S)
        S(f"s_mov_b32 {s(SC+2)}, {640*1280}\ns_mov_b32 {s(SC+3)}, 0x20000")
        self.srd(S, SP0, 12, 1280)
        self.srd(S, SP1, 14, 1280)
        self.srd(S, SP2, 24, 1280)
        self.srd(S, SP3, 26, 1280)
        early = []
        for t in range(6):
            for k, sp in enumerate((SP0, SP1, SP2)):
                ad, off = ("v9", 32 * t) if t < 5 else ("v10", 0)
                early += mk(f"buffer_load_ushort {v(PRM + 3*t + k)}, {ad}, {s(sp,4)}, 0 offen offset:{off}")

        F = []
        def f(t): F.extend(groups(t))
        F0, F1 = s(sF0), s(sF1)
        f(f"""s_lshl_b32 {F0}, {s(sW)}, 2
v_add_u32 {v(vSEG)}, {F0}, v3
v_mul_u32_u24 v2, 640, {v(vSEG)}
v_lshl_add_u32 v2, v4, 3, v2
v_add_u32 {v(vSCW)}, {SCAN}, v2
v_lshlrev_b32 v2, 3, v11
v_add_u32 {v(vSCC)}, {SCAN}, v2
v_mul_u32_u24 v5, 640, {v(vGRP)}
v_add_u32 {v(vHW)}, {v(vSCC)}, v5
v_lshlrev_b32 v2, 3, v4
v_add_u32 {v(vSCH)}, {SCAN + 10240}, v2
v_lshlrev_b32 {v(vSEG)}, 3, {v(vSEG)}
v_cvt_f32_u32 {v(vSEG)}, {v(vSEG)}""")
        f(f"""s_mul_i32 {F0}, {s(sCB)}, 1280
s_mul_i32 {F1}, {s(sRB)}, 10240
s_add_u32 {F0}, {F0}, {F1}
v_lshl_add_u32 v2, v11, 4, {F0}
v_mov_b32 v5, {OOB}
v_cmp_gt_u32 vcc, 20, v1
+v_cndmask_b32 {v(vEP)}, v5, v2, vcc
v_mul_u32_u24 v5, 51200, {v(vGRP)}
v_add_u32 v2, v2, v5""")
        for j in range(5):
            f(f"v_add_u32 {v(VE+j)}, {((j - 15) * 10240) & 0xffffffff:#x}, v2")
        f(f"""s_mul_i32 {F0}, {s(sW)}, 10240
s_add_u32 {F0}, {F0}, {TBUF}
v_bfe_u32 v2, v4, 1, 2
v_lshrrev_b32 v5, 3, v4
v_lshlrev_b32 v5, 1, v5
v_xor_b32 v2, v2, v5
v_xor_b32 v2, v2, v3
v_lshlrev_b32 v2, 4, v2
v_lshl_add_u32 v2, v4, 6, v2
v_add_u32 {v(vTW)}, {F0}, v2
v_and_b32 v2, 1, v3
v_bfe_u32 v5, v1, 2, 2
v_lshl_add_u32 v6, v2, 3, v5
v_lshlrev_b32 v6, 6, v6
v_lshrrev_b32 v5, 1, v5
v_bfe_u32 v7, v1, 1, 1
v_xor_b32 v5, v5, v7
v_lshl_add_u32 v5, v2, 1, v5
v_lshl_add_u32 v6, v5, 4, v6
v_and_b32 v5, 1, v1
v_lshl_add_u32 v6, v5, 3, v6
v_lshrrev_b32 v5, 1, v3
v_lshl_add_u32 v6, v5, 10, v6
v_add_u32 {v(vTB)}, {F0}, v6
v_xor_b32 {v(vTB+1)}, 32, {v(vTB)}""")
        f(f"""s_lshl_b32 {F0}, {s(sRB)}, 2
s_add_u32 {F0}, {F0}, {s(sW)}
s_mul_i32 {s(sAW)}, {F0}, 81920
s_add_u32 {s(sAW)}, {s(sAW)}, {WS_H}
s_mul_i32 {F1}, {s(sCB)}, 10240
s_add_u32 {F1}, {F1}, {s(sAW)}
v_add_u32 {v(vHS)}, {F1}, {v(vL16)}
s_lshl_b32 {F0}, {F0}, 10
s_add_u32 {F0}, {F0}, {WS_HF}
v_and_b32 v2, 7, v1
v_lshlrev_b32 v2, 7, v2
v_add_u32 {v(vHP)}, {F0}, v2
s_lshl_b32 {F1}, {s(sCB)}, 7
s_add_u32 {F0}, {F0}, {F1}
v_mov_b32 v2, {F0}
v_mov_b32 v5, {OOB}
v_cmp_eq_u32 vcc, 0, v1
+v_cndmask_b32 {v(vHF)}, v5, v2, vcc""")
        f(f"""v_and_b32 v2, 1, v3
v_lshrrev_b32 v5, 1, v4
v_xor_b32 v2, v2, v5
v_lshlrev_b32 v2, 4, v2
v_lshl_add_u32 v2, v4, 7, v2
v_lshrrev_b32 v5, 1, v3
v_mul_u32_u24 v5, 10240, v5
v_add_u32 {v(RC)}, v5, v2
v_xor_b32 {v(RC+1)}, 32, {v(RC)}
v_xor_b32 {v(RC+2)}, 64, {v(RC)}
v_xor_b32 {v(RC+3)}, 96, {v(RC)}""")
        f(f"""s_lshl_b32 {F0}, {s(sRB)}, 7
s_lshl_b32 {F1}, {s(sW)}, 5
s_add_u32 {F0}, {F0}, {F1}
s_mul_i32 {F0}, {F0}, 1280
s_mul_i32 {F1}, {s(sCB)}, 160
v_lshl_add_u32 {v(vDS)}, v3, 3, {F1}
v_mul_u32_u24 v2, 1280, v4
v_add3_u32 {v(vXS)}, v2, {v(vDS)}, {F0}""")

        def power(n, dr, di):
            t = ""
            if n is None:
                t += "v_mov_b32 v12, v8\nv_mov_b32 v13, v9\n"
            else:
                t += f"v_mul_f32 v12, {n}, v8\nv_mul_f32 v13, {n}, v9\n"
            t += f"""v_exp_f32 v12, v12
v_fract_f32 v13, v13
v_cos_f32 v14, v13
v_sin_f32 v15, v13
v_mul_f32 {v(dr)}, v12, v14
v_mul_f32 {v(di)}, v12, v15"""
            return t
        for t in range(6):
            lr, li, ld = PRM + 3 * t, PRM + 3 * t + 1, PRM + 3 * t + 2
            c = CST + 8 * t
            f(f"""v_lshlrev_b32 {v(ld)}, 16, {v(ld)}
v_lshlrev_b32 {v(lr)}, 16, {v(lr)}
v_lshlrev_b32 {v(li)}, 16, {v(li)}
v_mul_f32 v2, {f2u(LOG2E)}, {v(ld)}
v_exp_f32 v2, v2
v_cvt_pk_bf16_f32 v2, v2, v2
v_and_b32 v2, 0xffff0000, v2
v_mul_f32 v8, v2, {v(lr)}
v_mul_f32 v9, v2, {v(li)}
v_mul_f32 v8, {f2u(LOG2E)}, v8
v_mul_f32 v9, 0.15915494, v9""")
            Lr, Li = (c, c + 2) if t < 5 else (6, 7)
            cf = c + 4 if t < 5 else CCF
            f(power(None, Lr, Li))
            f(f"""v_add_f32 v2, -1.0, {v(Lr)}
v_mul_f32 v5, {v(lr)}, {v(lr)}
v_fmac_f32 v5, {v(li)}, {v(li)}
v_rcp_f32 v5, v5
v_mul_f32 v10, v2, {v(lr)}
v_fmac_f32 v10, {v(Li)}, {v(li)}
v_add_f32 v5, v5, v5
v_mul_f32 {v(cf)}, v10, v5
v_mul_f32 v10, {v(Li)}, {v(lr)}
v_fma_f32 v10, -v2, {v(li)}, v10
v_mul_f32 {v(cf+1)}, v10, v5""")
            if t < 5:
                f(f"""v_mul_f32 v2, {v(Li)}, {v(Li)}
v_fma_f32 {v(c+1)}, {v(Lr)}, {v(Lr)}, -v2
v_mul_f32 v2, {v(Lr)}, {v(Li)}
v_add_f32 {v(c+3)}, v2, v2""")
                f(power(v(vSEG), c + 6, c + 7))
            else:
                f(power(f2u(8.0), CL8, CL8 + 1))
                f(power(f2u(128.0), CL128, CL128 + 1))
                f(f"""v_sub_u32 v10, 2, {v(vGRP)}
v_mul_u32_u24 v10, 640, v10
v_cvt_f32_u32 v10, v10""")
                f(power("v10", 6, 7))
                f(f"""v_mul_f32 {v(CW)}, {v(CCF)}, v6
v_mul_f32 {v(CW+1)}, {v(CCF)}, v7
v_fma_f32 {v(CW)}, -{v(CCF+1)}, v7, {v(CW)}
v_fmac_f32 {v(CW+1)}, {v(CCF+1)}, v6""")
        f(f"""s_add_u32 {s(SE)}, {s(SWS)}, {WS_E}
+s_addc_u32 {s(SE+1)}, {s(SWS+1)}, 0
s_mov_b32 {s(SE+2)}, 163840""")

        def cchunk(k):
            pre = f"""s_add_u32 {s(sT1)}, {s(sAW+2)}, {k}
s_sub_u32 {s(sT2)}, {s(sT1)}, 10
s_cselect_b32 {s(sT1)}, {s(sT1)}, {s(sT2)}
s_lshl_b32 {s(sT1)}, {s(sT1)}, 7
"""
            return self.dma_w(CH[k], WA, SC, sT1, f"c{k}", pre)
        S(f"s_mul_i32 {s(sAW+2)}, {s(sCB)}, 5\ns_lshr_b32 {s(sAW+2)}, {s(sAW+2)}, 2")
        self.mainloop(S, "B", early, F, [cchunk(k) for k in range(5)])
        self.stamp(S, 4)

        re = lambda t, k: ACC + (t * 2 + (k >> 1)) * 4 + 2 * (k & 1)
        im = lambda t, k: ACC + ((t + 5) * 2 + (k >> 1)) * 4 + 2 * (k & 1)
        HI = "op_sel:[1,0,0] op_sel_hi:[1,1,1]"
        NEG = "neg_lo:[1,0,0] neg_hi:[1,0,0]"
        T0 = BIG
        cur = None
        for k in range(1, 4):
            dst = T0 if k & 1 else 96
            for t in range(5):
                c = CST + 8 * t
                sr, si = (re(t, 0), im(t, 0)) if k == 1 else (cur + 4 * t, cur + 4 * t + 2)
                S(f"v_pk_fma_f32 {v(dst+4*t,2)}, {v(c,2)}, {v(sr,2)}, {v(re(t,k),2)} {HI}")
                S(f"v_pk_fma_f32 {v(dst+4*t+2,2)}, {v(c,2)}, {v(si,2)}, {v(im(t,k),2)} {HI}")
            for t in range(5):
                c = CST + 8 * t
                sr, si = (re(t, 0), im(t, 0)) if k == 1 else (cur + 4 * t, cur + 4 * t + 2)
                S(f"v_pk_fma_f32 {v(dst+4*t,2)}, {v(c+2,2)}, {v(si,2)}, {v(dst+4*t,2)} {HI} {NEG}")
                S(f"v_pk_fma_f32 {v(dst+4*t+2,2)}, {v(c+2,2)}, {v(sr,2)}, {v(dst+4*t+2,2)} {HI}")
            cur = dst
        EE = 96
        for t in range(5):
            c, b = CST + 8 * t, cur + 4 * t
            S(f"v_fma_f32 {v(EE+2*t)}, {v(c)}, {v(b)}, {v(b+1)}\nv_fma_f32 {v(EE+2*t+1)}, {v(c)}, {v(b+2)}, {v(b+3)}")
        for t in range(5):
            c, b = CST + 8 * t, cur + 4 * t
            S(f"v_fma_f32 {v(EE+2*t)}, -{v(c+2)}, {v(b+2)}, {v(EE+2*t)}\nv_fmac_f32 {v(EE+2*t+1)}, {v(c+2)}, {v(b)}")
            S(f"ds_write_b64 {v(vSCW)}, {v(EE+2*t,2)} offset:{128*t}")
        self.nonce_get(S)
        S("@waitlgkm0\ns_barrier")
        ch = lambda j: BIG + 2 * j
        for j in range(16):
            S(f"ds_read_b64 {v(ch(j),2)}, {v(vSCC)} offset:{640*j}")
        for j in range(1, 16):
            p, c = ch(j - 1), ch(j)
            S(f"""v_fmac_f32 {v(c)}, {v(CL8)}, {v(p)}
v_fmac_f32 {v(c+1)}, {v(CL8)}, {v(p+1)}
v_fma_f32 {v(c)}, -{v(CL8+1)}, {v(p+1)}, {v(c)}
v_fmac_f32 {v(c+1)}, {v(CL8+1)}, {v(p)}""")
            if j == 1:
                S(f"v_mov_b32 {v(BIG+32)}, {s(sNON)}\nv_mov_b32 {v(BIG+33)}, {s(sNON)}")
        S(f"buffer_store_dwordx4 {v(BIG+30,4)}, {v(vEP)}, {s(SE,4)}, 0 offen sc1")
        self.stamp(S, 5)
        S(f"v_mov_b32 v2, 0\nv_mov_b32 v3, 0\nds_write_b64 {v(vSCC)}, v[2:3]")
        for j in range(15):
            c = ch(j)
            d = 4 + 2 * (j & 3)
            S(f"""v_mul_f32 {v(d)}, {v(CCF)}, {v(c)}
v_mul_f32 {v(d+1)}, {v(CCF)}, {v(c+1)}
v_fma_f32 {v(d)}, -{v(CCF+1)}, {v(c+1)}, {v(d)}
v_fmac_f32 {v(d+1)}, {v(CCF+1)}, {v(c)}
ds_write_b64 {v(vSCC)}, {v(d,2)} offset:{640*(j+1)}""")
        LO = "op_sel:[0,0] op_sel_hi:[0,1]"
        for t in range(5):
            cf = CST + 8 * t + 4
            for k in range(4):
                d = 2 + 2 * (k & 1)
                S(f"""v_pk_mul_f32 {v(d,2)}, {v(cf,2)}, {v(re(t,k),2)} op_sel:[1,0] op_sel_hi:[1,1]
v_pk_mul_f32 {v(re(t,k),2)}, {v(cf,2)}, {v(re(t,k),2)} {LO}
v_pk_fma_f32 {v(re(t,k),2)}, {v(cf,2)}, {v(im(t,k),2)}, {v(re(t,k),2)} {HI} {NEG}
v_pk_fma_f32 {v(im(t,k),2)}, {v(cf,2)}, {v(im(t,k),2)}, {v(d,2)} op_sel:[0,0,0] op_sel_hi:[0,1,1]""")
        for x in range(7, 0, -1):
            for t in range(5):
                c = CST + 8 * t
                ur, ui = re(t, x >> 1) + (x & 1), im(t, x >> 1) + (x & 1)
                pr, pi = re(t, (x - 1) >> 1) + ((x - 1) & 1), im(t, (x - 1) >> 1) + ((x - 1) & 1)
                S(f"""v_fmac_f32 {v(ur)}, {v(c)}, {v(pr)}
v_fmac_f32 {v(ui)}, {v(c)}, {v(pi)}
v_fma_f32 {v(ur)}, -{v(c+2)}, {v(pi)}, {v(ur)}
v_fmac_f32 {v(ui)}, {v(c+2)}, {v(pr)}""")
        SL = 100
        S("@waitlgkm0\ns_barrier")
        for t in range(5):
            S(f"ds_read_b64 {v(SL+2*t,2)}, {v(vSCW)} offset:{128*t}")
        self.stamp(S, 6)
        S(f"v_mov_b32 v2, {s(sNON)}")
        for j in range(5):
            S(f"v_cmp_le_i32 vcc, 0, {v(VE+j)}\nv_cndmask_b32_e64 {v(VX+j)}, 0, v2, vcc")
        S("@waitlgkm0")
        lp, done = self.lab("epoll"), self.lab("edone")
        S(f"s_mov_b32 {s(sCNT)}, 0x40000\n{lp}:")
        for j in range(5):
            S(f"buffer_load_dwordx4 {v(BIG+4*j,4)}, {v(VE+j)}, {s(SE,4)}, 0 offen sc1")
        S("s_waitcnt vmcnt(0)")
        for j in range(5):
            d, hp = BIG + 4 * j, BIG + 4 * j - 4
            S(f"v_xor_b32 {v(d+2)}, {v(d+2)}, {v(VX+j)}")
            if j:
                S(f"""v_fmac_f32 {v(d)}, {v(CL128)}, {v(hp)}
v_fmac_f32 {v(d+1)}, {v(CL128)}, {v(hp+1)}
v_or_b32 {v(d+2)}, {v(d+2)}, {v(hp+2)}
v_fma_f32 {v(d)}, -{v(CL128+1)}, {v(hp+1)}, {v(d)}
v_fmac_f32 {v(d+1)}, {v(CL128+1)}, {v(hp)}""")
        hp = BIG + 16
        S(f"""v_cmp_ne_u32 vcc, 0, {v(hp+2)}
v_mul_f32 v4, {v(CW)}, {v(hp)}
v_mul_f32 v5, {v(CW)}, {v(hp+1)}
v_fma_f32 v4, -{v(CW+1)}, {v(hp+1)}, v4
v_fmac_f32 v5, {v(CW+1)}, {v(hp)}
s_cbranch_vccz {done}
s_sub_u32 {s(sCNT)}, {s(sCNT)}, 1
s_cbranch_scc0 {lp}
{done}:""")
        S(f"""ds_write_b64 {v(vHW)}, v[4:5] offset:10240
@waitlgkm0
s_barrier""")
        self.stamp(S, 7)
        HH = BIG
        for t in range(5):
            for g in range(3):
                S(f"ds_read_b64 {v(HH+10*g+2*t,2)}, {v(vSCH)} offset:{128*t + 640*g}")
        for g in (1, 2):
            for t in range(5):
                S(f"v_pk_add_f32 {v(HH+2*t,2)}, {v(HH+2*t,2)}, {v(HH+10*g+2*t,2)}")
        for t in range(5):
            ls, h_, sl = CST + 8 * t + 6, HH + 2 * t, SL + 2 * t
            S(f"""v_fmac_f32 {v(sl)}, {v(ls)}, {v(h_)}
v_fmac_f32 {v(sl+1)}, {v(ls)}, {v(h_+1)}
v_fma_f32 {v(sl)}, -{v(ls+1)}, {v(h_+1)}, {v(sl)}
v_fmac_f32 {v(sl+1)}, {v(ls+1)}, {v(h_)}""")
        for t in range(5):
            c, sl = CST + 8 * t, SL + 2 * t
            S(f"v_pk_fma_f32 {v(re(t,0),2)}, {v(c,2)}, {v(sl,2)}, {v(re(t,0),2)} op_sel:[0,0,0] op_sel_hi:[1,0,1]")
            S(f"v_pk_fma_f32 {v(im(t,0),2)}, {v(c,2)}, {v(sl,2)}, {v(im(t,0),2)} op_sel:[0,1,0] op_sel_hi:[1,1,1]")
        for t in range(5):
            c, sl = CST + 8 * t, SL + 2 * t
            S(f"v_pk_fma_f32 {v(re(t,0),2)}, {v(c+2,2)}, {v(sl,2)}, {v(re(t,0),2)} op_sel:[0,1,0] op_sel_hi:[1,1,1] {NEG}")
            S(f"v_pk_fma_f32 {v(im(t,0),2)}, {v(c+2,2)}, {v(sl,2)}, {v(im(t,0),2)} op_sel:[0,0,0] op_sel_hi:[1,0,1]")
        for k in range(1, 4):
            for t in range(5):
                c = CST + 8 * t
                S(f"v_pk_fma_f32 {v(re(t,k),2)}, {v(c,2)}, {v(re(t,k-1),2)}, {v(re(t,k),2)} {HI}")
                S(f"v_pk_fma_f32 {v(im(t,k),2)}, {v(c,2)}, {v(im(t,k-1),2)}, {v(im(t,k),2)} {HI}")
            for t in range(5):
                c = CST + 8 * t
                S(f"v_pk_fma_f32 {v(re(t,k),2)}, {v(c+2,2)}, {v(im(t,k-1),2)}, {v(re(t,k),2)} {HI} {NEG}")
                S(f"v_pk_fma_f32 {v(im(t,k),2)}, {v(c+2,2)}, {v(re(t,k-1),2)}, {v(im(t,k),2)} {HI}")
        CV = 48
        for t in range(5):
            for ri in range(2):
                d = CV + 4 * (2 * t + ri)
                for k in range(4):
                    r = re(t, k) if ri == 0 else im(t, k)
                    n = "" if ri == 0 else "-"
                    S(f"v_cvt_pk_bf16_f32 {v(d+k)}, {n}{v(r)}, {n}{v(r+1)}")
                S(f"ds_write_b128 {v(vTW)}, {v(d,4)} offset:{1024*(2*t+ri)}")
        HFR = ACC
        for t in range(5):
            for i in range(2):
                d = HFR + 4 * (2 * t + i)
                for j in range(2):
                    S(f"ds_read_b64_tr_b16 {v(d+2*j,2)}, {v(vTB + (i ^ j))} offset:{2048*t + 256*j}")
        S(f"v_add_u32 v2, 4096, {v(vHS)}\nv_add_u32 v3, 8192, {v(vHS)}")
        for m in range(10):
            ad = [v(vHS), "v2", "v3"][m >> 2]
            S(f"buffer_store_dwordx4 {v(HFR+4*m,4)}, {ad}, {s(SWS,4)}, 0 offen offset:{1024*(m & 3)} sc1", tag="hst")
        S("@waitlgkm0\ns_barrier")
        S(f"v_mov_b32 v4, {s(sNON)}")
        S("@waittag hst")
        S(f"buffer_store_dword v4, {v(vHF)}, {s(SWS,4)}, 0 offen sc1")
        self.stamp(S, 8)
        XK, DK = 48, 68
        S(f"v_add_u32 v2, {16*1280}, {v(vXS)}")
        for i in range(2):
            for n in range(5):
                S(f"buffer_load_dwordx2 {v(XK + 2*(5*i+n), 2)}, {[v(vXS), 'v2'][i]}, {s(SX,4)}, 0 offen offset:{32*n}")
        for n in range(5):
            S(f"buffer_load_dwordx2 {v(DK + 2*n, 2)}, {v(vDS)}, {s(SP3,4)}, 0 offen offset:{32*n}")
        for k in (5, 6, 7):
            S.add(cchunk(k))
        AC2 = ACC + 40
        for n in range(5):
            S(f"""v_lshlrev_b32 v4, 16, {v(DK+2*n)}
v_and_b32 v5, 0xffff0000, {v(DK+2*n)}
v_lshlrev_b32 v6, 16, {v(DK+2*n+1)}
v_and_b32 v7, 0xffff0000, {v(DK+2*n+1)}""")
            for i in range(2):
                x = XK + 2 * (5 * i + n)
                c = AC2 + (n * 2 + i) * 4
                S(f"""v_lshlrev_b32 v8, 16, {v(x)}
v_and_b32 v9, 0xffff0000, {v(x)}
v_lshlrev_b32 v10, 16, {v(x+1)}
v_and_b32 v11, 0xffff0000, {v(x+1)}
v_pk_mul_f32 v[8:9], v[8:9], v[4:5]
v_pk_mul_f32 v[10:11], v[10:11], v[6:7]
v_cvt_pk_bf16_f32 v12, v8, v9
v_cvt_pk_bf16_f32 v13, v10, v11
v_lshlrev_b32 {v(c)}, 16, v12
v_and_b32 {v(c+1)}, 0xffff0000, v12
v_lshlrev_b32 {v(c+2)}, 16, v13
v_and_b32 {v(c+3)}, 0xffff0000, v13""")
        S(f"v_add_u32 v14, {s(sAW)}, {v(vL16)}\nv_add_u32 v15, 4096, v14")
        for k in range(3):
            for j in range(4):
                S(f"v_add_u32 {v(96 + 4*k + j)}, {k * 0x10000}, {v(RC + j)}")
        self.poll_flags(S, vHP, 1, 4)
        self.stamp(S, 9)
        DEPTH = self.opt.get("hdepth", 6)
        def hload(u):
            c, tl = u >> 2, u & 3
            L = []
            pre = ""
            if tl == 0:
                pre = f"""s_add_u32 {s(sT0)}, {s(sAW+2)}, {c}
s_sub_u32 {s(sAW+3)}, {s(sT0)}, 10
s_cselect_b32 {s(sT0)}, {s(sT0)}, {s(sAW+3)}
s_lshl_b32 {s(sT0)}, {s(sT0)}, 13
"""
            for i in range(2):
                off = tl * 2048 + i * 1024
                d = ((u % 32) * 2 + i) * 4
                L.append(mk(pre + f"buffer_load_dwordx4 {a(d,4)}, v{14 + (off >> 12)}, {s(SWS,4)}, {s(sT0)} offen offset:{off & 4095} sc1"))
                pre = ""
            return L
        CF = 108
        def creads(u):
            c, tl = u >> 2, u & 3
            L = []
            for n in range(5):
                off = CH[c] + 2048 * n
                L.append(I(f"ds_read_b128 {v(CF + 20*(u & 1) + 4*n, 4)}, {v(96 + 4*(off >> 16) + tl)} offset:{off & 0xffff}"))
            return L
        for u in range(DEPTH):
            S.add(hload(u))
        S("@waittag c0 c1 c2 c3 c4 c5 c6 c7\ns_barrier")
        S.add(creads(0))
        for u in range(40):
            pre = []
            if u == 7:
                S("@waitlgkm0\ns_barrier")
            if u == 31:
                S("@waittag c8 c9\ns_barrier")
            mf = []
            for n in range(5):
                for i in range(2):
                    c = AC2 + (n * 2 + i) * 4
                    mf.append(I(f"{MF} {v(c,4)}, {v(CF + 20*(u & 1) + 4*n, 4)}, {a(((u % 32)*2+i)*4, 4)}, {v(c,4)}"))
            ld = hload(u + DEPTH) if u + DEPTH < 40 else []
            if 8 <= u < 18:
                ld = ld + [(cchunk(8) + cchunk(9))[u - 8]]
            rd = creads(u + 1) if u < 39 else []
            S.add(interleave(mf, (rd, 0, 4), (ld, 2, 9)))
        self.stamp(S, 10)
        self.store_out(S, AC2, "B")
        self.stamp(S, 11)
        self.dump_stamps(S)
        S("s_endpgm")
        return S

    def phi_pairs(self, S, pairs, EPS, CPH):
        G = 4
        for b in range(0, len(pairs), G):
            blk = pairs[b:b + G]
            for x, (c, d) in enumerate(blk):
                S(f"v_pk_fma_f32 {v(2+2*x,2)}, {v(c,2)}, {v(CPH,2)}, {v(CPH,2)} op_sel:[0,0,1] op_sel_hi:[1,0,1]")
            for x, (c, d) in enumerate(blk):
                S(f"v_exp_f32 {v(2+2*x)}, {v(2+2*x)} clamp\nv_max_f32 {v(c)}, {v(EPS)}, {v(c)}")
                S(f"v_exp_f32 {v(3+2*x)}, {v(3+2*x)} clamp\nv_max_f32 {v(c+1)}, {v(EPS)}, {v(c+1)}")
            for x, (c, d) in enumerate(blk):
                S(f"v_pk_add_f32 {v(c,2)}, {v(c,2)}, {v(2+2*x,2)}")
            for x, (c, d) in enumerate(blk):
                S(f"v_cvt_pk_bf16_f32 {v(d)}, {v(c)}, {v(c+1)}")

    def side_A(self):
        S = Stream()
        EPSQ, CPH, EPSD = 48, 52, 56
        vXW, PKS, PKO, PKX, V0, V1O, V1X = 60, 61, 62, 63, 64, 65, 66
        PS, PO, P2, vPF, vPP, vRL, vKF, vPQ, vAF, vAP, vKS, vPL, vKR = 67, 68, 69, 70, 71, 72, 73, 74, 75, 76, 78, 79, 80
        UQ = 82
        sWO = SP0
        sC4K = SP0 + 5
        self.x_addrs(S, "A")
        S(f"""s_mul_i32 {s(sT0)}, {s(sW)}, {16*3840}
s_mul_i32 {s(sT1)}, {s(sCB)}, 160
s_add_u32 {s(sT0)}, {s(sT0)}, {s(sT1)}""")
        for i in range(5):
            r, h, c = UQ + 3 * i, UQ + 3 * i + 1, UQ + 3 * i + 2
            S(f"""v_add_u32 v7, {64*i}, v1
v_mul_u32_u24 {v(r)}, 3277, v7
v_lshrrev_b32 {v(r)}, 16, {v(r)}
v_mul_u32_u24 v8, 20, {v(r)}
v_sub_u32 v7, v7, v8
v_lshrrev_b32 v8, 1, v7
v_lshrrev_b32 v9, 3, {v(r)}
v_xor_b32 v8, v8, v9
v_add_u32 {v(h)}, 3, v8
v_lshrrev_b32 {v(h)}, 3, {v(h)}
v_mul_u32_u24 v9, 5, {v(h)}
v_sub_u32 v8, v8, v9
v_and_b32 v7, 1, v7
v_lshlrev_b32 v7, 4, v7
v_lshl_add_u32 {v(c)}, v8, 5, v7
v_mul_u32_u24 v7, 3840, {v(r)}
v_mul_u32_u24 v8, 1280, {v(h)}
v_add3_u32 v7, v7, v8, {v(c)}
v_add_u32 v7, {s(sT0)}, v7
v_add_u32 {v(WA+i)}, {1280 - 1024*(i & 3) & 0xffffffff:#x}, v7""")
        for c in range(5):
            S(f"s_mul_i32 {s(sAW+c)}, {s(sA128+c)}, 1920")
        S(f"s_mul_i32 {s(sHW0)}, {s(sHX0)}, 1920\ns_mul_i32 {s(sHW1)}, {s(sHX1)}, 1920")
        S(f"""v_bfe_u32 v7, v1, 2, 2
v_lshl_add_u32 v7, v3, 3, v7
v_mul_u32_u24 v7, 320, v7
v_and_b32 v8, 3, v1
v_lshl_add_u32 v7, v8, 3, v7
v_and_b32 v8, 1, v3
v_lshlrev_b32 v8, 5, v8
v_add_u32 {v(RW)}, v7, v8
v_sub_u32 {v(RW+3)}, v7, v8
v_add_u32 {v(RW+1)}, 0x10000, {v(RW)}
v_add_u32 {v(RW+4)}, 0x10000, {v(RW+3)}""")
        for k in range(4):
            S(f"v_mov_b32 {v(EPSQ+k)}, {f2u(1e-6)}")
        self.srd(S, SX, 4, 2048 * 1280)
        self.srd(S, SW, 6, 640 * 3840)
        self.common_srds(S)
        self.srd(S, SC, 8, 640 * 1280)

        F = []
        def f(t): F.extend(groups(t))
        F0, F1 = s(sF0), s(sF1)
        f(f"""s_mul_i32 {F0}, {s(sW)}, {16*3840}
s_mul_i32 {F1}, {s(sCB)}, 160
s_add_u32 {F0}, {F0}, {F1}""")
        for i in range(5):
            r, h, c = UQ + 3 * i, UQ + 3 * i + 1, UQ + 3 * i + 2
            f(f"""v_xor_b32 v7, {s(sETA)}, {v(h)}
v_mul_u32_u24 v7, 320, v7
v_add_u32 v7, v7, {v(r)}
v_mul_u32_u24 v7, 3840, v7
v_add3_u32 v7, v7, {v(c)}, {F0}
v_subrev_u32 {v(WQ+i)}, {1024*(i & 3)}, v7""")
        f(f"s_lshl_b32 {F0}, {s(sW)}, 1")
        for i in range(5):
            r, h, c = UQ + 3 * i, UQ + 3 * i + 1, UQ + 3 * i + 2
            f(f"""v_lshrrev_b32 v7, 3, {v(r)}
v_add_u32 v7, {F0}, v7
v_and_b32 v7, 3, v7
v_mul_u32_u24 v7, 5, v7
v_and_b32 v8, 7, {v(r)}
v_mul_u32_u24 v8, 20, v8
v_mul_u32_u24 v9, 320, {v(h)}
v_add3_u32 v7, v7, v8, v9
v_mul_u32_u24 v7, 1280, v7
v_add3_u32 v7, v7, {v(c)}, {F1}
v_subrev_u32 {v(WO+i)}, {1024*(i & 3)}, v7""")
        T = lambda x: (160 * (x // 5) + x % 5) * 1280
        for c in range(5):
            f(f"""s_cmp_ge_u32 {s(sW)}, 2
+s_cselect_b32 {s(sWO+c)}, {s(sC4K)}, {s(sC4K+1)}""".replace(s(sC4K) + ",", "@1,").replace(s(sC4K + 1), "@2")
              .replace("s_cmp_ge_u32", f"s_mov_b32 {s(sWO+c)}, {T(2*c)}\n+s_cmp_ge_u32").replace("@1", str(T(2*c+1))).replace("@2", s(sWO + c)))
        f(f"""s_movk_i32 {s(sC4K)}, 0x1000
s_movk_i32 {s(sC4K+1)}, 0x2000
v_mov_b32 {v(CPH)}, {f2u(LOG2E)}
v_mov_b32 {v(CPH+1)}, {f2u(-1e-6*LOG2E)}
v_mov_b32 {v(EPSD)}, 0
v_mov_b32 {v(EPSD+1)}, {f2u(1e-6)}
v_mov_b32 {v(EPSD+2)}, 0
v_mov_b32 {v(EPSD+3)}, {f2u(1e-6)}""")
        f(f"""s_mul_i32 {F0}, {s(sW)}, {XS}
s_add_u32 {F0}, {F0}, {XCH}
v_add_u32 {v(vXW)}, {F0}, {v(vL16)}
v_and_b32 v7, 1, v1
v_mul_u32_u24 v8, 0x3f80, v7
v_lshl_or_b32 v8, v8, 16, v8
v_mov_b32 v9, v8
v_mov_b32 v10, v8
v_mov_b32 v11, v8
v_lshl_add_u32 v7, v7, 4, {F0}
ds_write_b128 v7, v[8:11] offset:10240""")
        def pk(dst, hh, aa):
            f(f"""{hh}
{aa}
v_mov_b32 v12, {XCH + 10240}
v_mov_b32 v7, {F1}
v_lshl_add_u32 v7, v7, 4, v4
v_mov_b32 v8, {F0}
v_lshlrev_b32 v9, 2, v8
v_sub_u32 v7, v7, v9
v_add_u32 v8, {F1}, v8
v_lshl_add_u32 v8, v8, 10, {v(vL16)}
v_add_u32 v8, {XCH}, v8
v_cmp_gt_u32 vcc, 20, v7
+v_cndmask_b32 {v(dst)}, v12, v8, vcc""")
        pk(PKS, f"s_mov_b32 {F0}, {s(sW)}", f"s_and_b32 {F1}, {s(sW)}, 1")
        pk(PKO, f"s_mov_b32 {F0}, {s(sW)}", f"s_andn2_b32 {F1}, 1, {s(sW)}")
        pk(PKX, f"s_xor_b32 {F0}, {s(sW)}, 1", f"s_and_b32 {F1}, {s(sW)}, 1")
        def coladdr(dst, col):
            return f"""v_lshrrev_b32 v9, 4, {col}
v_and_b32 v10, 15, {col}
v_lshlrev_b32 v10, 4, v10
v_lshl_add_u32 v10, v3, 8, v10
v_lshl_add_u32 v10, v9, 10, v10
v_add_u32 {dst}, {XCH + 5*1024}, v10"""
        f(f"""v_lshrrev_b32 v13, 2, v4
v_mul_u32_u24 v13, 5, v13
v_and_b32 v14, 3, v4
s_mul_i32 {F0}, {s(sW)}, 20
v_add3_u32 v7, v13, v14, {F0}
""" + coladdr(v(V0), "v7"))
        for dst, hh in ((V1O, f"s_mov_b32 {F0}, {s(sW)}"), (V1X, f"s_xor_b32 {F0}, {s(sW)}, 1")):
            f(f"""{hh}
s_and_b32 {F1}, {F0}, 1
s_lshl_b32 {F1}, {F1}, 1
s_mul_i32 {F0}, {F0}, 20
v_add3_u32 v7, v13, 4, {F0}
""" + coladdr("v8", "v7") + f"""
v_subrev_u32 v7, {F1}, v14
v_mov_b32 v9, {XCH + 10240}
v_mov_b32 v10, {XCH + 10256}
v_cmp_eq_u32 vcc, 1, v7
+v_cndmask_b32 v9, v9, v10, vcc
v_cmp_eq_u32 vcc, 0, v7
+v_cndmask_b32 {v(dst)}, v9, v8, vcc""")
        f(f"""s_lshl_b32 {F0}, {s(sCB)}, 2
s_add_u32 {F0}, {F0}, {s(sW)}
s_lshl_b32 {F1}, {F0}, 11
s_add_u32 {F1}, {F1}, {WS_PF}
v_lshl_add_u32 {v(vPP)}, v4, 7, {F1}
v_mov_b32 v7, {s(sRB)}
v_lshl_add_u32 v7, v7, 7, {F1}
v_mov_b32 v12, {OOB}
v_cmp_eq_u32 vcc, 0, v1
+v_cndmask_b32 {v(vPF)}, v12, v7, vcc
s_mul_i32 {F0}, {F0}, 49152
s_add_u32 {F0}, {F0}, {WS_P}
s_mul_i32 {F1}, {s(sRB)}, 3072
s_add_u32 {F1}, {F1}, {F0}
v_lshl_add_u32 v7, v1, 3, {F1}
v_cmp_gt_u32 vcc, 24, v1
+v_cndmask_b32 {v(vRL)}, v12, v7, vcc
s_mul_i32 {F1}, {s(sRB)}, 192
s_add_u32 {F0}, {F0}, {F1}""")
        for dst, q in ((PS, f"s_and_b32 {F1}, {s(sW)}, 1"), (PO, f"s_andn2_b32 {F1}, 1, {s(sW)}"), (P2, f"s_mov_b32 {F1}, 2")):
            f(f"""{q}
s_lshl_b32 {F1}, {F1}, 6
v_add_u32 v7, {F1}, v1
v_mul_u32_u24 v8, 5462, v7
v_lshrrev_b32 v8, 16, v8
v_mul_u32_u24 v9, 12, v8
v_sub_u32 v7, v7, v9
v_mul_u32_u24 v8, 3072, v8
v_lshl_add_u32 v7, v7, 4, v8
v_add_u32 {v(dst)}, {F0}, v7""")
        f(f"""s_mul_i32 {F0}, {s(sRB)}, 12
v_lshrrev_b32 v7, 1, v1
v_add_u32 v7, {F0}, v7
v_lshrrev_b32 v8, 6, v7
v_and_b32 v7, 63, v7
v_lshlrev_b32 v7, 4, v7
v_and_b32 v9, 1, v1
v_lshl_add_u32 v7, v9, 2, v7
s_lshr_b32 {F0}, {s(sW)}, 1
s_add_u32 {F0}, {F0}, 4
s_lshl_b32 {F0}, {F0}, 10
s_and_b32 {F1}, {s(sW)}, 1
s_lshl_b32 {F1}, {F1}, 3
s_add_u32 {F0}, {F0}, {F1}
s_lshl_b32 {F1}, {s(sW)}, 10
v_lshl_add_u32 v9, v8, 3, {F1}
v_mov_b32 v10, {F0}
v_cmp_gt_u32 vcc, 2, v8
+v_cndmask_b32 v9, v10, v9, vcc
s_mul_i32 {F0}, {s(sCB)}, 6144
s_add_u32 {F0}, {F0}, {WS_KV}
v_add3_u32 v7, v7, v9, {F0}
v_cmp_gt_u32 vcc, 24, v1
+v_cndmask_b32 {v(vKF)}, v12, v7, vcc""")
        f(f"""s_lshl_b32 {F0}, {s(sRB)}, 2
s_add_u32 {F0}, {F0}, {s(sW)}
s_mul_i32 {F0}, {F0}, 40960
s_add_u32 {F0}, {F0}, {WS_PQ}
v_add_u32 {v(vPL)}, {F0}, {v(vL16)}
s_mul_i32 {F1}, {s(sCB)}, 5120
v_add_u32 {v(vPQ)}, {F1}, {v(vPL)}
s_lshl_b32 {F0}, {s(sRB)}, 3
s_add_u32 {F0}, {F0}, {s(sCB)}
s_lshl_b32 {F0}, {F0}, 7
s_add_u32 {F0}, {F0}, {WS_AF}
v_mov_b32 v7, {F0}
v_cmp_eq_u32 vcc, 0, v0
+v_cndmask_b32 {v(vAF)}, v12, v7, vcc
v_lshlrev_b32 v7, 7, v1
v_add_u32 {v(vAP)}, {WS_AF}, v7
v_add_u32 {v(vAP+1)}, {WS_AF + 8192}, v7
s_mul_i32 {F0}, {s(sW)}, 12288
s_add_u32 {F0}, {F0}, {WS_KV}
v_add_u32 {v(vKS)}, {F0}, {v(vL16)}
v_add_u32 {v(vKR)}, {KVL}, {v(vL16)}""")

        qch = [self.dma_w(CH[c], WQ, SW, sAW + c, f"q{c}") for c in range(5)]
        self.mainloop(S, "A", [], F, qch, EPSQ)
        self.stamp(S, 4)
        FRG = 96
        self.phi_pairs(S, [(ACC + (n*2 + (k >> 1))*4 + 2*(k & 1), FRG + 4*n + k) for n in range(5) for k in range(4)], EPSQ, CPH)
        for n in range(5):
            S(f"ds_write_b128 {v(vXW)}, {v(FRG+4*n,4)} offset:{1024*n}")
        for n in range(5, 10):
            for k in range(4):
                c = ACC + (n*2 + (k >> 1))*4 + 2*(k & 1)
                S(f"v_cvt_pk_bf16_f32 {v(FRG+4*n+k)}, {v(c)}, {v(c+1)}")
            S(f"ds_write_b128 {v(vXW)}, {v(FRG+4*n,4)} offset:{1024*n}")
        self.nonce_get(S)
        S("@waittag q0 q1 q2 q3 q4\n@waitlgkm0\ns_barrier")
        DS, DO, D2 = 144, 148, 152
        G = lambda ks, x: a(AW + 24 * (ks & 1) + 4 * x, 4)
        def grd(ks):
            return [I(f"ds_read_b128 {G(ks,x)}, {v(r)} offset:{ks*XS}") for x, r in enumerate((PKS, V0, PKO, V1O, PKX, V1X))]
        S.add(grd(0))
        S.add(grd(1))
        for ks in range(4):
            z = lambda d: "0" if ks == 0 else v(d, 4)
            S(f"""{MF} {v(DS,4)}, {G(ks,0)}, {G(ks,1)}, {z(DS)}
{MF} {v(DO,4)}, {G(ks,2)}, {G(ks,1)}, {z(DO)}
{MF} {v(D2,4)}, {G(ks,0)}, {G(ks,3)}, {z(D2)}
{MF} {v(D2,4)}, {G(ks,4)}, {G(ks,5)}, {v(D2,4)}""")
            if ks < 2:
                S.add(grd(ks + 2))
        QA = ACC
        def qreads(u):
            c, hf, kk = u >> 2, (u >> 1) & 1, u & 1
            L = []
            for n in range(5):
                L += self.tr_frag(208 + 20 * (u & 1) + 4 * n, CH[c] + kk * 10240, 5 * hf + n)
            return L
        S.add(qreads(0))
        for d, ad in ((DS, PS), (DO, PO), (D2, P2)):
            S(f"buffer_store_dwordx4 {v(d,4)}, {v(ad)}, {s(SWS,4)}, 0 offen sc1", tag="pst")
        S(f"v_mov_b32 v15, {s(sNON)}")
        self.stamp(S, 5)
        RB = 96
        woch = [self.dma_w(CH[c], WO, SC, sWO + c, f"wo{c}") for c in range(5)]
        for u in range(20):
            c, hf, kk = u >> 2, (u >> 1) & 1, u & 1
            st = c + 5 * hf
            ex = []
            if (u & 3) == 3:
                S("@waitlgkm0\ns_barrier")
                ex = woch[c][:3]
            elif (u & 3) == 0 and u:
                ex = woch[c - 1][3:]
            if u == 3:
                S(f"@waittag pst\nbuffer_store_dword v15, {v(vPF)}, {s(SWS,4)}, 0 offen sc1")
            if u == 9:
                ex = [mk(f"buffer_load_dword v14, {v(vPP)}, {s(SWS,4)}, 0 offen sc1")]
            if u == 13:
                lp, done = self.lab("ppoll"), self.lab("pdone")
                S(f"v_cmp_ne_u32 vcc, v15, v14")
                S(f"""s_cbranch_vccz {done}
s_mov_b32 {s(sCNT)}, 0x40000
{lp}:
buffer_load_dword v14, {v(vPP)}, {s(SWS,4)}, 0 offen sc1
s_waitcnt vmcnt(0)
v_cmp_ne_u32 vcc, v15, v14
s_cbranch_vccz {done}
s_sub_u32 {s(sCNT)}, {s(sCNT)}, 1
s_cbranch_scc0 {lp}
{done}:""", tag="opaque")
            if u in (13, 14):
                ex = [mk(f"buffer_load_dwordx2 {v(RB+2*r,2)}, {v(vRL)}, {s(SWS,4)}, 0 offen offset:{192*r} sc1") for r in range(8*(u-13), 8*(u-13)+8)]
            mf = []
            for n in range(5):
                for i in range(2):
                    d = QA + (n * 2 + i) * 4
                    cin = v(EPSQ, 4) if u == 0 else v(d, 4)
                    mf.append(I(f"{MF} {v(d,4)}, {a(208 + 20*(u & 1) + 4*n, 4)}, {a(AX + ((2*st+kk)*2+i)*4, 4)}, {cin}"))
            S.add(interleave(mf, (qreads(u + 1) if u < 19 else [], 0, 7), (ex, 1, 9)))
        S.add(woch[4][3:])
        self.stamp(S, 6)
        for r in range(1, 16):
            S(f"v_pk_add_f32 {v(RB,2)}, {v(RB,2)}, {v(RB+2*r,2)}")
        S(f"v_cvt_pk_bf16_f32 {v(RB)}, {v(RB)}, {v(RB+1)}")
        S(f"buffer_store_dword {v(RB)}, {v(vKF)}, {s(SWS,4)}, 0 offen sc1")
        PQR = 136
        self.phi_pairs(S, [(QA + (n*2 + i)*4 + 2*k, PQR + 10*i + 2*n + k) for i in range(2) for n in range(5) for k in range(2)], EPSQ, CPH)
        for m in range(5):
            S(f"buffer_store_dwordx4 {v(PQR+4*m,4)}, {v(vPQ)}, {s(SWS,4)}, {s(sC4K) if m == 4 else 0} offen offset:{1024*(m & 3)} sc1")
        S("@waitvm0\ns_barrier")
        S(f"buffer_store_dword v15, {v(vAF)}, {s(SWS,4)}, 0 offen sc1")
        self.stamp(S, 7)
        self.poll_flags(S, vAP, 2, 4)
        self.stamp(S, 8)
        for x in range(12):
            if (x & 3) == 0:
                S(f"s_mul_i32 {s(sT0)}, {s(sW)}, 12288\ns_add_u32 m0, {s(sT0)}, {KVL + 4096*(x >> 2)}")
            so = [0, s(sC4K), s(sC4K + 1)][x >> 2]
            S(f"buffer_load_dwordx4 {v(vKS)}, {s(SWS,4)}, {so} offen offset:{1024*(x & 3)} sc1 lds", tag="kv")
        def pqload(x):
            pre = f"s_mov_b32 {s(sT1)}, {4096*(x >> 2)}\n" if (x & 3) == 0 else ""
            return mk(pre + f"buffer_load_dwordx4 {a(4*x,4)}, {v(vPL)}, {s(SWS,4)}, {s(sT1)} offen offset:{1024*(x & 3)} sc1")
        for x in range(10):
            S.add(pqload(x))
        S("@waittag kv\ns_barrier")
        self.stamp(S, 9)
        AC2, OF, DT = 216, 96, 176
        KF, WF = 160, 184
        def kvreads(H, m):
            cb = 2 * H + (m >> 1)
            fr = [cb * 6 + 2 * (m & 1), cb * 6 + 2 * (m & 1) + 1, cb * 6 + 4 + (m & 1)]
            return [I(f"ds_read_b128 {a(KF + 12*(m & 1) + 4*x, 4)}, {v(vKR)} offset:{1024*k}") for x, k in enumerate(fr)]
        def chain_mf(H, m, i):
            cb = 2 * H + (m >> 1)
            w0 = 20 * cb + 10 * i + 4 * (m & 1)
            d = DT + 16 * i
            k = KF + 12 * (m & 1)
            return mk(f"""{MF} {v(d,4)}, {a(k,4)}, {a(w0,4)}, 0
{MF} {v(d+4,4)}, {a(k+8,4)}, {a(w0,4)}, {v(EPSD,4)}
{MF} {v(d+8,4)}, {a(k+4,4)}, {a(w0+2,4)}, 0
{MF} {v(d+12,4)}, {a(k+8,4)}, {a(w0+2,4)}, {v(EPSD,4)}""")
        def chain_va(H, m, i):
            d = DT + 16 * i
            o = OF + 40 * (H & 1) + 20 * i
            t = f"v_rcp_f32 {v(d+5)}, {v(d+5)}\nv_rcp_f32 {v(d+15)}, {v(d+15)}\n"
            for e in range(5):
                ra, rb = (d + e, d + 8 + e) if e < 4 else (d + 4, d + 14)
                t += f"v_mul_f32 {v(ra)}, {v(ra)}, {v(d+5)}\nv_mul_f32 {v(rb)}, {v(rb)}, {v(d+15)}\n"
            for e in range(5):
                ra, rb = (d + e, d + 8 + e) if e < 4 else (d + 4, d + 14)
                t += f"v_cvt_pk_bf16_f32 {v(o + 4*e + m)}, {v(ra)}, {v(rb)}\n"
            return mk(t)
        def woreads(f):
            L = []
            for n in range(5):
                L += self.tr_frag(WF + 20 * (f & 1) + 4 * n, CH[(f % 10) >> 1] + (f & 1) * 10240, 5 * (f // 10) + n)
            return L
        def main_mf(f):
            H, e = f // 5, f % 5
            L = []
            for n in range(5):
                for i in range(2):
                    c = AC2 + (n * 2 + i) * 4
                    L.append(I(f"{MF} {v(c,4)}, {a(WF + 20*(f & 1) + 4*n, 4)}, {v(OF + 40*(H & 1) + 20*i + 4*e, 4)}, {'0' if f == 0 else v(c,4)}"))
            return L
        S.add(kvreads(0, 0))
        pend = []
        for H in range(5):
            mains = [x for e in range(5) for x in main_mf(5 * (H - 1) + e)] if H else []
            mrd = {}
            if H:
                for e in range(5):
                    f_ = 5 * (H - 1) + e
                    if f_ + 1 < 20:
                        for x, r in enumerate(woreads(f_ + 1)):
                            mrd.setdefault(10 * e + (x * 8) // 10, []).append(r)
            if H == 4:
                S.add(pend)
                pend = []
                for x, m_ in enumerate(mains):
                    S.add([m_] + mrd.get(x, []))
                break
            pq_next = [pqload(x) for x in range(10 * (H + 1), 10 * (H + 2))] if H < 3 else []
            mi = 0
            for un in range(8):
                m, i = un >> 1, un & 1
                bb = chain_mf(H, m, i)
                hi = (len(mains) * (un + 1)) // 8
                extra = []
                seq = [[x] for x in bb]
                while mi < hi:
                    seq.append([mains[mi]] + mrd.get(mi, []))
                    mi += 1
                fl = list(pend)
                side = []
                if i == 0:
                    nx = (H, m + 1) if m < 3 else (H + 1, 0)
                    if nx[0] < 4:
                        side += kvreads(*nx)
                if H == 0 and un == 6:
                    side += woreads(0)
                side += pq_next[(un * 10) // 8:((un + 1) * 10) // 8] if pq_next else []
                if un == 0 and H:
                    S.add(interleave(seq[:4], (fl, 0, 3)))
                    S.add(interleave(seq[4:], (side, 0, 99)))
                else:
                    S.add(interleave(seq, (fl, 0, 99), (side, 1, 99)))
                pend = chain_va(H, m, i)
        self.stamp(S, 10)
        self.store_out(S, AC2, "A")
        self.stamp(S, 11)
        self.dump_stamps(S)
        S("s_endpgm")
        return S


    def build(self):
        P = Stream()
        self.prologue(P)
        A = self.side_A()
        B = self.side_B()
        out = []
        tot = 0
        np_ = len(P.items)
        SA = Stream(); SA.items = P.items + A.items
        ia, na = finalize(SA)
        SB = Stream(); SB.items = P.items + B.items
        ib, nb = finalize(SB)
        k = next(i for i, x in enumerate(ib) if x.text == "L_sideB:")
        ka = next(i for i, x in enumerate(ia) if x.text.startswith("s_cbranch_scc1 L_sideB"))
        assert [x.text for x in ia[:ka + 1]] == [x.text for x in ib[:k]], "prologue mismatch"
        body = ia + ib[k:]
        hdr = open("concat_heads__linear_attn_block__ssm_conv_s5__prompt.s.ref").read().split("\n")
        hdr = [l for l in hdr if l.startswith(";") and "@launch" not in l]
        txt = "\n".join(hdr) + "\n; @launch grid=(256,1,1) block=(256,1,1) lds=163840\n"
        txt += f""".amdgcn_target "amdgcn-amd-amdhsa--gfx950"
.text
.globl {KN}
.p2align 8
.type {KN},@function
{KN}:
"""
        for x in body:
            txt += (x.text if x.kind == "label" else "    " + x.text) + "\n"
        txt += f"""L_end:
    s_endpgm
.section .rodata,"a"
.p2align 6
.amdhsa_kernel {KN}
  .amdhsa_next_free_vgpr 512
  .amdhsa_next_free_sgpr 102
  .amdhsa_accum_offset 256
  .amdhsa_group_segment_fixed_size 0
  .amdhsa_kernarg_size 120
  .amdhsa_user_sgpr_count 2
  .amdhsa_user_sgpr_kernarg_segment_ptr 1
  .amdhsa_system_sgpr_workgroup_id_x 1
.end_amdhsa_kernel
"""
        print(f"instructions: A {len(ia)} (nops {na}), B {len(ib)} (nops {nb})", file=sys.stderr)
        return txt


if __name__ == "__main__":
    import argparse
    ap = argparse.ArgumentParser()
    ap.add_argument("out")
    ap.add_argument("--ts", action="store_true")
    ap.add_argument("-o", action="append", default=[])
    ar = ap.parse_args()
    opt = {}
    for o in ar.o:
        k_, _, v_ = o.partition("=")
        opt[k_] = int(v_) if v_ else 1
    open(ar.out, "w").write(Gen(ar.ts, opt).build())
```

```python
import re

REG_RE = re.compile(r"^(-?)(?:abs\()?([vas])(\d+)\)?$")
RNG_RE = re.compile(r"^(-?)([vas])\[(\d+):(\d+)\]$")
TRANS = ("v_exp_f32", "v_log_f32", "v_rcp_f32", "v_rsq_f32", "v_sqrt_f32", "v_sin_f32", "v_cos_f32")


def regs_of(tok):
    tok = tok.strip()
    m = REG_RE.match(tok)
    if m:
        return [(m.group(2), int(m.group(3)))]
    m = RNG_RE.match(tok)
    if m:
        return [(m.group(2), i) for i in range(int(m.group(3)), int(m.group(4)) + 1)]
    if tok == "vcc":
        return [("s", "vcc")]
    if tok == "exec":
        return [("s", "exec")]
    if tok == "m0":
        return [("s", "m0")]
    return []


class I:
    def __init__(self, text, tag=None):
        self.text = text.strip()
        self.tag = tag
        self.kind = None
        self.defs = []
        self.uses = []
        self.srcc = []
        self.store_data = []
        self.parse()

    def parse(self):
        t = self.text
        if t.startswith("@need"):
            self.kind = "need"
            self.uses = [r for o in t.split()[1:] for r in regs_of(o)]
            return
        if t.startswith("@"):
            self.kind = "pseudo"
            return
        if t.startswith(";") or t == "":
            self.kind = "comment"
            return
        if t.endswith(":"):
            self.kind = "label"
            return
        t = t.split(";")[0].strip()
        sp = t.split(None, 1)
        op = sp[0]
        self.op = op
        rest = sp[1] if len(sp) > 1 else ""
        rest_nomod = re.sub(r"\b(op_sel|op_sel_hi|neg_lo|neg_hi|bitop3):(\[[^\]]*\]|\S+)", "", rest)
        ops = []
        for o in rest_nomod.split(","):
            o = o.strip()
            if o:
                ops.append(o.split()[0])
        R = [regs_of(o) for o in ops]
        flat = lambda L: [x for l in L for x in l]
        if op.startswith("v_mfma"):
            self.kind = "mfma"
            self.defs = R[0]
            self.uses = flat(R[1:])
            self.srcab = flat(R[1:3])
            self.srcc = R[3]
        elif op.startswith("ds_read") or op.startswith("ds_bpermute"):
            self.kind = "dsr"
            self.defs = R[0]
            self.uses = flat(R[1:])
        elif op.startswith("ds_write"):
            self.kind = "dsw"
            self.uses = flat(R)
        elif op.startswith("buffer_load"):
            if re.search(r"\blds\b", rest):
                self.kind = "dma"
                self.uses = flat(R) + [("s", "m0")]
            else:
                self.kind = "vld"
                self.defs = R[0]
                self.uses = flat(R[1:])
        elif op.startswith("buffer_store"):
            self.kind = "vst"
            self.uses = flat(R)
            if "x3" in op or "x4" in op:
                self.store_data = R[0]
        elif op.startswith("s_load") or op in ("s_memtime", "s_memrealtime"):
            self.kind = "smem"
            self.defs = R[0]
            self.uses = flat(R[1:])
        elif op in ("s_waitcnt",):
            self.kind = "wait"
        elif op in ("s_barrier",):
            self.kind = "barrier"
        elif op == "s_nop":
            self.kind = "nop"
            self.n = int(ops[0]) + 1
        elif op.startswith("s_cbranch") or op in ("s_branch", "s_endpgm"):
            self.kind = "branch"
            if "vcc" in op:
                self.uses = [("s", "vcc")]
        elif op.startswith("s_"):
            self.kind = "salu"
            if op.startswith("s_cmp") or op in ("s_setprio", "s_sleep"):
                self.uses = flat(R)
            else:
                self.defs = R[0]
                self.uses = flat(R[1:])
                if op in ("s_addk_i32", "s_mulk_i32"):
                    self.uses += R[0]
                if "saveexec" in op:
                    self.defs = R[0] + [("s", "exec")]
        elif op.startswith("v_"):
            self.kind = "valu"
            self.defs = R[0]
            self.uses = flat(R[1:])
            if op.startswith("v_fmac") or op.startswith("v_writelane"):
                self.uses += R[0]
            if "permlane" in op:
                self.defs = R[0] + R[1]
                self.uses = R[0] + R[1]
            self.trans = op.split("_e")[0] in TRANS or op in TRANS
            self.dpp = "row_" in rest or "quad_perm" in rest or "dpp" in op
        else:
            raise ValueError("unknown instruction: " + self.text)


class Stream:
    def __init__(self):
        self.items = []

    def __call__(self, text, tag=None):
        for l in text.split("\n"):
            if l.strip():
                self.items.append(I(l, tag))

    def add(self, items):
        for x in items:
            if isinstance(x, I):
                self.items.append(x)
            elif isinstance(x, (list, tuple)):
                self.add(x)
            else:
                self(x)


def mk(text, tag=None):
    return [I(l, tag) for l in text.split("\n") if l.strip()]


def insert_waits(items):
    out = []
    vm = []
    lg = []
    stats = {"waits": 0}

    def emit(nv, nl):
        parts = []
        if nv is not None:
            parts.append(f"vmcnt({min(nv, 63)})")
        if nl is not None:
            parts.append(f"lgkmcnt({min(nl, 15)})")
        if parts:
            if out and out[-1].kind == "wait" and getattr(out[-1], "gen", False):
                p = out.pop()
                nv2, nl2 = p.nv, p.nl
                nv = nv if nv2 is None else (nv2 if nv is None else min(nv, nv2))
                nl = nl if nl2 is None else (nl2 if nl is None else min(nl, nl2))
                parts = []
                if nv is not None:
                    parts.append(f"vmcnt({min(nv, 63)})")
                if nl is not None:
                    parts.append(f"lgkmcnt({min(nl, 15)})")
            w = I("s_waitcnt " + " ".join(parts))
            w.gen = True
            w.nv, w.nl = nv, nl
            out.append(w)
            stats["waits"] += 1

    for it in items:
        if it.kind == "pseudo":
            p = it.text.split()
            if p[0] == "@waittag":
                idx = [i for i, (d, t) in enumerate(vm) if t in p[1:]]
                if idx:
                    n = len(vm) - 1 - max(idx)
                    if n < 63:
                        emit(n, None)
                    del vm[: max(idx) + 1]
            elif p[0] == "@waitvm0":
                if vm:
                    emit(0, None)
                vm.clear()
            elif p[0] == "@waitlgkm0":
                if lg:
                    emit(None, 0)
                lg.clear()
            elif p[0] == "@drained":
                vm.clear()
            else:
                raise ValueError(it.text)
            continue
        if it.kind in ("comment", "label") or it.tag == "opaque":
            out.append(it)
            continue
        if it.kind == "wait":
            m = re.search(r"vmcnt\((\d+)\)", it.text)
            if m:
                n = int(m.group(1))
                if len(vm) > n:
                    del vm[: len(vm) - n]
            m = re.search(r"lgkmcnt\((\d+)\)", it.text)
            if m:
                n = int(m.group(1))
                if n == 0:
                    lg.clear()
                elif not any(s for _, s in lg) and len(lg) > n:
                    del lg[: len(lg) - n]
            out.append(it)
            continue
        touch = set(it.uses) | set(it.defs)
        nv = nl = None
        idx = [i for i, (d, t) in enumerate(vm) if d & touch]
        if idx:
            k = max(idx)
            n = len(vm) - 1 - k
            if n < 63:
                nv = n
            del vm[: k + 1]
        idx = [i for i, (d, s) in enumerate(lg) if d & touch]
        if idx:
            k = max(idx)
            if any(s for _, s in lg):
                nl = 0
                lg.clear()
            else:
                nl = len(lg) - 1 - k
                del lg[: k + 1]
        emit(nv, nl)
        if it.kind == "need":
            continue
        out.append(it)
        if it.kind in ("vld", "vst", "dma"):
            vm.append((set(it.defs), it.tag))
        elif it.kind in ("dsr", "dsw"):
            lg.append((set(it.defs), False))
        elif it.kind == "smem":
            lg.append((set(it.defs), True))
    return out


def isv(r):
    return r[0] in ("v", "a")


def need_states(p, c):
    n = 0
    pd, cu, cd = set(p.defs), set(c.uses), set(c.defs)
    if p.kind == "valu":
        pv = {r for r in pd if isv(r)}
        ps = {r for r in pd if not isv(r)}
        if c.kind == "mfma" and pv & cu:
            n = max(n, 2)
        if c.kind == "valu":
            if p.trans and pv & cu:
                n = max(n, 1)
            if ("permlane" in c.op or c.dpp) and pv & cu:
                n = max(n, 2)
            if c.op.startswith(("v_readlane", "v_readfirstlane")) and pv & cu:
                n = max(n, 1)
            if ps & cu:
                n = max(n, 4 if c.op.startswith(("v_readlane", "v_writelane")) else 2)
        if c.kind in ("vld", "vst", "dma") and ps & cu:
            n = max(n, 5)
        if c.kind in ("salu", "branch", "smem") and ps & cu:
            n = max(n, 4)
    elif p.kind == "mfma":
        if c.kind == "mfma":
            if pd & set(c.srcab):
                n = max(n, 8)
            if pd & set(c.srcc) and p.defs != c.srcc:
                n = max(n, 6)
            if pd & cd and not (pd & set(c.srcc)):
                n = max(n, 8)
        elif c.kind in ("valu", "vld", "vst", "dma", "dsr", "dsw"):
            if pd & (cu | cd):
                n = max(n, 8)
            if c.kind in ("valu", "vld", "dsr") and set(p.srcc) & cd:
                n = max(n, 3)
    elif p.kind == "salu":
        if ("s", "m0") in pd and c.kind == "dma":
            n = max(n, 1)
    elif p.kind == "vst":
        if set(p.store_data) & cd:
            n = max(n, 2)
    return n


def insert_nops(items):
    out = []
    added = 0
    for it in items:
        if it.kind in ("comment",):
            out.append(it)
            continue
        if it.kind == "label":
            out.append(it)
            continue
        need = 0
        dist = 0
        for p in reversed(out):
            if p.kind in ("comment", "label"):
                continue
            if dist >= 9:
                break
            r = need_states(p, it)
            if r > dist:
                need = max(need, r - dist)
            dist += p.n if p.kind == "nop" else 1
        if need:
            out.append(I(f"s_nop {need - 1}"))
            added += need
        out.append(it)
    return out, added


def finalize(stream):
    items = insert_waits(stream.items)
    items, added = insert_nops(items)
    return items, added


def interleave(backbone, *filler_plans):
    slots = [[] for _ in backbone]
    for items, start, end in filler_plans:
        n = len(items)
        if n == 0:
            continue
        end = min(end, len(backbone) - 1)
        span = end - start + 1
        for i, x in enumerate(items):
            slots[start + (i * span) // n].append(x)
    out = []
    for b, s in zip(backbone, slots):
        out.append(b)
        out.extend(s)
    return out


def groups(text):
    out = []
    for l in text.split("\n"):
        l = l.strip()
        if not l:
            continue
        if l.startswith("+"):
            out[-1].append(I(l[1:]))
        else:
            out.append([I(l)])
    return out
```

```python
import sys, struct
from fw import *

KN = "concat_heads__linear_attn_block__ssm_conv_s5__prompt_kernel"
K = 1024

WS_E = 0x010000
WS_HF = 0x040000
WS_PF = 0x060000
WS_AF = 0x080000
WS_KV = 0x0A0000
WS_XI = 0x0C0000
WS_P = 0x100000
WS_PQ = 0x400000
WS_H = 0x800000
WS_TS = 0x1000000
OOB = 0x80000000

SLOT = 36 * K
NSLOT = 4
CH = [80 * K, 0, 20 * K, 40 * K, 60 * K, 100 * K, 120 * K, 140 * K, 80 * K, 0]
SCAN = 108 * K
TBUF = 120 * K
XCH = 112 * K
XS = 10496
KVL = 112 * K

SX, SW, SC, SWS, SO, SD = 36, 40, 44, 48, 52, 56
SP0, SP1, SP2, SP3 = 60, 64, 68, 72
sW, sRB, sCB, sNON, sT0, sT1, sCNT = 76, 77, 78, 79, 80, 81, 82
sA128 = 83
sAW = 88
sHX0, sHX1, sHW0, sHW1 = 93, 94, 95, 96
sMX, sMW = 97, 98
sETA, sXCD = 99, 100
sT2 = 101
sSAME = 34
sF0, sF1 = 3, 35
SE = SP0

XA, WA, WQ, WO = 16, 20, 25, 30
RX, RW = 98, 39
vL16, vNA, vNV = 45, 46, 47
vXI = 104
ACC = 176
AX, AW = 0, 160

LOG2E = 1.4426950408889634
def f2u(x):
    return "0x%08x" % struct.unpack("<I", struct.pack("<f", x))[0]

def v(b, n=1): return f"v{b}" if n == 1 else f"v[{b}:{b+n-1}]"
def a(b, n=1): return f"a{b}" if n == 1 else f"a[{b}:{b+n-1}]"
def s(b, n=1): return f"s{b}" if n == 1 else f"s[{b}:{b+n-1}]"
MF = "v_mfma_f32_16x16x32_bf16"


class Gen:
    def __init__(self, ts=False, opt=None):
        self.ts = ts
        self.opt = opt or {}
        self.nlab = 0
        self.trn = {}
        self.cur = None
        self.lmod = {0: '', 1: ' nt', 2: ' sc1'}[self.opt.get('lmod', 0)]
        self.xmod = "" if self.opt.get("xnt", 1) == 0 else " nt"
        self.wmod = " nt" if self.opt.get("wnt", 0) else ""

    def lab(self, b):
        self.nlab += 1
        return f"L_{b}_{self.nlab}"

    def stamp(self, S, k):
        if "pi" in self.opt:
            if k == self.opt["pi"]: S("s_memrealtime s[4:5]")
            if k == self.opt["pj"]: S("s_memrealtime s[6:7]")
        if self.ts and (not self.opt.get("trace") or k == 11):
            assert k < 12
            S(f"s_memtime s[{4+2*k}:{5+2*k}]")

    def tr(self, S, region):
        if self.ts and self.opt.get("trace") == region:
            k = self.trn.get(id(self.cur), 0)
            if k < 11:
                S(f"s_memtime s[{4+2*k}:{5+2*k}]")
            self.trn[id(self.cur)] = k + 1

    def dump_stamps(self, S):
        if "pi" in self.opt:
            l1, l2 = self.lab("pr"), self.lab("pr")
            t0 = "s32" if self.opt["pi"] < 0 else "s4"
            S(f"""s_memrealtime s[8:9]
s_waitcnt lgkmcnt(0)
s_cmp_lg_u32 s2, {self.opt["pwg"]}
s_cbranch_scc1 {l2}
s_sub_u32 s10, s6, {t0}
s_mul_i32 s10, s10, {self.opt["pscale"]}
s_min_u32 s10, s10, 20000
{l1}:
s_memrealtime s[12:13]
s_waitcnt lgkmcnt(0)
s_sub_u32 s11, s12, s8
s_cmp_lt_u32 s11, s10
s_cbranch_scc1 {l1}
{l2}:""")
        if self.opt.get("protrace"):
            self.ts = True
            self.stamp(S, 11)
        if not self.ts:
            return
        S("s_memrealtime s[30:31]")
        S("s_waitcnt lgkmcnt(0)")
        S("v_mov_b32 v1, 0")
        for k in range(13):
            S(f"v_writelane_b32 v1, s{4+2*k}, {k}")
        S("v_writelane_b32 v1, s33, 13")
        S("v_writelane_b32 v1, s32, 14")
        S("v_writelane_b32 v1, s30, 15")
        S(f"s_lshl_b32 s3, s2, 10\ns_add_u32 s3, s3, {WS_TS}")
        S(f"v_lshl_add_u32 v2, v0, 2, s3")
        S(f"buffer_store_dword v1, v2, {s(SWS,4)}, 0 offen")

    def prologue(self, S):
        S("s_cmp_ge_u32 s2, 256\ns_cbranch_scc1 L_end")
        S("s_load_dwordx16 s[4:19], s[0:1], 0")
        S("s_load_dwordx8 s[20:27], s[0:1], 64")
        S("s_load_dwordx4 s[28:31], s[0:1], 96")
        S("s_load_dwordx2 s[32:33], s[0:1], 112")
        if self.ts or "pi" in self.opt:
            S("s_memrealtime s[34:35]")
        if self.ts:
            S(f"s_memtime s[{SP3}:{SP3+1}]")
        S(f"""v_lshrrev_b32 v2, 6, v0
v_and_b32 v1, 63, v0
v_readfirstlane_b32 {s(sW)}, v2
s_and_b32 {s(sXCD)}, s2, 7
s_lshr_b32 s3, s2, 3
s_lshr_b32 {s(sCB)}, s3, 2
s_and_b32 s3, s3, 3
s_and_b32 {s(sT0)}, {s(sXCD)}, 3
s_lshl_b32 {s(sRB)}, {s(sT0)}, 2
s_add_u32 {s(sRB)}, {s(sRB)}, s3
s_mul_i32 s3, s3, 20
s_mul_i32 {s(sT0)}, {s(sT0)}, 5
s_add_u32 s3, s3, {s(sT0)}
s_mul_i32 {s(sT0)}, {s(sCB)}, 10
s_add_u32 s3, s3, {s(sT0)}
s_lshr_b32 s3, s3, 3""")
        if self.opt.get("norot"):
            S("s_mov_b32 s3, 0")
        S(f"""s_sub_u32 {s(sT0)}, s3, 10
s_cselect_b32 s3, s3, {s(sT0)}
s_sub_u32 {s(sT0)}, s3, 5
s_cselect_b32 s3, s3, {s(sT0)}
s_cselect_b32 {s(sETA)}, 0, 1""")
        for c in range(5):
            S(f"""s_add_u32 {s(sT0)}, s3, {c}
s_sub_u32 {s(sT1)}, {s(sT0)}, 5
s_cselect_b32 {s(sT0)}, {s(sT0)}, {s(sT1)}
s_lshl_b32 {s(sA128+c)}, {s(sT0)}, 7""")
        S(f"""s_mul_i32 {s(sHX0)}, {s(sETA)}, 640
s_sub_u32 {s(sHX1)}, 640, {s(sHX0)}
s_lshl_b32 {s(sMX)}, {s(sW)}, 12
s_mul_i32 {s(sMW)}, {s(sW)}, 5120""")
        S(f"""v_lshrrev_b32 v2, 3, v1
v_lshrrev_b32 v3, 4, v1
v_and_b32 v4, 15, v1
v_and_b32 v5, 7, v1
v_xor_b32 v5, v5, v3
v_lshlrev_b32 v5, 4, v5
v_lshlrev_b32 {v(vL16)}, 4, v1
v_lshrrev_b32 v6, 1, v4
v_xor_b32 v6, v6, v3
v_lshlrev_b32 v6, 4, v6
v_lshl_add_u32 v6, v4, 7, v6
v_add_u32 {v(RX)}, {s(sMX)}, v6
v_xor_b32 {v(RX+3)}, 64, {v(RX)}
v_add_u32 {v(RX+1)}, 0x10000, {v(RX)}
v_add_u32 {v(RX+4)}, 0x10000, {v(RX+3)}""")
        S(f"""s_lshl_b32 s3, s2, 8
v_or_b32 v7, s3, v0
v_mov_b32 v8, {OOB}
v_cmp_eq_u32 vcc, 0, v7
v_cndmask_b32_e64 {v(vNA)}, v8, 0, vcc""")
        S(f"""s_lshl_b32 {s(sT0)}, {s(sRB)}, 7
s_lshl_b32 {s(sT1)}, {s(sW)}, 5
s_add_u32 {s(sT0)}, {s(sT0)}, {s(sT1)}
s_mul_i32 {s(sT2)}, {s(sT0)}, 1280""")
        S(f"s_cmp_ge_u32 {s(sXCD)}, 4\ns_cbranch_scc1 L_sideB")

    def srd(self, S, d, p, n):
        S(f"s_mov_b32 {s(d)}, {s(p)}\ns_mov_b32 {s(d+1)}, {s(p+1)}\ns_mov_b32 {s(d+2)}, {n}\ns_mov_b32 {s(d+3)}, 0x20000")

    def common_srds(self, S):
        self.srd(S, SWS, 32, "0x10000000")
        self.srd(S, SO, 28, 2048 * 5120)
        self.srd(S, SD, 30, 256)
        if self.ts or "pi" in self.opt:
            S("s_mov_b32 s32, s34")
        if self.ts:
            S(f"s_mov_b32 s33, s{SP3}")
            S("s_memtime s[28:29]")

    def x_addrs(self, S, side):
        if side == "A":
            S("v_mul_u32_u24 v7, 1280, v2")
            crow = [8 * i for i in range(4)]
        else:
            S("v_lshrrev_b32 v7, 5, v1\nv_and_b32 v8, 3, v2\nv_lshl_add_u32 v7, v7, 3, v8\nv_mul_u32_u24 v7, 1280, v7")
            crow = [16 * (i & 1) + 4 * (i >> 1) for i in range(4)]
        S(f"v_add3_u32 v7, v7, v5, {s(sT2)}\nv_xor_b32 v8, 64, v7")
        for i in range(4):
            S(f"v_add_u32 {v(XA+i)}, {crow[i]*1280 - 1024*i}, v{7 + (i & 1)}")

    def dma_stage(self, st, side):
        slot = (st % NSLOT) * SLOT
        tag = f"st{st}"
        hx = sHX0 if st < 5 else sHX1
        L = []
        for i in range(4):
            pre = f"s_add_u32 m0, {s(sMX)}, {slot}\ns_add_u32 {s(sT0)}, {s(sA128 + st % 5)}, {s(hx)}\n" if i == 0 else ""
            L.append(mk(pre + f"buffer_load_dwordx4 {v(XA+i)}, {s(SX,4)}, {s(sT0)} offen offset:{1024*i}{self.xmod} lds", tag))
        so = sT0
        pre2 = ""
        if side == "A":
            so = sT1
            hw = sHW0 if st < 5 else sHW1
            pre2 = f"s_add_u32 {s(sT1)}, {s(sAW + st % 5)}, {s(hw)}\n"
        L += self.dma_w(slot + 16 * K, WA, SW, so, tag, pre2, self.wmod)
        return L

    def dma_w(self, ldsbase, areg, srd, so, tag, pre2="", extra=""):
        L = []
        for i in range(5):
            pre = ""
            if i == 0:
                pre = f"s_add_u32 m0, {s(sMW)}, {ldsbase}\n" + pre2
            if i == 4:
                pre = f"s_add_u32 m0, {s(sMW)}, {ldsbase + 4096}\n"
            L.append(mk(pre + f"buffer_load_dwordx4 {v(areg+i)}, {s(srd,4)}, {s(so)} offen offset:{1024*(i&3)}{extra} lds", tag))
        return L

    def reads(self, h, side):
        st, kk = h >> 1, h & 1
        slot = (st % NSLOT) * SLOT
        fs = h & 1
        L = []
        for i in range(2):
            off = slot + 2048 * i
            L.append(I(f"ds_read_b128 {a(AX + (h*2+i)*4, 4)}, {v(RX + 3*kk + (off >> 16))} offset:{off & 0xffff}"))
        for n in range(10):
            d = AW + 40 * fs + 4 * n
            if side == "B":
                off = slot + 16 * K + 2048 * n
                L.append(I(f"ds_read_b128 {a(d,4)}, {v(RW + 3*kk + (off >> 16))} offset:{off & 0xffff}"))
            else:
                L += self.tr_frag(d, slot + 16 * K + kk * 10240, n)
        return L

    def tr_frag(self, d, base, u, dst="a"):
        L = []
        for j in range(2):
            off = base + 1280 * j + 32 * u
            r = a(d + 2 * j, 2) if dst == "a" else v(d + 2 * j, 2)
            L.append(I(f"ds_read_b64_tr_b16 {r}, {v(RW + 3*(u & 1) + (off >> 16))} offset:{off & 0xffff}"))
        return L

    def mfmas(self, h, side, epsq=None):
        L = []
        for n in range(10):
            for i in range(2):
                c = ACC + (n * 2 + i) * 4
                cin = v(c, 4)
                if h == 0:
                    cin = v(epsq, 4) if (side == "A" and n < 5) else "0"
                L.append(I(f"{MF} {v(c,4)}, {a(AX + (h*2+i)*4, 4)}, {a(AW + 40*(h & 1) + 4*n, 4)}, {cin}"))
        return L

    def nonce_make(self):
        return mk(f"""v_add_u32 {v(vNV)}, 0x9E3779B1, {v(vNV)}
v_cmp_eq_u32 vcc, 0, {v(vNV)}
v_cndmask_b32_e64 {v(vNV)}, {v(vNV)}, 1, vcc
buffer_store_dword {v(vNV)}, {v(vNA)}, {s(SWS,4)}, 0 offen sc1
buffer_store_dword {v(vNV)}, {v(vNA)}, {s(SD,4)}, 0 offen sc1""")

    def nonce_get(self, S):
        done = self.lab("nonce")
        lp = self.lab("nlp")
        S(f"v_readfirstlane_b32 {s(sNON)}, {v(vNV)}")
        S(f"""s_cmp_lg_u32 {s(sNON)}, 0
s_cbranch_scc1 {done}
s_mov_b32 {s(sCNT)}, 0x40000
{lp}:
buffer_load_dword {v(vNV)}, off, {s(SD,4)}, 0 sc1
s_waitcnt vmcnt(0)
v_readfirstlane_b32 {s(sNON)}, {v(vNV)}
s_cmp_lg_u32 {s(sNON)}, 0
s_cbranch_scc1 {done}
s_sub_u32 {s(sCNT)}, {s(sCNT)}, 1
s_cbranch_scc0 {lp}
{done}:""", tag="opaque")

    def mainloop(self, S, side, early, fill0, fill1, pf, tail, epsq=None, pf0=[]):
        S(f"buffer_load_dword {v(vNV)}, {v(vNA)}, {s(SWS,4)}, 0 offen sc1")
        S.add(self.dma_stage(0, side))
        S.add(early)
        d1 = self.dma_stage(1, side)
        S.add(d1[:2])
        S(f"v_add_u32 {v(RX+2)}, 0x20000, {v(RX)}\nv_add_u32 {v(RX+5)}, 0x20000, {v(RX+3)}")
        S(f"v_add_u32 {v(RW+2)}, 0x20000, {v(RW)}\nv_add_u32 {v(RW+5)}, 0x20000, {v(RW+3)}")
        S(f"""s_lshr_b32 s3, {s(sXCD)}, 2
s_lshl_b32 s3, s3, 4
s_add_u32 s3, s3, {s(sRB)}
s_lshl_b32 s3, s3, 10
s_add_u32 s3, s3, {WS_XI}
v_lshrrev_b32 v7, 3, v1
v_lshl_add_u32 {v(vXI+1)}, v7, 7, s3
s_lshl_b32 {s(sSAME)}, {s(sCB)}, 7
s_add_u32 s3, s3, {s(sSAME)}
v_mov_b32 v7, s3
v_mov_b32 v8, {OOB}
v_cmp_eq_u32 vcc, 0, v0
v_cndmask_b32 {v(vXI)}, v8, v7, vcc
s_getreg_b32 s3, hwreg(HW_REG_XCC_ID, 0, 4)
v_mov_b32 {v(vXI+3)}, s3""")
        S.add(fill0)
        S.add(d1[2:])
        S.add(pf0)
        self.stamp(S, 0)
        S("@waittag st0\ns_barrier")
        self.stamp(S, 1)
        S.add(self.reads(0, side))
        q = {h: [] for h in range(21)}
        q[0] = self.dma_stage(2, side)
        d = self.dma_stage(3, side)
        q[1] = [self.nonce_make()] + d[:5]
        q[2] = d[5:]
        for st in range(4, 10):
            d = self.dma_stage(st, side)
            q[2 * st - 5] += d[:5]
            q[2 * st - 4] += d[5:]
        q[12] += [mk(f"buffer_load_dword {v(vNV)}, off, {s(SD,4)}, 0 sc1")]
        q[15] += [mk(f"""v_mov_b32 {v(vXI+2)}, {s(sNON)}
buffer_store_dwordx2 {v(vXI+2,2)}, {v(vXI)}, {s(SWS,4)}, 0 offen sc1""")] + pf
        q[19] += tail
        f0, f1 = 0, self.opt.get("f1", 5)
        nf = len(fill1)
        for h in range(20):
            st = h >> 1
            if h & 1:
                if st + 1 < 10:
                    S(f"@waittag st{st+1}")
                if h == 19:
                    S("@waitlgkm0")
                S("s_barrier")
            if h == 15:
                self.nonce_get(S)
            if h in (5, 11):
                self.stamp(S, 2 if h == 5 else 3)
            rd = self.reads(h + 1, side) if h < 19 else []
            fl = []
            if f0 <= h <= f1:
                lo = (h - f0) * nf // (f1 - f0 + 1)
                hi = (h - f0 + 1) * nf // (f1 - f0 + 1)
                fl = fill1[lo:hi]
            mf = self.mfmas(h, side, epsq)
            last = a(AW + 40 * (h & 1) + 36, 4)
            if side == "B":
                mf[0] = [I(f"@need {last}"), mf[0]]
            else:
                mf[0] = [I(f"@need {a(AW + 40 * (h & 1) + 16, 4)}"), mf[0]]
                mf[8] = [I(f"@need {last}"), mf[8]]
            S.add(interleave(mf, (rd, 0, 11 if side == "B" else 14), (q[h], 1, 19), (fl, 2, 19)))

    def xi_load(self, d):
        return mk(f"buffer_load_dwordx2 {v(d,2)}, {v(vXI+1)}, {s(SWS,4)}, 0 offen sc1")

    def xi_eval(self, d):
        t = f"""v_cmp_ne_u64 vcc, {v(d,2)}, {v(vXI+2,2)}
s_cmp_eq_u64 vcc, 0
s_cselect_b32 {s(sSAME)}, 1, 0"""
        if self.opt.get("nosame"):
            t += f"\ns_mov_b32 {s(sSAME)}, 0"
        return mk(t)

    def two_way(self, S, text, tag=None):
        l1, l2 = self.lab("wt"), self.lab("j")
        S(f"s_cmp_eq_u32 {s(sSAME)}, 0\ns_cbranch_scc1 {l1}")
        S(text.replace("@M", ""), tag=tag)
        S(f"s_branch {l2}\n{l1}:")
        S(text.replace("@M", " sc1"), tag="opaque")
        S(f"{l2}:")

    def flag_store(self, S, ad):
        if self.opt.get("pflag", 1):
            self.two_way(S, f"buffer_store_dword v4, {v(ad)}, {s(SWS,4)}, 0 offen@M")
        else:
            S(f"buffer_store_dword v4, {v(ad)}, {s(SWS,4)}, 0 offen sc1")

    def poll_flags(self, S, areg, nloads, dreg, step=0):
        lp, done = self.lab("poll"), self.lab("pdone")
        S(f"s_mov_b32 {s(sCNT)}, 0x40000\n{lp}:")
        for k in range(nloads):
            S(f"buffer_load_dword {v(dreg+k)}, {v(areg+k)}, {s(SWS,4)}, 0 offen sc1")
        S("s_waitcnt vmcnt(0)")
        S(f"v_xor_b32 {v(dreg)}, {s(sNON)}, {v(dreg)}")
        for k in range(1, nloads):
            S(f"v_xor_b32 {v(dreg+k)}, {s(sNON)}, {v(dreg+k)}\nv_or_b32 {v(dreg)}, {v(dreg)}, {v(dreg+k)}")
        S(f"""v_cmp_ne_u32 vcc, 0, {v(dreg)}
s_cbranch_vccz {done}
s_sub_u32 {s(sCNT)}, {s(sCNT)}, 1
s_cbranch_scc0 {lp}
{done}:""")

    def out_addrs(self, S, side, base, r0):
        S(f"""v_and_b32 v4, 15, v0
v_bfe_u32 v3, v0, 4, 2
s_mul_i32 {s(sT0)}, {s(sW)}, 10752
s_add_u32 {s(sT0)}, {s(sT0)}, {base}
v_mul_u32_u24 v5, 336, v4
v_lshl_add_u32 v5, v3, 4, v5
v_add_u32 {v(r0)}, {s(sT0)}, v5
s_lshl_b32 {s(sT1)}, {s(sRB)}, 7
s_lshl_b32 {s(sT2)}, {s(sW)}, 5
s_add_u32 {s(sT1)}, {s(sT1)}, {s(sT2)}
s_mul_i32 {s(sT1)}, {s(sT1)}, 5120
s_mul_i32 {s(sT2)}, {s(sCB)}, 320
s_add_u32 {s(sT1)}, {s(sT1)}, {s(sT2)}
s_add_u32 {s(sT1)}, {s(sT1)}, {2560 if side == 'B' else 0}
v_and_b32 v3, 63, v0""")
        for m in range(5):
            S(f"""v_add_u32 v4, {64*m}, v3
v_mul_u32_u24 v5, 3277, v4
v_lshrrev_b32 v5, 16, v5
v_lshlrev_b32 v4, 4, v4
v_lshl_add_u32 v6, v5, 4, v4
v_add_u32 {v(r0+7+m)}, {s(sT0)}, v6
v_mul_u32_u24 v5, 4800, v5
v_add3_u32 {v(r0+2+m)}, v5, v4, {s(sT1)}""")
        S(f"s_mov_b32 {s(sHX0)}, {16*5120}")

    def store_out(self, S, acc, r0, tmp):
        m_ = {0: "", 1: " nt", 2: " sc1", 3: " sc0 sc1"}[self.opt.get("omod", 0)]
        for i in range(2):
            for n in range(5):
                S(f"ds_write_b128 {v(r0)}, {v(acc + (n*2+i)*4, 4)} offset:{64*n + 16*336*i}")
        for i in range(2):
            for m in range(5):
                S(f"ds_read_b128 {v(tmp + 4*(5*i+m), 4)}, {v(r0+7+m)} offset:{16*336*i}")
        for i in range(2):
            for m in range(5):
                S(f"buffer_store_dwordx4 {v(tmp + 4*(5*i+m), 4)}, {v(r0+2+m)}, {s(SO,4)}, {s(sHX0) if i else 0} offen{m_}")

    def side_B(self):
        S = Stream()
        self.cur = S
        S("L_sideB:")
        CST = 48
        CL8, CL128, CCF = 88, 90, 92
        vSCW, vSCC, vSCH, vEP, vTW, vTB, vHS, vHF, vHP = 25, 26, 27, 28, 29, 30, 32, 33, 34
        vSEG, vXS = 94, 95
        PRM = 136
        VE = 118
        VX = 96
        CW = 126
        vHW, vGRP, vDS = 128, 129, 131
        RC = 132
        XSA = 108
        BIG = 136
        self.x_addrs(S, "B")
        S(f"""s_and_b32 {s(sT0)}, {s(sW)}, 1
s_lshl_b32 {s(sT1)}, {s(sT0)}, 6
v_xor_b32 v7, {s(sT1)}, v5
s_mul_i32 {s(sT0)}, {s(sT0)}, 40
s_mul_i32 {s(sT1)}, {s(sCB)}, 80
s_add_u32 {s(sT0)}, {s(sT0)}, {s(sT1)}
s_mul_i32 {s(sT0)}, {s(sT0)}, 1280
v_mul_u32_u24 v8, 1280, v2
v_add3_u32 v7, v7, v8, {s(sT0)}
v_xor_b32 v8, 64, v7""")
        for i in range(5):
            S(f"v_add_u32 {v(WA+i)}, {8*i*1280 - 1024*(i & 3)}, v{7 + (i & 1)}")
        S(f"""v_subrev_u32 {v(RW)}, {s(sMX)}, {v(RX)}
v_xor_b32 {v(RW+3)}, 64, {v(RW)}
v_add_u32 {v(RW+1)}, 0x10000, {v(RW)}
v_add_u32 {v(RW+4)}, 0x10000, {v(RW+3)}""")
        S(f"""s_mul_i32 {s(sT0)}, {s(sCB)}, 160
v_lshl_add_u32 v9, v4, 1, {s(sT0)}
v_min_u32 v11, 59, v1
v_mul_u32_u24 {v(vGRP)}, 205, v11
v_lshrrev_b32 {v(vGRP)}, 12, {v(vGRP)}
v_mul_u32_u24 v8, 20, {v(vGRP)}
v_sub_u32 v11, v11, v8
s_mul_i32 {s(sT1)}, {s(sW)}, 20
v_add_u32 v11, {s(sT1)}, v11
v_lshl_add_u32 v10, v11, 1, {s(sT0)}""")
        self.srd(S, SX, 10, 2048 * 1280)
        S(f"""s_cmp_ge_u32 {s(sW)}, 2
s_cselect_b32 {s(SW)}, s18, s16
s_cselect_b32 {s(SW+1)}, s19, s17
s_cselect_b32 {s(SC)}, s22, s20
s_cselect_b32 {s(SC+1)}, s23, s21
s_mov_b32 {s(SW+2)}, {640*1280}
s_mov_b32 {s(SW+3)}, 0x20000""")
        self.common_srds(S)
        S(f"s_mov_b32 {s(SC+2)}, {640*1280}\ns_mov_b32 {s(SC+3)}, 0x20000")
        self.srd(S, SP0, 12, 1280)
        self.srd(S, SP1, 14, 1280)
        self.srd(S, SP2, 24, 1280)
        self.srd(S, SP3, 26, 1280)
        early = []
        for t in range(6):
            for k, sp in enumerate((SP0, SP1, SP2)):
                ad, off = ("v9", 32 * t) if t < 5 else ("v10", 0)
                early += mk(f"buffer_load_ushort {v(PRM + 3*t + k)}, {ad}, {s(sp,4)}, 0 offen offset:{off}")

        F = []
        def f(t): F.extend(groups(t))
        F0, F1 = s(sF0), s(sF1)
        f(f"""s_lshl_b32 {F0}, {s(sW)}, 2
v_add_u32 {v(vSEG)}, {F0}, v3
v_mul_u32_u24 v2, 640, {v(vSEG)}
v_lshl_add_u32 v2, v4, 3, v2
v_add_u32 {v(vSCW)}, {SCAN}, v2
v_lshlrev_b32 v2, 3, v11
v_add_u32 {v(vSCC)}, {SCAN}, v2
v_mul_u32_u24 v5, 640, {v(vGRP)}
v_add_u32 {v(vHW)}, {v(vSCC)}, v5
v_lshlrev_b32 v2, 3, v4
v_add_u32 {v(vSCH)}, {SCAN + 10240}, v2
v_lshlrev_b32 {v(vSEG)}, 3, {v(vSEG)}
v_cvt_f32_u32 {v(vSEG)}, {v(vSEG)}""")
        f(f"""s_mul_i32 {F0}, {s(sCB)}, 1280
s_mul_i32 {F1}, {s(sRB)}, 10240
s_add_u32 {F0}, {F0}, {F1}
v_lshl_add_u32 v2, v11, 4, {F0}
v_mov_b32 v5, {OOB}
v_cmp_gt_u32 vcc, 20, v1
+v_cndmask_b32 {v(vEP)}, v5, v2, vcc
v_mul_u32_u24 v5, 51200, {v(vGRP)}
v_add_u32 v2, v2, v5""")
        for j in range(5):
            f(f"v_add_u32 {v(VE+j)}, {((j - 15) * 10240) & 0xffffffff:#x}, v2")
        f(f"""s_mul_i32 {F0}, {s(sW)}, 10240
s_add_u32 {F0}, {F0}, {TBUF}
v_bfe_u32 v2, v4, 1, 2
v_lshrrev_b32 v5, 3, v4
v_lshlrev_b32 v5, 1, v5
v_xor_b32 v2, v2, v5
v_xor_b32 v2, v2, v3
v_lshlrev_b32 v2, 4, v2
v_lshl_add_u32 v2, v4, 6, v2
v_add_u32 {v(vTW)}, {F0}, v2
v_and_b32 v2, 1, v3
v_bfe_u32 v5, v1, 2, 2
v_lshl_add_u32 v6, v2, 3, v5
v_lshlrev_b32 v6, 6, v6
v_lshrrev_b32 v5, 1, v5
v_bfe_u32 v7, v1, 1, 1
v_xor_b32 v5, v5, v7
v_lshl_add_u32 v5, v2, 1, v5
v_lshl_add_u32 v6, v5, 4, v6
v_and_b32 v5, 1, v1
v_lshl_add_u32 v6, v5, 3, v6
v_lshrrev_b32 v5, 1, v3
v_lshl_add_u32 v6, v5, 10, v6
v_add_u32 {v(vTB)}, {F0}, v6
v_xor_b32 {v(vTB+1)}, 32, {v(vTB)}""")
        f(f"""s_lshl_b32 {F0}, {s(sRB)}, 2
s_add_u32 {F0}, {F0}, {s(sW)}
s_mul_i32 {s(sAW)}, {F0}, 81920
s_add_u32 {s(sAW)}, {s(sAW)}, {WS_H}
s_mul_i32 {F1}, {s(sCB)}, 10240
s_add_u32 {F1}, {F1}, {s(sAW)}
v_add_u32 {v(vHS)}, {F1}, {v(vL16)}
s_lshl_b32 {F0}, {F0}, 10
s_add_u32 {F0}, {F0}, {WS_HF}
v_lshrrev_b32 v2, 3, v1
v_lshlrev_b32 v2, 7, v2
v_add_u32 {v(vHP)}, {F0}, v2
s_lshl_b32 {F1}, {s(sCB)}, 7
s_add_u32 {F0}, {F0}, {F1}
v_mov_b32 v2, {F0}
v_mov_b32 v5, {OOB}
v_cmp_eq_u32 vcc, 0, v1
+v_cndmask_b32 {v(vHF)}, v5, v2, vcc""")
        f(f"""v_and_b32 v2, 1, v3
v_lshrrev_b32 v5, 1, v4
v_xor_b32 v2, v2, v5
v_lshlrev_b32 v2, 4, v2
v_lshl_add_u32 v2, v4, 7, v2
v_lshrrev_b32 v5, 1, v3
v_mul_u32_u24 v5, 10240, v5
v_add_u32 {v(RC)}, v5, v2
v_xor_b32 {v(RC+1)}, 32, {v(RC)}
v_xor_b32 {v(RC+2)}, 64, {v(RC)}
v_xor_b32 {v(RC+3)}, 96, {v(RC)}""")
        f(f"""s_lshl_b32 {F0}, {s(sRB)}, 7
s_lshl_b32 {F1}, {s(sW)}, 5
s_add_u32 {F0}, {F0}, {F1}
s_mul_i32 {F0}, {F0}, 1280
s_mul_i32 {F1}, {s(sCB)}, 160
v_lshl_add_u32 {v(vDS)}, v3, 3, {F1}
s_add_u32 {F0}, {F0}, {F1}
s_mul_i32 {F1}, {s(sW)}, 5120
s_add_u32 {s(sAW+4)}, {F1}, {76*K}
v_mul_u32_u24 v2, 160, v4
v_lshl_add_u32 v2, v3, 3, v2
v_add_u32 {v(vXS)}, {s(sAW+4)}, v2""")
        for m in range(5):
            f(f"""v_add_u32 v2, {64*m}, v1
v_mul_u32_u24 v5, 6554, v2
v_lshrrev_b32 v5, 16, v5
v_mul_u32_u24 v5, 1120, v5
v_lshl_add_u32 v5, v2, 4, v5
v_add_u32 v5, {(-1024*(m & 3)) & 0xffffffff:#x}, v5
v_add_u32 {v(XSA+m)}, {F0}, v5""")

        f(f"""s_lshr_b32 {F0}, s2, 3
s_mul_i32 {F0}, {F0}, 200
s_and_b32 {F1}, {s(sW)}, 1
s_mul_i32 {F1}, {F1}, 100
s_add_u32 {F0}, {F0}, {F1}
v_add_u32 v35, {F0}, v1
v_lshlrev_b32 v35, 7, v35
v_add_u32 v36, 8192, v35""")
        F_addr = F
        F = []

        def power(n, dr, di):
            t = ""
            if n is None:
                t += "v_mov_b32 v12, v8\nv_mov_b32 v13, v9\n"
            else:
                t += f"v_mul_f32 v12, {n}, v8\nv_mul_f32 v13, {n}, v9\n"
            t += f"""v_exp_f32 v12, v12
v_fract_f32 v13, v13
v_cos_f32 v14, v13
v_sin_f32 v15, v13
v_mul_f32 {v(dr)}, v12, v14
v_mul_f32 {v(di)}, v12, v15"""
            return t
        for t in range(6):
            lr, li, ld = PRM + 3 * t, PRM + 3 * t + 1, PRM + 3 * t + 2
            c = CST + 8 * t
            f(f"""v_lshlrev_b32 {v(ld)}, 16, {v(ld)}
v_lshlrev_b32 {v(lr)}, 16, {v(lr)}
v_lshlrev_b32 {v(li)}, 16, {v(li)}
v_mul_f32 v2, {f2u(LOG2E)}, {v(ld)}
v_exp_f32 v2, v2
v_cvt_pk_bf16_f32 v2, v2, v2
v_and_b32 v2, 0xffff0000, v2
v_mul_f32 v8, v2, {v(lr)}
v_mul_f32 v9, v2, {v(li)}
v_mul_f32 v8, {f2u(LOG2E)}, v8
v_mul_f32 v9, 0.15915494, v9""")
            Lr, Li = (c, c + 2) if t < 5 else (6, 7)
            cf = c + 4 if t < 5 else CCF
            f(power(None, Lr, Li))
            f(f"""v_add_f32 v2, -1.0, {v(Lr)}
v_mul_f32 v5, {v(lr)}, {v(lr)}
v_fmac_f32 v5, {v(li)}, {v(li)}
v_rcp_f32 v5, v5
v_mul_f32 v10, v2, {v(lr)}
v_fmac_f32 v10, {v(Li)}, {v(li)}
v_add_f32 v5, v5, v5
v_mul_f32 {v(cf)}, v10, v5
v_mul_f32 v10, {v(Li)}, {v(lr)}
v_fma_f32 v10, -v2, {v(li)}, v10
v_mul_f32 {v(cf+1)}, v10, v5""")
            if t < 5:
                f(f"""v_mul_f32 v2, {v(Li)}, {v(Li)}
v_fma_f32 {v(c+1)}, {v(Lr)}, {v(Lr)}, -v2
v_mul_f32 v2, {v(Lr)}, {v(Li)}
v_add_f32 {v(c+3)}, v2, v2""")
                f(power(v(vSEG), c + 6, c + 7))
            else:
                f(power(f2u(8.0), CL8, CL8 + 1))
                f(power(f2u(128.0), CL128, CL128 + 1))
                f(f"""v_sub_u32 v10, 2, {v(vGRP)}
v_mul_u32_u24 v10, 640, v10
v_cvt_f32_u32 v10, v10""")
                f(power("v10", 6, 7))
                f(f"""v_mul_f32 {v(CW)}, {v(CCF)}, v6
v_mul_f32 {v(CW+1)}, {v(CCF)}, v7
v_fma_f32 {v(CW)}, -{v(CCF+1)}, v7, {v(CW)}
v_fmac_f32 {v(CW+1)}, {v(CCF+1)}, v6""")
        f(f"""s_add_u32 {s(SE)}, {s(SWS)}, {WS_E}
+s_addc_u32 {s(SE+1)}, {s(SWS+1)}, 0
s_mov_b32 {s(SE+2)}, 163840""")

        def cchunk(k):
            pre = f"""s_add_u32 {s(sT1)}, {s(sAW+2)}, {k}
s_sub_u32 {s(sT2)}, {s(sT1)}, 10
s_cselect_b32 {s(sT1)}, {s(sT1)}, {s(sT2)}
s_lshl_b32 {s(sT1)}, {s(sT1)}, 7
"""
            return self.dma_w(CH[k], WA, SC, sT1, f"c{k}", pre)
        S(f"s_mul_i32 {s(sAW+2)}, {s(sCB)}, 5\ns_lshr_b32 {s(sAW+2)}, {s(sAW+2)}, 2")
        pf = [mk(f"buffer_load_dword v{37+k}, v{35+k}, {s(SC,4)}, 0 offen") for k in range(2)]
        xs = []
        for m in range(5):
            pre = f"s_add_u32 m0, {s(sAW+4)}, {4096*(m >> 2)}\n" if (m & 3) == 0 else ""
            xs.append(mk(pre + f"buffer_load_dwordx4 {v(XSA+m)}, {s(SX,4)}, 0 offen offset:{1024*(m & 3)} lds", "xs"))
        F_addr += [mk(f"buffer_load_dwordx2 {a(240 + 2*n, 2)}, {v(vDS)}, {s(SP3,4)}, 0 offen offset:{32*n}") for n in range(5)]
        xr = [mk("@waittag xs")] + [mk(f"ds_read_b64 {a(2*(5*i+n), 2)}, {v(vXS)} offset:{32*n + 2560*i}") for i in range(2) for n in range(5)]
        pt = []
        if self.opt.get("pretouch", 1):
            F_addr += groups(f"""v_mul_u32_u24 v2, 112, v1
v_add_u32 v123, {v(vHS)}, v2
v_add_u32 v124, 8192, v123
v_mov_b32 v5, {OOB}
v_cmp_gt_u32 vcc, 16, v1
+v_cndmask_b32 v124, v5, v124, vcc""")
            pt = [mk(f"buffer_load_dword v{125+5*k}, v{123+k}, {s(SWS,4)}, 0 offen nt") for k in range(2)]
        self.mainloop(S, "B", early, F_addr, F, xs + (pf + pt if self.opt.get("ptlast", 1) else pt + pf), xr)
        self.stamp(S, 4)

        re = lambda t, k: ACC + (t * 2 + (k >> 1)) * 4 + 2 * (k & 1)
        im = lambda t, k: ACC + ((t + 5) * 2 + (k >> 1)) * 4 + 2 * (k & 1)
        HI = "op_sel:[1,0,0] op_sel_hi:[1,1,1]"
        NEG = "neg_lo:[1,0,0] neg_hi:[1,0,0]"
        T0 = BIG
        cur = None
        for k in range(1, 4):
            dst = T0 if k & 1 else BIG + 20
            for t in range(5):
                c = CST + 8 * t
                sr, si = (re(t, 0), im(t, 0)) if k == 1 else (cur + 4 * t, cur + 4 * t + 2)
                S(f"v_pk_fma_f32 {v(dst+4*t,2)}, {v(c,2)}, {v(sr,2)}, {v(re(t,k),2)} {HI}")
                S(f"v_pk_fma_f32 {v(dst+4*t+2,2)}, {v(c,2)}, {v(si,2)}, {v(im(t,k),2)} {HI}")
            for t in range(5):
                c = CST + 8 * t
                sr, si = (re(t, 0), im(t, 0)) if k == 1 else (cur + 4 * t, cur + 4 * t + 2)
                S(f"v_pk_fma_f32 {v(dst+4*t,2)}, {v(c+2,2)}, {v(si,2)}, {v(dst+4*t,2)} {HI} {NEG}")
                S(f"v_pk_fma_f32 {v(dst+4*t+2,2)}, {v(c+2,2)}, {v(sr,2)}, {v(dst+4*t+2,2)} {HI}")
            cur = dst
        EE = BIG + 20
        for t in range(5):
            c, b = CST + 8 * t, cur + 4 * t
            S(f"v_fma_f32 {v(EE+2*t)}, {v(c)}, {v(b)}, {v(b+1)}\nv_fma_f32 {v(EE+2*t+1)}, {v(c)}, {v(b+2)}, {v(b+3)}")
        for t in range(5):
            c, b = CST + 8 * t, cur + 4 * t
            S(f"v_fma_f32 {v(EE+2*t)}, -{v(c+2)}, {v(b+2)}, {v(EE+2*t)}\nv_fmac_f32 {v(EE+2*t+1)}, {v(c+2)}, {v(b)}")
            S(f"ds_write_b64 {v(vSCW)}, {v(EE+2*t,2)} offset:{128*t}")
        S("@waitlgkm0\ns_barrier")
        ch = lambda j: BIG + 2 * j
        for j in range(16):
            S(f"ds_read_b64 {v(ch(j),2)}, {v(vSCC)} offset:{640*j}")
        for j in range(1, 16):
            p, c = ch(j - 1), ch(j)
            S(f"""v_fmac_f32 {v(c)}, {v(CL8)}, {v(p)}
v_fmac_f32 {v(c+1)}, {v(CL8)}, {v(p+1)}
v_fma_f32 {v(c)}, -{v(CL8+1)}, {v(p+1)}, {v(c)}
v_fmac_f32 {v(c+1)}, {v(CL8+1)}, {v(p)}""")
            if j == 1:
                S(f"v_mov_b32 {v(BIG+32)}, {s(sNON)}\nv_mov_b32 {v(BIG+33)}, {s(sNON)}")
        S(f"buffer_store_dwordx4 {v(BIG+30,4)}, {v(vEP)}, {s(SE,4)}, 0 offen sc1")
        self.stamp(S, 5)
        S_main = S
        S = Stream()
        S(f"v_mov_b32 v2, 0\nv_mov_b32 v3, 0\nds_write_b64 {v(vSCC)}, v[2:3]")
        for j in range(15):
            c = ch(j)
            d = 4 + 2 * (j & 3)
            S(f"""v_mul_f32 {v(d)}, {v(CCF)}, {v(c)}
v_mul_f32 {v(d+1)}, {v(CCF)}, {v(c+1)}
v_fma_f32 {v(d)}, -{v(CCF+1)}, {v(c+1)}, {v(d)}
v_fmac_f32 {v(d+1)}, {v(CCF+1)}, {v(c)}
ds_write_b64 {v(vSCC)}, {v(d,2)} offset:{640*(j+1)}""")
        LO = "op_sel:[0,0] op_sel_hi:[0,1]"
        for t in range(5):
            cf = CST + 8 * t + 4
            for k in range(4):
                d = 2 + 2 * (k & 1)
                S(f"""v_pk_mul_f32 {v(d,2)}, {v(cf,2)}, {v(re(t,k),2)} op_sel:[1,0] op_sel_hi:[1,1]
v_pk_mul_f32 {v(re(t,k),2)}, {v(cf,2)}, {v(re(t,k),2)} {LO}
v_pk_fma_f32 {v(re(t,k),2)}, {v(cf,2)}, {v(im(t,k),2)}, {v(re(t,k),2)} {HI} {NEG}
v_pk_fma_f32 {v(im(t,k),2)}, {v(cf,2)}, {v(im(t,k),2)}, {v(d,2)} op_sel:[0,0,0] op_sel_hi:[0,1,1]""")
        for x in range(7, 0, -1):
            for t in range(5):
                c = CST + 8 * t
                ur, ui = re(t, x >> 1) + (x & 1), im(t, x >> 1) + (x & 1)
                pr, pi = re(t, (x - 1) >> 1) + ((x - 1) & 1), im(t, (x - 1) >> 1) + ((x - 1) & 1)
                S(f"""v_fmac_f32 {v(ur)}, {v(c)}, {v(pr)}
v_fmac_f32 {v(ui)}, {v(c)}, {v(pi)}
v_fma_f32 {v(ur)}, -{v(c+2)}, {v(pi)}, {v(ur)}
v_fmac_f32 {v(ui)}, {v(c+2)}, {v(pr)}""")
        cq = [self.xi_load(36)] + [x for k in range(5) for x in cchunk(k)]
        S_main.add(interleave(S.items, (cq, 4, len(S.items) - 40)))
        S = S_main
        SL = 108
        S("@waitlgkm0\ns_barrier")
        for t in range(5):
            S(f"ds_read_b64 {v(SL+2*t,2)}, {v(vSCW)} offset:{128*t}")
        self.stamp(S, 6)
        S.add(self.xi_eval(36))
        S(f"v_mov_b32 v2, {s(sNON)}")
        for j in range(5):
            S(f"v_cmp_le_i32 vcc, 0, {v(VE+j)}\nv_cndmask_b32_e64 {v(VX+j)}, 0, v2, vcc")
        S("@waitlgkm0")
        lp, done = self.lab("epoll"), self.lab("edone")
        S(f"s_mov_b32 {s(sCNT)}, 0x40000\n{lp}:")
        for j in range(5):
            S(f"buffer_load_dwordx4 {v(BIG+4*j,4)}, {v(VE+j)}, {s(SE,4)}, 0 offen sc1")
        S("s_waitcnt vmcnt(0)")
        for j in range(5):
            d, hp = BIG + 4 * j, BIG + 4 * j - 4
            S(f"v_xor_b32 {v(d+2)}, {v(d+2)}, {v(VX+j)}")
            if j:
                S(f"""v_fmac_f32 {v(d)}, {v(CL128)}, {v(hp)}
v_fmac_f32 {v(d+1)}, {v(CL128)}, {v(hp+1)}
v_or_b32 {v(d+2)}, {v(d+2)}, {v(hp+2)}
v_fma_f32 {v(d)}, -{v(CL128+1)}, {v(hp+1)}, {v(d)}
v_fmac_f32 {v(d+1)}, {v(CL128+1)}, {v(hp)}""")
        hp = BIG + 16
        S(f"""v_cmp_ne_u32 vcc, 0, {v(hp+2)}
v_mul_f32 v4, {v(CW)}, {v(hp)}
v_mul_f32 v5, {v(CW)}, {v(hp+1)}
v_fma_f32 v4, -{v(CW+1)}, {v(hp+1)}, v4
v_fmac_f32 v5, {v(CW+1)}, {v(hp)}
s_cbranch_vccz {done}
s_sub_u32 {s(sCNT)}, {s(sCNT)}, 1
s_cbranch_scc0 {lp}
{done}:""")
        S(f"""ds_write_b64 {v(vHW)}, v[4:5] offset:10240
@waitlgkm0
s_barrier""")
        self.stamp(S, 7)
        HH = BIG
        for t in range(5):
            for g in range(3):
                S(f"ds_read_b64 {v(HH+10*g+2*t,2)}, {v(vSCH)} offset:{128*t + 640*g}")
        for g in (1, 2):
            for t in range(5):
                S(f"v_pk_add_f32 {v(HH+2*t,2)}, {v(HH+2*t,2)}, {v(HH+10*g+2*t,2)}")
        for t in range(5):
            ls, h_, sl = CST + 8 * t + 6, HH + 2 * t, SL + 2 * t
            S(f"""v_fmac_f32 {v(sl)}, {v(ls)}, {v(h_)}
v_fmac_f32 {v(sl+1)}, {v(ls)}, {v(h_+1)}
v_fma_f32 {v(sl)}, -{v(ls+1)}, {v(h_+1)}, {v(sl)}
v_fmac_f32 {v(sl+1)}, {v(ls+1)}, {v(h_)}""")
        for t in range(5):
            c, sl = CST + 8 * t, SL + 2 * t
            S(f"v_pk_fma_f32 {v(re(t,0),2)}, {v(c,2)}, {v(sl,2)}, {v(re(t,0),2)} op_sel:[0,0,0] op_sel_hi:[1,0,1]")
            S(f"v_pk_fma_f32 {v(im(t,0),2)}, {v(c,2)}, {v(sl,2)}, {v(im(t,0),2)} op_sel:[0,1,0] op_sel_hi:[1,1,1]")
        for t in range(5):
            c, sl = CST + 8 * t, SL + 2 * t
            S(f"v_pk_fma_f32 {v(re(t,0),2)}, {v(c+2,2)}, {v(sl,2)}, {v(re(t,0),2)} op_sel:[0,1,0] op_sel_hi:[1,1,1] {NEG}")
            S(f"v_pk_fma_f32 {v(im(t,0),2)}, {v(c+2,2)}, {v(sl,2)}, {v(im(t,0),2)} op_sel:[0,0,0] op_sel_hi:[1,0,1]")
        for k in range(1, 4):
            for t in range(5):
                c = CST + 8 * t
                S(f"v_pk_fma_f32 {v(re(t,k),2)}, {v(c,2)}, {v(re(t,k-1),2)}, {v(re(t,k),2)} {HI}")
                S(f"v_pk_fma_f32 {v(im(t,k),2)}, {v(c,2)}, {v(im(t,k-1),2)}, {v(im(t,k),2)} {HI}")
            for t in range(5):
                c = CST + 8 * t
                S(f"v_pk_fma_f32 {v(re(t,k),2)}, {v(c+2,2)}, {v(im(t,k-1),2)}, {v(re(t,k),2)} {HI} {NEG}")
                S(f"v_pk_fma_f32 {v(im(t,k),2)}, {v(c+2,2)}, {v(re(t,k-1),2)}, {v(im(t,k),2)} {HI}")
        CV = 48
        for t in range(5):
            for ri in range(2):
                d = CV + 4 * (2 * t + ri)
                for k in range(4):
                    r = re(t, k) if ri == 0 else im(t, k)
                    n = "" if ri == 0 else "-"
                    S(f"v_cvt_pk_bf16_f32 {v(d+k)}, {n}{v(r)}, {n}{v(r+1)}")
                S(f"ds_write_b128 {v(vTW)}, {v(d,4)} offset:{1024*(2*t+ri)}")
        HFR = ACC
        for t in range(5):
            for i in range(2):
                d = HFR + 4 * (2 * t + i)
                for j in range(2):
                    S(f"ds_read_b64_tr_b16 {v(d+2*j,2)}, {v(vTB + (i ^ j))} offset:{2048*t + 256*j}")
        S(f"v_add_u32 v2, 4096, {v(vHS)}\nv_add_u32 v3, 8192, {v(vHS)}")
        S("@waitlgkm0")
        self.two_way(S, "\n".join(f"buffer_store_dwordx4 {v(HFR+4*m,4)}, {[v(vHS), 'v2', 'v3'][m >> 2]}, {s(SWS,4)}, 0 offen offset:{1024*(m & 3)}@M" for m in range(10)), "hst")
        S("s_barrier")
        S(f"v_mov_b32 v4, {s(sNON)}")
        S("@waittag hst")
        self.flag_store(S, vHF)
        self.stamp(S, 8)
        XK, DK = 48, 68
        for x in range(30):
            S(f"v_accvgpr_read_b32 {v(XK + x)}, {a(x if x < 20 else 220 + x)}")
        for k in (5, 6, 7):
            S.add(cchunk(k))
        AC2 = ACC + 40
        for n in range(5):
            S(f"""v_lshlrev_b32 v4, 16, {v(DK+2*n)}
v_and_b32 v5, 0xffff0000, {v(DK+2*n)}
v_lshlrev_b32 v6, 16, {v(DK+2*n+1)}
v_and_b32 v7, 0xffff0000, {v(DK+2*n+1)}""")
            for i in range(2):
                x = XK + 2 * (5 * i + n)
                c = AC2 + (n * 2 + i) * 4
                S(f"""v_lshlrev_b32 v8, 16, {v(x)}
v_and_b32 v9, 0xffff0000, {v(x)}
v_lshlrev_b32 v10, 16, {v(x+1)}
v_and_b32 v11, 0xffff0000, {v(x+1)}
v_pk_mul_f32 v[8:9], v[8:9], v[4:5]
v_pk_mul_f32 v[10:11], v[10:11], v[6:7]
v_cvt_pk_bf16_f32 v12, v8, v9
v_cvt_pk_bf16_f32 v13, v10, v11
v_lshlrev_b32 {v(c)}, 16, v12
v_and_b32 {v(c+1)}, 0xffff0000, v12
v_lshlrev_b32 {v(c+2)}, 16, v13
v_and_b32 {v(c+3)}, 0xffff0000, v13""")
        S(f"v_add_u32 v14, {s(sAW)}, {v(vL16)}\nv_add_u32 v15, 4096, v14")
        for k in range(3):
            for j in range(4):
                S(f"v_add_u32 {v(96 + 4*k + j)}, {k * 0x10000}, {v(RC + j)}")
        self.out_addrs(S, "B", 20 * K, 48)
        self.poll_flags(S, vHP, 1, 4)
        self.stamp(S, 9)
        DEPTH = self.opt.get("hdepth", 6)
        def hload(u):
            c, tl = u >> 2, u & 3
            L = []
            pre = ""
            if tl == 0:
                pre = f"""s_add_u32 {s(sT0)}, {s(sAW+2)}, {c}
s_sub_u32 {s(sAW+3)}, {s(sT0)}, 10
s_cselect_b32 {s(sT0)}, {s(sT0)}, {s(sAW+3)}
s_lshl_b32 {s(sT0)}, {s(sT0)}, 13
"""
            for i in range(2):
                off = tl * 2048 + i * 1024
                d = ((u % 32) * 2 + i) * 4
                L.append(mk(pre + f"buffer_load_dwordx4 {a(d,4)}, v{14 + (off >> 12)}, {s(SWS,4)}, {s(sT0)} offen offset:{off & 4095}{self.lmod}"))
                pre = ""
            return L
        CF = 108
        def creads(u):
            c, tl = u >> 2, u & 3
            L = []
            for n in range(5):
                off = CH[c] + 2048 * n
                L.append(I(f"ds_read_b128 {v(CF + 20*(u & 1) + 4*n, 4)}, {v(96 + 4*(off >> 16) + tl)} offset:{off & 0xffff}"))
            return L
        for u in range(DEPTH):
            S.add(hload(u))
        S("@waittag c0 c1 c2 c3 c4 c5 c6 c7\ns_barrier")
        S.add(creads(0))
        for u in range(40):
            pre = []
            if u % 4 == 0:
                self.tr(S, 1)
            if u == 7:
                S("@waitlgkm0\ns_barrier")
            if u == 31:
                S("@waittag c8 c9\ns_barrier")
            mf = []
            for n in range(5):
                for i in range(2):
                    c = AC2 + (n * 2 + i) * 4
                    mf.append(I(f"{MF} {v(c,4)}, {v(CF + 20*(u & 1) + 4*n, 4)}, {a(((u % 32)*2+i)*4, 4)}, {v(c,4)}"))
            ld = hload(u + DEPTH) if u + DEPTH < 40 else []
            if 8 <= u < 18:
                ld = ld + [(cchunk(8) + cchunk(9))[u - 8]]
            rd = creads(u + 1) if u < 39 else []
            S.add(interleave(mf, (rd, 0, 4), (ld, 2, 9)))
        self.stamp(S, 10)
        self.store_out(S, AC2, 48, 176)
        self.stamp(S, 11)
        self.dump_stamps(S)
        S("s_endpgm")
        return S

    def phi_pairs(self, S, pairs, EPS, CPH):
        G = 4
        for b in range(0, len(pairs), G):
            blk = pairs[b:b + G]
            for x, (c, d) in enumerate(blk):
                S(f"v_pk_fma_f32 {v(2+2*x,2)}, {v(c,2)}, {v(CPH,2)}, {v(CPH,2)} op_sel:[0,0,1] op_sel_hi:[1,0,1]")
            for x, (c, d) in enumerate(blk):
                S(f"v_exp_f32 {v(2+2*x)}, {v(2+2*x)} clamp\nv_max_f32 {v(c)}, {v(EPS)}, {v(c)}")
                S(f"v_exp_f32 {v(3+2*x)}, {v(3+2*x)} clamp\nv_max_f32 {v(c+1)}, {v(EPS)}, {v(c+1)}")
            for x, (c, d) in enumerate(blk):
                S(f"v_pk_add_f32 {v(c,2)}, {v(c,2)}, {v(2+2*x,2)}")
            for x, (c, d) in enumerate(blk):
                S(f"v_cvt_pk_bf16_f32 {v(d)}, {v(c)}, {v(c+1)}")

    def side_A(self):
        S = Stream()
        self.cur = S
        EPSQ, CPH, EPSD = 48, 52, 56
        vXW, PKS, PKO, PKX, V0, V1O, V1X = 60, 61, 62, 63, 64, 65, 66
        PS, PO, P2, vRL, vBP, vKF, vKL, vOS, vOS2, vOL, vOF, vOP, vRX, vK3 = 67, 68, 69, 70, 71, 72, 73, 74, 75, 76, 77, 78, 79, 80
        UQ = 82
        sWO = SP0
        sC4K = SP0 + 5
        self.x_addrs(S, "A")
        S(f"""s_mul_i32 {s(sT0)}, {s(sW)}, {16*3840}
s_mul_i32 {s(sT1)}, {s(sCB)}, 160
s_add_u32 {s(sT0)}, {s(sT0)}, {s(sT1)}""")
        for i in range(5):
            r, h, c = UQ + 3 * i, UQ + 3 * i + 1, UQ + 3 * i + 2
            S(f"""v_add_u32 v7, {64*i}, v1
v_mul_u32_u24 {v(r)}, 3277, v7
v_lshrrev_b32 {v(r)}, 16, {v(r)}
v_mul_u32_u24 v8, 20, {v(r)}
v_sub_u32 v7, v7, v8
v_lshrrev_b32 v8, 1, v7
v_lshrrev_b32 v9, 3, {v(r)}
v_xor_b32 v8, v8, v9
v_add_u32 {v(h)}, 3, v8
v_lshrrev_b32 {v(h)}, 3, {v(h)}
v_mul_u32_u24 v9, 5, {v(h)}
v_sub_u32 v8, v8, v9
v_and_b32 v7, 1, v7
v_lshlrev_b32 v7, 4, v7
v_lshl_add_u32 {v(c)}, v8, 5, v7
v_mul_u32_u24 v7, 3840, {v(r)}
v_mul_u32_u24 v8, 1280, {v(h)}
v_add3_u32 v7, v7, v8, {v(c)}
v_add_u32 v7, {s(sT0)}, v7
v_add_u32 {v(WA+i)}, {1280 - 1024*(i & 3) & 0xffffffff:#x}, v7""")
        for c in range(5):
            S(f"s_mul_i32 {s(sAW+c)}, {s(sA128+c)}, 1920")
        S(f"s_mul_i32 {s(sHW0)}, {s(sHX0)}, 1920\ns_mul_i32 {s(sHW1)}, {s(sHX1)}, 1920")
        S(f"""v_bfe_u32 v7, v1, 2, 2
v_lshl_add_u32 v7, v3, 3, v7
v_mul_u32_u24 v7, 320, v7
v_and_b32 v8, 3, v1
v_lshl_add_u32 v7, v8, 3, v7
v_and_b32 v8, 1, v3
v_lshlrev_b32 v8, 5, v8
v_add_u32 {v(RW)}, v7, v8
v_sub_u32 {v(RW+3)}, v7, v8
v_add_u32 {v(RW+1)}, 0x10000, {v(RW)}
v_add_u32 {v(RW+4)}, 0x10000, {v(RW+3)}""")
        for k in range(4):
            S(f"v_mov_b32 {v(EPSQ+k)}, {f2u(1e-6)}")
        self.srd(S, SX, 4, 2048 * 1280)
        self.srd(S, SW, 6, 640 * 3840)
        self.common_srds(S)
        self.srd(S, SC, 8, 640 * 1280)

        F = []
        def f(t): F.extend(groups(t))
        F0, F1 = s(sF0), s(sF1)
        f(f"""s_mul_i32 {F0}, {s(sW)}, {16*3840}
s_mul_i32 {F1}, {s(sCB)}, 160
s_add_u32 {F0}, {F0}, {F1}""")
        for i in range(5):
            r, h, c = UQ + 3 * i, UQ + 3 * i + 1, UQ + 3 * i + 2
            f(f"""v_xor_b32 v7, {s(sETA)}, {v(h)}
v_mul_u32_u24 v7, 320, v7
v_add_u32 v7, v7, {v(r)}
v_mul_u32_u24 v7, 3840, v7
v_add3_u32 v7, v7, {v(c)}, {F0}
v_subrev_u32 {v(WQ+i)}, {1024*(i & 3)}, v7""")
        f(f"s_lshl_b32 {F0}, {s(sW)}, 1")
        for i in range(5):
            r, h, c = UQ + 3 * i, UQ + 3 * i + 1, UQ + 3 * i + 2
            f(f"""v_lshrrev_b32 v7, 3, {v(r)}
v_add_u32 v7, {F0}, v7
v_and_b32 v7, 3, v7
v_mul_u32_u24 v7, 5, v7
v_and_b32 v8, 3, {v(r)}
v_mul_u32_u24 v8, 20, v8
v_bfe_u32 v10, {v(r)}, 2, 1
v_mul_u32_u24 v9, 80, {v(h)}
v_add3_u32 v7, v7, v8, v9
v_add_u32 v7, v7, v10
v_mul_u32_u24 v7, 1280, v7
v_add3_u32 v7, v7, {v(c)}, {F1}
v_subrev_u32 {v(WO+i)}, {1024*(i & 3)}, v7
v_mul_u32_u24 v10, 79, v10
v_mul_u32_u24 v9, 3, v9
v_add_u32 v10, v10, v9
v_mul_u32_u24 {v(r)}, 1280, v10""")
        f(f"s_lshr_b32 {F0}, {s(sW)}, 1\ns_mul_i32 {F1}, {F0}, 2560")
        for c in range(4):
            f(f"s_add_u32 {s(sWO+c)}, {F1}, {160*1280*c}")
        f(f"s_mul_i32 {F0}, {F0}, {160*1280}\ns_add_u32 {s(sWO+4)}, {F0}, {4*1280}")
        f(f"""s_movk_i32 {s(sC4K)}, 0x1000
s_movk_i32 {s(sC4K+1)}, 0x2000
v_mov_b32 {v(CPH)}, {f2u(LOG2E)}
v_mov_b32 {v(CPH+1)}, {f2u(-1e-6*LOG2E)}
v_mov_b32 {v(EPSD)}, 0
v_mov_b32 {v(EPSD+1)}, {f2u(1e-6)}
v_mov_b32 {v(EPSD+2)}, 0
v_mov_b32 {v(EPSD+3)}, {f2u(1e-6)}""")
        f(f"""s_mul_i32 {F0}, {s(sW)}, {XS}
s_add_u32 {F0}, {F0}, {XCH}
v_add_u32 {v(vXW)}, {F0}, {v(vL16)}
v_and_b32 v7, 1, v1
v_mul_u32_u24 v8, 0x3f80, v7
v_lshl_or_b32 v8, v8, 16, v8
v_lshl_add_u32 v35, v7, 4, {F0}
v_mov_b32 v54, v8""")
        def pk(dst, hh, aa):
            f(f"""{hh}
{aa}
v_mov_b32 v12, {XCH + 10240}
v_mov_b32 v7, {F1}
v_lshl_add_u32 v7, v7, 4, v4
v_mov_b32 v8, {F0}
v_lshlrev_b32 v9, 2, v8
v_sub_u32 v7, v7, v9
v_add_u32 v8, {F1}, v8
v_lshl_add_u32 v8, v8, 10, {v(vL16)}
v_add_u32 v8, {XCH}, v8
v_cmp_gt_u32 vcc, 20, v7
+v_cndmask_b32 {v(dst)}, v12, v8, vcc""")
        pk(PKS, f"s_mov_b32 {F0}, {s(sW)}", f"s_and_b32 {F1}, {s(sW)}, 1")
        pk(PKO, f"s_mov_b32 {F0}, {s(sW)}", f"s_andn2_b32 {F1}, 1, {s(sW)}")
        pk(PKX, f"s_xor_b32 {F0}, {s(sW)}, 1", f"s_and_b32 {F1}, {s(sW)}, 1")
        def coladdr(dst, col):
            return f"""v_lshrrev_b32 v9, 4, {col}
v_and_b32 v10, 15, {col}
v_lshlrev_b32 v10, 4, v10
v_lshl_add_u32 v10, v3, 8, v10
v_lshl_add_u32 v10, v9, 10, v10
v_add_u32 {dst}, {XCH + 5*1024}, v10"""
        f(f"""v_lshrrev_b32 v13, 2, v4
v_mul_u32_u24 v13, 5, v13
v_and_b32 v14, 3, v4
s_mul_i32 {F0}, {s(sW)}, 20
v_add3_u32 v7, v13, v14, {F0}
""" + coladdr(v(V0), "v7"))
        for dst, hh in ((V1O, f"s_mov_b32 {F0}, {s(sW)}"), (V1X, f"s_xor_b32 {F0}, {s(sW)}, 1")):
            f(f"""{hh}
s_and_b32 {F1}, {F0}, 1
s_lshl_b32 {F1}, {F1}, 1
s_mul_i32 {F0}, {F0}, 20
v_add3_u32 v7, v13, 4, {F0}
""" + coladdr("v8", "v7") + f"""
v_subrev_u32 v7, {F1}, v14
v_mov_b32 v9, {XCH + 10240}
v_mov_b32 v10, {XCH + 10256}
v_cmp_eq_u32 vcc, 1, v7
+v_cndmask_b32 v9, v9, v10, vcc
v_cmp_eq_u32 vcc, 0, v7
+v_cndmask_b32 {v(dst)}, v9, v8, vcc""")
        f(f"""s_lshl_b32 {F0}, {s(sCB)}, 2
s_add_u32 {F0}, {F0}, {s(sW)}
s_lshl_b32 {F1}, {F0}, 5
s_add_u32 {F1}, {F1}, {s(sRB)}
s_lshl_b32 {F1}, {F1}, 6
s_add_u32 {F1}, {F1}, {WS_KV}
v_lshl_add_u32 v7, v4, 2, {F1}
v_lshl_add_u32 v7, v3, 10, v7
v_mov_b32 v12, {OOB}
v_cmp_gt_u32 vcc, 32, v1
+v_cndmask_b32 {v(vKF)}, v12, v7, vcc
s_mul_i32 {F0}, {F0}, 98304
s_add_u32 {F0}, {F0}, {WS_P}
v_lshrrev_b32 v7, 5, v1
v_mul_u32_u24 v7, 49152, v7
v_bfe_u32 v8, v1, 2, 3
v_lshl_add_u32 v7, v8, 10, v7
v_and_b32 v9, 3, v1
v_lshl_add_u32 v7, v9, 4, v7
s_lshl_b32 {F1}, {s(sRB)}, 6
v_add3_u32 v7, v7, {F1}, 0
v_add_u32 v7, {F0}, v7
v_cmp_gt_u32 vcc, 6, v8
+v_cndmask_b32 {v(vRL)}, v12, v7, vcc
+v_cndmask_b32_e64 {v(vRX)}, 0, -1, vcc
s_mul_i32 {F1}, {s(sRB)}, 6144
s_add_u32 {F0}, {F0}, {F1}
v_add_u32 v7, {F0}, {v(vL16)}
v_add_u32 {v(P2)}, 4096, v7
s_and_b32 {F1}, {s(sW)}, 1
s_lshl_b32 {F1}, {F1}, 11
v_add_u32 {v(PS)}, {F1}, v7
s_xor_b32 {F1}, {F1}, 2048
v_add_u32 {v(PO)}, {F1}, v7
v_bfe_u32 v7, v1, 4, 1
v_lshl_add_u32 v8, v7, 1, v9
v_add_u32 v7, 4, v7
v_cmp_gt_u32 vcc, 2, v9
+v_cndmask_b32 v7, v7, v8, vcc
v_bfe_u32 v8, v1, 2, 2
v_lshl_add_u32 v7, v7, 2, v8
v_lshlrev_b32 {v(vBP)}, 2, v7
v_cmp_eq_u32 vcc, 3, v9
+v_cndmask_b32_e64 {v(vK3)}, 0, -1, vcc
s_lshl_b32 {F0}, {s(sCB)}, 13
s_add_u32 {F0}, {F0}, {WS_KV}
v_lshl_add_u32 {v(vKL)}, v1, 4, {F0}""")
        f(f"""s_lshl_b32 {F0}, {s(sRB)}, 2
s_add_u32 {F0}, {F0}, {s(sW)}
s_mul_i32 {F1}, {F0}, 40960
s_add_u32 {F1}, {F1}, {WS_PQ}
v_add_u32 {v(vOL)}, {F1}, {v(vL16)}
s_lshl_b32 {F0}, {F0}, 10
s_add_u32 {F0}, {F0}, {WS_AF}
v_lshrrev_b32 v7, 3, v1
v_lshl_add_u32 {v(vOP)}, v7, 7, {F0}
s_lshl_b32 {F1}, {s(sCB)}, 7
s_add_u32 {F0}, {F0}, {F1}
v_mov_b32 v7, {F0}
v_cmp_eq_u32 vcc, 0, v1
+v_cndmask_b32 {v(vOF)}, v12, v7, vcc
s_lshr_b32 {F0}, {s(sCB)}, 1
s_mul_i32 {F0}, {F0}, 10240
v_add_u32 v7, {F0}, {v(vOL)}
s_and_b32 {F0}, {s(sCB)}, 1
s_lshl_b32 {F1}, {F0}, 12
v_add_u32 {v(vOS)}, {F1}, v7
s_lshl_b32 {F0}, {F0}, 10
s_add_u32 {F0}, {F0}, 8192
v_lshlrev_b32 v8, 3, v1
v_sub_u32 v7, v7, v8
v_add_u32 {v(vOS2)}, {F0}, v7
v_sub_u32 v81, {v(vOL)}, v8
v_mul_u32_u24 v8, 112, v1
v_add_u32 v9, {v(vOS)}, v8
v_mul_u32_u24 v8, 120, v1
v_add3_u32 v8, v8, {v(vOS2)}, 0
v_add_u32 v8, {(-32*128) & 0xffffffff:#x}, v8
v_cmp_gt_u32 vcc, 32, v1
+v_cndmask_b32 v8, v8, v9, vcc
v_cmp_gt_u32 vcc, 40, v1
+v_cndmask_b32 v55, v12, v8, vcc""")

        f(f"""s_lshr_b32 {F0}, s2, 3
s_lshl_b32 {F0}, {F0}, 2
s_add_u32 {F0}, {F0}, {s(sW)}
s_mul_i32 {F0}, {F0}, 50
v_add_u32 v7, {F0}, v1
v_lshlrev_b32 v37, 7, v7
v_mul_u32_u24 v8, 6554, v7
v_lshrrev_b32 v8, 16, v8
v_mul_u32_u24 v8, 2560, v8
v_add_u32 v36, v37, v8""")
        pf = [mk(f"buffer_load_dword v38, v36, {s(SW,4)}, 0 offen"), mk(f"buffer_load_dword v97, v37, {s(SC,4)}, 0 offen")]
        qch = [self.dma_w(CH[c], WQ, SW, sAW + c, f"q{c}") for c in range(5)]
        n0 = self.opt.get("afill0", len(F))
        pt = [mk(f"buffer_load_dword v55, v55, {s(SWS,4)}, 0 offen nt")] if self.opt.get("pretouch", 1) else []
        apf = self.opt.get("apf", 1)
        if apf:
            self.mainloop(S, "A", [], F[:n0], F[n0:], pt, qch[0], EPSQ, pf)
        else:
            self.mainloop(S, "A", [], F[:n0], F[n0:], pf + pt, [], EPSQ)
            qch[1] = qch[0] + qch[1]
        self.stamp(S, 4)
        self.tr(S, 1)
        S("v_mov_b32 v12, v54\nv_mov_b32 v13, v54\nv_mov_b32 v14, v54\nv_mov_b32 v15, v54\nds_write_b128 v35, v[12:15] offset:10240")
        S_main = S
        S = Stream()
        FRG = 108
        self.phi_pairs(S, [(ACC + (n*2 + (k >> 1))*4 + 2*(k & 1), FRG + 4*n + k) for n in range(5) for k in range(4)], EPSQ, CPH)
        for n in range(5):
            S(f"ds_write_b128 {v(vXW)}, {v(FRG+4*n,4)} offset:{1024*n}")
        for n in range(5, 10):
            for k in range(4):
                c = ACC + (n*2 + (k >> 1))*4 + 2*(k & 1)
                S(f"v_cvt_pk_bf16_f32 {v(FRG+4*n+k)}, {v(c)}, {v(c+1)}")
            S(f"ds_write_b128 {v(vXW)}, {v(FRG+4*n,4)} offset:{1024*n}")
        S_main.add(interleave(S.items, (qch[1] + qch[2], 4 if apf else 100, len(S.items) - 1)))
        S = S_main
        self.tr(S, 1)
        S("@waittag q0\n@waitlgkm0\ns_barrier")
        self.tr(S, 1)
        DS, DO, D2 = 144, 152, 160
        for r in (148, 156, 164, 170, 174, 142):
            S(f"v_mov_b32 {v(r)}, {s(sNON)}")
        G = lambda ks, x: a(AW + 24 * (ks & 1) + 4 * x, 4)
        def grd(ks):
            return [I(f"ds_read_b128 {G(ks,x)}, {v(r)} offset:{ks*XS}") for x, r in enumerate((PKS, V0, PKO, V1O, PKX, V1X))]
        S.add(grd(0))
        S.add(grd(1))
        for ks in range(4):
            z = lambda d: "0" if ks == 0 else v(d, 4)
            S(f"""{MF} {v(DS,4)}, {G(ks,0)}, {G(ks,1)}, {z(DS)}
{MF} {v(DO,4)}, {G(ks,2)}, {G(ks,1)}, {z(DO)}
{MF} {v(D2,4)}, {G(ks,0)}, {G(ks,3)}, {z(D2)}
{MF} {v(D2,4)}, {G(ks,4)}, {G(ks,5)}, {v(D2,4)}""")
            if ks < 2:
                S.add(grd(ks + 2))
            S.add((qch[3] + qch[4])[(10 * ks) // 4:(10 * ks + 10) // 4])
        QA = ACC
        def qreads(u):
            c, hf, kk = u >> 2, (u >> 1) & 1, u & 1
            L = []
            for n in range(5):
                L += self.tr_frag(208 + 20 * (u & 1) + 4 * n, CH[c] + kk * 10240, 5 * hf + n)
            return L
        self.tr(S, 1)
        S.add(qreads(0))
        for d, ad, t in ((DS, PS, 168), (DO, PO, 172), (D2, P2, 140)):
            S(f"""v_mov_b32 {v(t)}, {v(d)}
v_mov_b32 {v(t+1)}, {v(d+1)}
buffer_store_dwordx4 {v(d+2,4)}, {v(ad)}, {s(SWS,4)}, 0 offen offset:1024 sc1
buffer_store_dwordx4 {v(t,4)}, {v(ad)}, {s(SWS,4)}, 0 offen sc1""")
        S(f"v_and_b32 {v(vRX)}, {s(sNON)}, {v(vRX)}")
        self.stamp(S, 5)
        RB = 108
        KK = 108
        T1 = 140
        woch = [self.dma_w(CH[c], WO, SC, sWO + c, f"wo{c}") for c in range(5)]
        wofix = [mk(f"v_add_u32 {v(WO+i)}, {v(WO+i)}, {v(UQ+3*i)}") for i in range(5)]
        def rloads():
            return [mk(f"s_mov_b32 {s(sT1)}, {6144*x}\nbuffer_load_dwordx3 {v(RB+4*x,3)}, {v(vRL)}, {s(SWS,4)}, {s(sT1)} offen sc1") for x in range(8)]
        def rcheck():
            t = f"v_xor_b32 v14, {v(RB+2)}, {v(vRX)}\n"
            for x in range(1, 8):
                t += f"v_bitop3_b32 v14, v14, {v(RB+4*x+2)}, {v(vRX)} bitop3:0xf6\n"
            return t + "v_cmp_ne_u32 vcc, 0, v14"
        def kloads():
            return [mk(f"buffer_load_dwordx4 {v(KK+4*x,4)}, {[v(vKL), 'v15'][x >> 2]}, {s(SWS,4)}, 0 offen offset:{1024*(x & 3)} sc1") for x in range(8)]
        def kcheck():
            t = f"v_xor_b32 v14, {s(sNON)}, {v(KK+3)}\n"
            for x in range(1, 8):
                t += f"v_bitop3_b32 v14, v14, {v(KK+4*x+3)}, {s(sNON)} bitop3:0xf6\n"
            return t + "v_cmp_ne_u32 vcc, 0, v14"
        def retry(loads, check):
            lp, done = self.lab("rp"), self.lab("rd")
            S(check)
            S(f"s_cbranch_vccz {done}\ns_mov_b32 {s(sCNT)}, 0x40000\n{lp}:", tag="opaque")
            for x in loads:
                for y in x:
                    y.tag = "opaque"
            S.add(loads)
            S("s_waitcnt vmcnt(0)\n" + check + f"""
s_cbranch_vccz {done}
s_sub_u32 {s(sCNT)}, {s(sCNT)}, 1
s_cbranch_scc0 {lp}
{done}:""", tag="opaque")
        UR = self.opt.get("ur", 9)
        UC = self.opt.get("uc", 14)
        for u in range(20):
            c, hf, kk = u >> 2, (u >> 1) & 1, u & 1
            st = c + 5 * hf
            ex = []
            if u in (0, 3, 7, 11, 14, 15, 19):
                self.tr(S, 1)
            if (u & 3) == 3:
                S(f"@waittag q{c+1}\n@waitlgkm0\ns_barrier")
                ex = (wofix if c == 4 else []) + woch[c][:3]
            elif (u & 3) == 0 and u:
                ex = woch[c - 1][3:]
            if u == 1:
                ex = [self.xi_load(12)]
            if u == UR:
                ex = rloads() + ex
            if u == UC:
                retry(rloads(), rcheck())
                for x in range(1, 8):
                    ex.append(mk(f"v_pk_add_f32 {v(RB,2)}, {v(RB,2)}, {v(RB+4*x,2)}"))
                ex += groups(f"""v_permlane32_swap_b32 {v(RB)}, {v(RB+1)}
v_add_f32 {v(RB)}, {v(RB)}, {v(RB+1)}
ds_bpermute_b32 {v(RB+4)}, {v(vBP)}, {v(RB)}
ds_bpermute_b32 {v(RB+5)}, {v(vBP)}, {v(RB)} offset:128""")
            if u == UC + 1:
                ex = groups(f"""v_cvt_pk_bf16_f32 {v(RB+4)}, {v(RB+4)}, {v(RB+5)}
v_bfi_b32 {v(RB+4)}, {v(vK3)}, {v(148)}, {v(RB+4)}
buffer_store_dword {v(RB+4)}, {v(vKF)}, {s(SWS,4)}, 0 offen sc1""") + ex
            if u == UC + 2:
                ex = ex + [self.xi_eval(12)]
            mf = []
            for n in range(5):
                for i in range(2):
                    d = QA + (n * 2 + i) * 4
                    cin = v(EPSQ, 4) if u == 0 else v(d, 4)
                    mf.append(I(f"{MF} {v(d,4)}, {a(208 + 20*(u & 1) + 4*n, 4)}, {a(AX + ((2*st+kk)*2+i)*4, 4)}, {cin}"))
            S.add(interleave(mf, (qreads(u + 1) if u < 19 else [], 0, 7), (ex, 1, 9)))
        S.add(woch[4][3:])
        self.stamp(S, 6)
        PQR = 150
        S_main = S
        S = Stream()
        self.phi_pairs(S, [(QA + (n*2 + i)*4 + 2*k, PQR + 10*i + 2*n + k) for i in range(2) for n in range(5) for k in range(2)], EPSQ, CPH)
        S_main(f"v_add_u32 v15, 4096, {v(vKL)}")
        p0 = self.opt.get("kpos", 60)
        S_main.add(interleave(S.items, (kloads(), p0, p0 + 30)))
        S = S_main
        retry(kloads(), kcheck())
        self.stamp(S, 7)
        for m in range(2):
            for x in range(4):
                S(f"v_mov_b32 {v(T1+4*m+x)}, {v(KK + 16*m + 8*(x >> 1) + 4*(x & 1) + 2)}")
        for h in range(4):
            S(f"v_mov_b32 {v(KK+8*h+2)}, {v(KK+8*h+4)}\nv_mov_b32 {v(KK+8*h+3)}, {v(KK+8*h+5)}")
        DT, OF = ACC, 82
        for i in range(2):
            for m in range(2):
                d = DT + 32 * i + 16 * m
                w0 = PQR + 10 * i + 4 * m
                S(f"""{MF} {v(d,4)}, {v(KK+16*m,4)}, {v(w0,4)}, 0
{MF} {v(d+4,4)}, {v(T1+4*m,4)}, {v(w0,4)}, {v(EPSD,4)}
{MF} {v(d+8,4)}, {v(KK+16*m+8,4)}, {v(w0+2,4)}, 0
{MF} {v(d+12,4)}, {v(T1+4*m,4)}, {v(w0+2,4)}, {v(EPSD,4)}""")
        for i in range(2):
            for m in range(2):
                d = DT + 32 * i + 16 * m
                S(f"v_rcp_f32 {v(d+5)}, {v(d+5)}\nv_rcp_f32 {v(d+15)}, {v(d+15)}")
            for m in range(2):
                d = DT + 32 * i + 16 * m
                S(f"""v_pk_mul_f32 {v(d,2)}, {v(d,2)}, {v(d+4,2)} op_sel:[0,1] op_sel_hi:[1,1]
v_pk_mul_f32 {v(d+8,2)}, {v(d+8,2)}, {v(d+14,2)} op_sel:[0,1] op_sel_hi:[1,1]
v_pk_mul_f32 {v(d+2,2)}, {v(d+2,2)}, {v(d+4,2)} op_sel:[0,1] op_sel_hi:[1,1]
v_pk_mul_f32 {v(d+10,2)}, {v(d+10,2)}, {v(d+14,2)} op_sel:[0,1] op_sel_hi:[1,1]
v_mul_f32 {v(d+4)}, {v(d+4)}, {v(d+5)}
v_mul_f32 {v(d+14)}, {v(d+14)}, {v(d+15)}""")
            for e in range(5):
                for m in range(2):
                    d = DT + 32 * i + 16 * m
                    ra, rb = (d + e, d + 8 + e) if e < 4 else (d + 4, d + 14)
                    S(f"v_cvt_pk_bf16_f32 {v(OF + 10*i + 2*e + m)}, {v(ra)}, {v(rb)}")
        t = ""
        for i in range(2):
            for fq in range(2):
                t += f"buffer_store_dwordx4 {v(OF+10*i+4*fq,4)}, {v(vOS)}, {s(SWS,4)}, 0 offen offset:{1024*(2*fq+i)}@M\n"
            t += f"buffer_store_dwordx2 {v(OF+10*i+8,2)}, {v(vOS2)}, {s(SWS,4)}, 0 offen offset:{512*i}@M\n"
        self.two_way(S, t, "ost")
        S(f"v_mov_b32 v4, {s(sNON)}")
        S("@waittag ost wo4")
        self.flag_store(S, vOF)
        S("s_barrier")
        self.stamp(S, 8)
        AC2, WF = 216, 160
        def woreads(f):
            H, e = f // 5, f % 5
            c, rbk, hf = (H, e & 1, e >> 1) if e < 4 else (4, H & 1, H >> 1)
            L = []
            for n in range(5):
                L += self.tr_frag(WF + 20 * (f & 1) + 4 * n, CH[c] + rbk * 10240, 5 * hf + n)
            return L
        S.add(woreads(0))
        self.out_addrs(S, "A", 112 * K, 48)
        self.poll_flags(S, vOP, 1, 4)
        self.stamp(S, 9)
        def oload(x):
            pre = f"s_mov_b32 {s(sT1)}, {4096*(x >> 2)}\n" if (x & 3) == 0 else ""
            if x % 10 >= 8:
                o = 1024 * ((x & 3) & 2) + 512 * (x & 1)
                return mk(pre + f"""buffer_load_dwordx2 {a(4*x,2)}, v81, {s(SWS,4)}, {s(sT1)} offen offset:{o}{self.lmod}
buffer_load_dwordx2 {a(4*x+2,2)}, v81, {s(SWS,4)}, {s(sT1)} offen offset:{o+1024}{self.lmod}""")
            return mk(pre + f"buffer_load_dwordx4 {a(4*x,4)}, {v(vOL)}, {s(SWS,4)}, {s(sT1)} offen offset:{1024*(x & 3)}{self.lmod}")
        DEPTH = self.opt.get("odepth", 5)
        for x in range(2 * DEPTH):
            S.add(oload(x))
        for f_ in range(20):
            mf = []
            for n in range(5):
                for i in range(2):
                    c = AC2 + (n * 2 + i) * 4
                    mf.append(I(f"{MF} {v(c,4)}, {a(WF + 20*(f_ & 1) + 4*n, 4)}, {a((f_*2+i)*4, 4)}, {'0' if f_ == 0 else v(c,4)}"))
            ld = [oload(2 * (f_ + DEPTH) + i) for i in range(2)] if f_ + DEPTH < 20 else []
            S.add(interleave(mf, (woreads(f_ + 1) if f_ < 19 else [], 0, 7), (ld, 3, 9)))
        self.stamp(S, 10)
        self.store_out(S, AC2, 48, 176)
        self.stamp(S, 11)
        self.dump_stamps(S)
        S("s_endpgm")
        return S


    def build(self):
        P = Stream()
        self.prologue(P)
        A = self.side_A()
        B = self.side_B()
        out = []
        tot = 0
        np_ = len(P.items)
        SA = Stream(); SA.items = P.items + A.items
        ia, na = finalize(SA)
        SB = Stream(); SB.items = P.items + B.items
        ib, nb = finalize(SB)
        k = next(i for i, x in enumerate(ib) if x.text == "L_sideB:")
        ka = next(i for i, x in enumerate(ia) if x.text.startswith("s_cbranch_scc1 L_sideB"))
        assert [x.text for x in ia[:ka + 1]] == [x.text for x in ib[:k]], "prologue mismatch"
        body = ia + ib[k:]
        hdr = open("concat_heads__linear_attn_block__ssm_conv_s5__prompt.s.ref").read().split("\n")
        hdr = [l for l in hdr if l.startswith(";") and "@launch" not in l]
        txt = "\n".join(hdr) + "\n; @launch grid=(256,1,1) block=(256,1,1) lds=163840\n"
        txt += f""".amdgcn_target "amdgcn-amd-amdhsa--gfx950"
.text
.globl {KN}
.p2align 8
.type {KN},@function
{KN}:
"""
        for x in body:
            txt += (x.text if x.kind == "label" else "    " + x.text) + "\n"
        txt += f"""L_end:
    s_endpgm
.section .rodata,"a"
.p2align 6
.amdhsa_kernel {KN}
  .amdhsa_next_free_vgpr 512
  .amdhsa_next_free_sgpr 102
  .amdhsa_accum_offset 256
  .amdhsa_group_segment_fixed_size 0
  .amdhsa_kernarg_size 120
  .amdhsa_user_sgpr_count 2
  .amdhsa_user_sgpr_kernarg_segment_ptr 1
  .amdhsa_system_sgpr_workgroup_id_x 1
.end_amdhsa_kernel
"""
        print(f"instructions: A {len(ia)} (nops {na}), B {len(ib)} (nops {nb})", file=sys.stderr)
        return txt


if __name__ == "__main__":
    import argparse
    ap = argparse.ArgumentParser()
    ap.add_argument("out")
    ap.add_argument("--ts", action="store_true")
    ap.add_argument("-o", action="append", default=[])
    ar = ap.parse_args()
    opt = {}
    for o in ar.o:
        k_, _, v_ = o.partition("=")
        opt[k_] = int(v_) if v_ else 1
    open(ar.out, "w").write(Gen(ar.ts, opt).build())
```

```python
import sys, struct
from fw import *

KN = "concat_heads__linear_attn_block__ssm_conv_s5__prompt_kernel"
K = 1024

WS_E = 0x010000
WS_HF = 0x040000
WS_PF = 0x060000
WS_AF = 0x080000
WS_KV = 0x0A0000
WS_XI = 0x0C0000
WS_P = 0x100000
WS_PQ = 0x400000
WS_H = 0x800000
WS_TS = 0x1000000
OOB = 0x80000000

SLOT = 36 * K
NSLOT = 4
CH = [80 * K, 0, 20 * K, 40 * K, 60 * K, 100 * K, 120 * K, 140 * K, 80 * K, 0]
SCAN = 108 * K
TBUF = 120 * K
XCH = 112 * K
XS = 10496
KVL = 112 * K

SX, SW, SC, SWS, SO, SD = 36, 40, 44, 48, 52, 56
SP0, SP1, SP2, SP3 = 60, 64, 68, 72
sW, sRB, sCB, sNON, sT0, sT1, sCNT = 76, 77, 78, 79, 80, 81, 82
sA128 = 83
sAW = 88
sHX0, sHX1, sHW0, sHW1 = 93, 94, 95, 96
sMX, sMW = 97, 98
sETA, sXCD = 99, 100
sT2 = 101
sSAME = 34
sF0, sF1 = 3, 35
SE = SP0

XA, WA, WQ, WO = 16, 20, 25, 30
RX, RW = 98, 39
vL16, vNA, vNV = 45, 46, 47
vXI = 104
ACC = 176
AX, AW = 0, 160

LOG2E = 1.4426950408889634
def f2u(x):
    return "0x%08x" % struct.unpack("<I", struct.pack("<f", x))[0]

def v(b, n=1): return f"v{b}" if n == 1 else f"v[{b}:{b+n-1}]"
def a(b, n=1): return f"a{b}" if n == 1 else f"a[{b}:{b+n-1}]"
def s(b, n=1): return f"s{b}" if n == 1 else f"s[{b}:{b+n-1}]"
MF = "v_mfma_f32_16x16x32_bf16"


class Gen:
    def __init__(self, ts=False, opt=None):
        self.ts = ts
        self.opt = opt or {}
        self.nlab = 0
        self.trn = {}
        self.cur = None
        self.lmod = {0: '', 1: ' nt', 2: ' sc1'}[self.opt.get('lmod', 0)]
        xnt = self.opt.get("xnt", 0)
        self.xmod0 = " nt" if xnt == 1 else ""
        self.xmods = {"A": " nt" if xnt else "", "B": self.xmod0}
        self.wmod = " nt" if self.opt.get("wnt", 0) else ""

    def lab(self, b):
        self.nlab += 1
        return f"L_{b}_{self.nlab}"

    def stamp(self, S, k):
        if "pi" in self.opt:
            if k == self.opt["pi"]: S("s_memrealtime s[4:5]")
            if k == self.opt["pj"]: S("s_memrealtime s[6:7]")
        if self.ts and (not self.opt.get("trace") or k == 11):
            assert k < 12
            S(f"s_memtime s[{4+2*k}:{5+2*k}]")

    def tr(self, S, region):
        if self.ts and self.opt.get("trace") == region:
            k = self.trn.get(id(self.cur), 0)
            if k < 11:
                S(f"s_memtime s[{4+2*k}:{5+2*k}]")
            self.trn[id(self.cur)] = k + 1

    def dump_stamps(self, S):
        if "pi" in self.opt:
            l1, l2 = self.lab("pr"), self.lab("pr")
            t0 = "s32" if self.opt["pi"] < 0 else "s4"
            S(f"""s_memrealtime s[8:9]
s_waitcnt lgkmcnt(0)
s_cmp_lg_u32 s2, {self.opt["pwg"]}
s_cbranch_scc1 {l2}
s_sub_u32 s10, s6, {t0}
s_mul_i32 s10, s10, {self.opt["pscale"]}
s_min_u32 s10, s10, 20000
{l1}:
s_memrealtime s[12:13]
s_waitcnt lgkmcnt(0)
s_sub_u32 s11, s12, s8
s_cmp_lt_u32 s11, s10
s_cbranch_scc1 {l1}
{l2}:""")
        if self.opt.get("protrace"):
            self.ts = True
            self.stamp(S, 11)
        if not self.ts:
            return
        S("s_memrealtime s[30:31]")
        S("s_waitcnt lgkmcnt(0)")
        S("v_mov_b32 v1, 0")
        for k in range(13):
            S(f"v_writelane_b32 v1, s{4+2*k}, {k}")
        S("v_writelane_b32 v1, s33, 13")
        S("v_writelane_b32 v1, s32, 14")
        S("v_writelane_b32 v1, s30, 15")
        S(f"s_lshl_b32 s3, s2, 10\ns_add_u32 s3, s3, {WS_TS}")
        S(f"v_lshl_add_u32 v2, v0, 2, s3")
        S(f"buffer_store_dword v1, v2, {s(SWS,4)}, 0 offen")

    def prologue(self, S):
        S("s_cmp_ge_u32 s2, 256\ns_cbranch_scc1 L_end")
        S("s_load_dwordx16 s[4:19], s[0:1], 0")
        S("s_load_dwordx8 s[20:27], s[0:1], 64")
        S("s_load_dwordx4 s[28:31], s[0:1], 96")
        S("s_load_dwordx2 s[32:33], s[0:1], 112")
        if self.ts or "pi" in self.opt:
            S("s_memrealtime s[34:35]")
        if self.ts:
            S(f"s_memtime s[{SP3}:{SP3+1}]")
        S(f"""v_lshrrev_b32 v2, 6, v0
v_and_b32 v1, 63, v0
v_readfirstlane_b32 {s(sW)}, v2
s_and_b32 {s(sXCD)}, s2, 7
s_lshr_b32 s3, s2, 3
s_lshr_b32 {s(sCB)}, s3, 2
s_and_b32 s3, s3, 3""")
        if self.opt.get("cpf", 1):
            S(f"""s_cmp_lg_u32 s3, {s(sW)}
s_cbranch_scc1 L_nopf
s_getpc_b64 s[{SP0}:{SP0+1}]
L_pc:
s_cmp_ge_u32 {s(sXCD)}, 4
s_cselect_b32 {s(sT0)}, L_sideB-L_pc, 0
s_sub_u32 {s(SP0+2)}, L_end-L_pc, {s(sT0)}
s_add_u32 {s(SP0)}, {s(SP0)}, {s(sT0)}
s_addc_u32 {s(SP0+1)}, {s(SP0+1)}, 0
s_mov_b32 {s(SP0+3)}, 0x20000
v_lshlrev_b32 v3, 7, v0
buffer_load_dword v255, v3, {s(SP0,4)}, 0 offen
L_nopf:""", tag="opaque")
        S(f"""s_and_b32 {s(sT0)}, {s(sXCD)}, 3
s_lshl_b32 {s(sRB)}, {s(sT0)}, 2
s_add_u32 {s(sRB)}, {s(sRB)}, s3
s_mul_i32 s3, s3, 20
s_mul_i32 {s(sT0)}, {s(sT0)}, 5
s_add_u32 s3, s3, {s(sT0)}
s_mul_i32 {s(sT0)}, {s(sCB)}, 10
s_add_u32 s3, s3, {s(sT0)}
s_lshr_b32 s3, s3, 3""")
        if self.opt.get("norot"):
            S("s_mov_b32 s3, 0")
        S(f"""s_sub_u32 {s(sT0)}, s3, 10
s_cselect_b32 s3, s3, {s(sT0)}
s_lshl_b32 {s(sT0)}, s3, 7
s_lshl_b32 {s(sMX)}, {s(sW)}, 12
s_lshl_b32 {s(sT1)}, {s(sRB)}, 2
s_add_u32 {s(sT1)}, {s(sT1)}, {s(sW)}
s_mul_i32 {s(sT2)}, {s(sT1)}, {32*1280}""")
        S(f"""v_lshrrev_b32 v2, 3, v1
v_lshrrev_b32 v3, 4, v1
v_and_b32 v5, 7, v1
v_xor_b32 v5, v5, v3
v_lshlrev_b32 v5, 4, v5
s_movk_i32 {s(sA128+1)}, {8*1280-1024}
s_movk_i32 {s(sA128+2)}, {16*1280-2048}
s_movk_i32 {s(sA128+3)}, {24*1280-3072}
s_cmp_ge_u32 {s(sXCD)}, 4
s_cselect_b32 {s(sHX0)}, 1, 0
s_cselect_b32 {s(sA128+1)}, {16*1280-1024}, {s(sA128+1)}
s_cselect_b32 {s(sA128+2)}, {4*1280-2048}, {s(sA128+2)}
s_cselect_b32 {s(sA128+3)}, {20*1280-3072}, {s(sA128+3)}
v_and_b32 v7, 4, v2
v_mad_u32_u24 v7, v7, {s(sHX0)}, v2
v_mul_u32_u24 v7, 1280, v7
v_add3_u32 {v(XA)}, v7, v5, {s(sT2)}
v_xor_b32 v8, 64, {v(XA)}
v_add_u32 {v(XA+1)}, {s(sA128+1)}, v8
v_add_u32 {v(XA+2)}, {s(sA128+2)}, {v(XA)}
v_add_u32 {v(XA+3)}, {s(sA128+3)}, v8
s_mov_b32 m0, {s(sMX)}
s_mov_b32 {s(SX+2)}, {2048*1280}
s_mov_b32 {s(SX+3)}, 0x20000
s_cselect_b32 {s(SX)}, s10, s4
s_cselect_b32 {s(SX+1)}, s11, s5""")
        for i in range(4):
            S(f"buffer_load_dwordx4 {v(XA+i)}, {s(SX,4)}, {s(sT0)} offen offset:{1024*i}{self.xmod0} lds", tag="st0")
        S(f"s_mul_i32 {s(sMW)}, {s(sW)}, 5120")
        S(f"s_cbranch_scc1 L_sideB")

    def late_setup(self, S):
        S(f"""s_sub_u32 {s(sT1)}, s3, 5
s_cselect_b32 s3, s3, {s(sT1)}
s_cselect_b32 {s(sETA)}, 0, 1""")
        for c in range(5):
            S(f"""s_add_u32 {s(sT2)}, s3, {c}
s_sub_u32 {s(sT1)}, {s(sT2)}, 5
s_cselect_b32 {s(sT2)}, {s(sT2)}, {s(sT1)}
s_lshl_b32 {s(sA128+c)}, {s(sT2)}, 7""")
        S(f"""s_mul_i32 {s(sHX0)}, {s(sETA)}, 640
s_sub_u32 {s(sHX1)}, 640, {s(sHX0)}
v_and_b32 v4, 15, v1
v_lshlrev_b32 {v(vL16)}, 4, v1
v_lshrrev_b32 v6, 1, v4
v_xor_b32 v6, v6, v3
v_lshlrev_b32 v6, 4, v6
v_lshl_add_u32 v6, v4, 7, v6
v_add_u32 {v(RX)}, {s(sMX)}, v6
v_xor_b32 {v(RX+3)}, 64, {v(RX)}
v_add_u32 {v(RX+1)}, 0x10000, {v(RX)}
v_add_u32 {v(RX+4)}, 0x10000, {v(RX+3)}
s_lshl_b32 s3, s2, 8
v_or_b32 v7, s3, v0
v_mov_b32 v8, {OOB}
v_cmp_eq_u32 vcc, 0, v7
v_cndmask_b32_e64 {v(vNA)}, v8, 0, vcc""")

    def srd(self, S, d, p, n):
        S(f"s_mov_b32 {s(d)}, {s(p)}\ns_mov_b32 {s(d+1)}, {s(p+1)}\ns_mov_b32 {s(d+2)}, {n}\ns_mov_b32 {s(d+3)}, 0x20000")

    def srd_biased(self, S, d, p, n):
        S(f"s_sub_u32 {s(d)}, {s(p)}, 4096\ns_subb_u32 {s(d+1)}, {s(p+1)}, 0\ns_mov_b32 {s(d+2)}, {n + 4096}\ns_mov_b32 {s(d+3)}, 0x20000")

    def common_srds(self, S):
        self.srd(S, SWS, 32, "0x10000000")
        self.srd(S, SO, 28, 2048 * 5120)
        self.srd(S, SD, 30, 256)
        if self.ts or "pi" in self.opt:
            S("s_mov_b32 s32, s34")
        if self.ts:
            S(f"s_mov_b32 s33, s{SP3}")
            S("s_memtime s[28:29]")

    def dma_stage(self, st, side):
        slot = (st % NSLOT) * SLOT
        tag = f"st{st}"
        hx = sHX0 if st < 5 else sHX1
        L = []
        for i in range(4):
            pre = f"s_add_u32 m0, {s(sMX)}, {slot}\ns_add_u32 {s(sT0)}, {s(sA128 + st % 5)}, {s(hx)}\n" if i == 0 else ""
            L.append(mk(pre + f"buffer_load_dwordx4 {v(XA+i)}, {s(SX,4)}, {s(sT0)} offen offset:{1024*i}{self.xmods[side]} lds", tag))
        so = sT0
        pre2 = ""
        if side == "A":
            so = sT1
            hw = sHW0 if st < 5 else sHW1
            pre2 = f"s_add_u32 {s(sT1)}, {s(sAW + st % 5)}, {s(hw)}\n"
        L += self.dma_w(slot + 16 * K, WA, SW, so, tag, pre2, self.wmod)
        return L

    def dma_w(self, ldsbase, areg, srd, so, tag, pre2="", extra=""):
        L = []
        for i in range(5):
            pre = ""
            if i == 0:
                pre = f"s_add_u32 m0, {s(sMW)}, {ldsbase}\n" + pre2
            if i == 4:
                pre = f"s_add_u32 m0, {s(sMW)}, {ldsbase + 4096}\n"
            L.append(mk(pre + f"buffer_load_dwordx4 {v(areg+i)}, {s(srd,4)}, {s(so)} offen offset:{1024*(i&3)}{extra} lds", tag))
        return L

    def reads(self, h, side):
        st, kk = h >> 1, h & 1
        slot = (st % NSLOT) * SLOT
        fs = h & 1
        L = []
        for i in range(2):
            off = slot + 2048 * i
            L.append(I(f"ds_read_b128 {a(AX + (h*2+i)*4, 4)}, {v(RX + 3*kk + (off >> 16))} offset:{off & 0xffff}"))
        for n in range(10):
            d = AW + 40 * fs + 4 * n
            if side == "B":
                off = slot + 16 * K + 2048 * n
                L.append(I(f"ds_read_b128 {a(d,4)}, {v(RW + 3*kk + (off >> 16))} offset:{off & 0xffff}"))
            else:
                L += self.tr_frag(d, slot + 16 * K + kk * 10240, n)
        return L

    def tr_frag(self, d, base, u, dst="a"):
        L = []
        for j in range(2):
            off = base + 256 * j + 1024 * (u >> 1)
            r = a(d + 2 * j, 2) if dst == "a" else v(d + 2 * j, 2)
            L.append(I(f"ds_read_b64_tr_b16 {r}, {v(RW + 3*(u & 1) + (off >> 16))} offset:{off & 0xffff}"))
        return L

    def mfmas(self, h, side, epsq=None):
        L = []
        for n in range(10):
            for i in range(2):
                c = ACC + (n * 2 + i) * 4
                cin = v(c, 4)
                if h == 0:
                    cin = v(epsq, 4) if (side == "A" and n < 5) else "0"
                L.append(I(f"{MF} {v(c,4)}, {a(AX + (h*2+i)*4, 4)}, {a(AW + 40*(h & 1) + 4*n, 4)}, {cin}"))
        return L

    def nonce_make(self):
        return mk(f"""v_add_u32 {v(vNV)}, 0x9E3779B1, {v(vNV)}
v_cmp_eq_u32 vcc, 0, {v(vNV)}
v_cndmask_b32_e64 {v(vNV)}, {v(vNV)}, 1, vcc
buffer_store_dword {v(vNV)}, {v(vNA)}, {s(SWS,4)}, 0 offen sc1
buffer_store_dword {v(vNV)}, {v(vNA)}, {s(SD,4)}, 0 offen sc1""")

    def nonce_get(self, S):
        done = self.lab("nonce")
        lp = self.lab("nlp")
        S(f"v_readfirstlane_b32 {s(sNON)}, {v(vNV)}")
        S(f"""s_cmp_lg_u32 {s(sNON)}, 0
s_cbranch_scc1 {done}
s_mov_b32 {s(sCNT)}, 0x40000
{lp}:
buffer_load_dword {v(vNV)}, off, {s(SD,4)}, 0 sc1
s_waitcnt vmcnt(0)
v_readfirstlane_b32 {s(sNON)}, {v(vNV)}
s_cmp_lg_u32 {s(sNON)}, 0
s_cbranch_scc1 {done}
s_sub_u32 {s(sCNT)}, {s(sCNT)}, 1
s_cbranch_scc0 {lp}
{done}:""", tag="opaque")

    def mainloop(self, S, side, early, fill0, fill1, pf, tail, epsq=None, pf0=[]):
        S(f"buffer_load_dword {v(vNV)}, {v(vNA)}, {s(SWS,4)}, 0 offen sc1")
        S.add(early)
        d1 = self.dma_stage(1, side)
        S.add(d1[:2])
        S(f"v_add_u32 {v(RX+2)}, 0x20000, {v(RX)}\nv_add_u32 {v(RX+5)}, 0x20000, {v(RX+3)}")
        S(f"v_add_u32 {v(RW+2)}, 0x20000, {v(RW)}\nv_add_u32 {v(RW+5)}, 0x20000, {v(RW+3)}")
        S(f"""s_lshr_b32 s3, {s(sXCD)}, 2
s_lshl_b32 s3, s3, 4
s_add_u32 s3, s3, {s(sRB)}
s_lshl_b32 s3, s3, 10
s_add_u32 s3, s3, {WS_XI}
v_lshrrev_b32 v7, 3, v1
v_lshl_add_u32 {v(vXI+1)}, v7, 7, s3
s_lshl_b32 {s(sSAME)}, {s(sCB)}, 7
s_add_u32 s3, s3, {s(sSAME)}
v_mov_b32 v7, s3
v_mov_b32 v8, {OOB}
v_cmp_eq_u32 vcc, 0, v0
v_cndmask_b32 {v(vXI)}, v8, v7, vcc
s_getreg_b32 s3, hwreg(HW_REG_XCC_ID, 0, 4)
v_mov_b32 {v(vXI+3)}, s3""")
        S.add(fill0)
        S.add(d1[2:])
        S.add(pf0)
        self.stamp(S, 0)
        S("@waittag st0\ns_barrier")
        self.stamp(S, 1)
        S.add(self.reads(0, side))
        q = {h: [] for h in range(21)}
        q[0] = self.dma_stage(2, side)
        d = self.dma_stage(3, side)
        q[1] = [self.nonce_make()] + d[:5]
        q[2] = d[5:]
        for st in range(4, 10):
            d = self.dma_stage(st, side)
            q[2 * st - 5] += d[:5]
            q[2 * st - 4] += d[5:]
        q[12] += [mk(f"buffer_load_dword {v(vNV)}, off, {s(SD,4)}, 0 sc1")]
        q[15] += [mk(f"""v_mov_b32 {v(vXI+2)}, {s(sNON)}
buffer_store_dwordx2 {v(vXI+2,2)}, {v(vXI)}, {s(SWS,4)}, 0 offen sc1""")] + pf
        q[19] += tail
        f0, f1 = 0, self.opt.get("f1", 5)
        nf = len(fill1)
        for h in range(20):
            st = h >> 1
            if h & 1:
                if st + 1 < 10:
                    S(f"@waittag st{st+1}")
                if h == 19:
                    S("@waitlgkm0")
                S("s_barrier")
            if h == 15:
                self.nonce_get(S)
            if h in (5, 11):
                self.stamp(S, 2 if h == 5 else 3)
            rd = self.reads(h + 1, side) if h < 19 else []
            fl = []
            if f0 <= h <= f1:
                lo = (h - f0) * nf // (f1 - f0 + 1)
                hi = (h - f0 + 1) * nf // (f1 - f0 + 1)
                fl = fill1[lo:hi]
            mf = self.mfmas(h, side, epsq)
            last = a(AW + 40 * (h & 1) + 36, 4)
            if side == "B":
                mf[0] = [I(f"@need {last}"), mf[0]]
            else:
                mf[0] = [I(f"@need {a(AW + 40 * (h & 1) + 16, 4)}"), mf[0]]
                mf[8] = [I(f"@need {last}"), mf[8]]
            S.add(interleave(mf, (rd, 0, 11 if side == "B" else 14), (q[h], 1, 19), (fl, 2, 19)))

    def xi_load(self, d):
        return mk(f"buffer_load_dwordx2 {v(d,2)}, {v(vXI+1)}, {s(SWS,4)}, 0 offen sc1")

    def xi_eval(self, d):
        t = f"""v_cmp_ne_u64 vcc, {v(d,2)}, {v(vXI+2,2)}
s_cmp_eq_u64 vcc, 0
s_cselect_b32 {s(sSAME)}, 1, 0"""
        if self.opt.get("nosame"):
            t += f"\ns_mov_b32 {s(sSAME)}, 0"
        return mk(t)

    def two_way(self, S, text, tag=None):
        l1, l2 = self.lab("wt"), self.lab("j")
        S(f"s_cmp_eq_u32 {s(sSAME)}, 0\ns_cbranch_scc1 {l1}")
        S(text.replace("@M", ""), tag=tag)
        S(f"s_branch {l2}\n{l1}:")
        S(text.replace("@M", " sc1"), tag="opaque")
        S(f"{l2}:")

    def flag_store(self, S, ad):
        if self.opt.get("pflag", 1):
            self.two_way(S, f"buffer_store_dword v4, {v(ad)}, {s(SWS,4)}, 0 offen@M")
        else:
            S(f"buffer_store_dword v4, {v(ad)}, {s(SWS,4)}, 0 offen sc1")

    def poll_flags(self, S, areg, nloads, dreg, step=0):
        lp, done = self.lab("poll"), self.lab("pdone")
        S(f"s_mov_b32 {s(sCNT)}, 0x40000\n{lp}:")
        for k in range(nloads):
            S(f"buffer_load_dword {v(dreg+k)}, {v(areg+k)}, {s(SWS,4)}, 0 offen sc1")
        S("s_waitcnt vmcnt(0)")
        S(f"v_xor_b32 {v(dreg)}, {s(sNON)}, {v(dreg)}")
        for k in range(1, nloads):
            S(f"v_xor_b32 {v(dreg+k)}, {s(sNON)}, {v(dreg+k)}\nv_or_b32 {v(dreg)}, {v(dreg)}, {v(dreg+k)}")
        S(f"""v_cmp_ne_u32 vcc, 0, {v(dreg)}
s_cbranch_vccz {done}
s_sub_u32 {s(sCNT)}, {s(sCNT)}, 1
s_cbranch_scc0 {lp}
{done}:""")

    def out_addrs(self, S, side, base, r0):
        S(f"""v_and_b32 v4, 15, v0
v_bfe_u32 v3, v0, 4, 2
s_mul_i32 {s(sT0)}, {s(sW)}, 10752
s_add_u32 {s(sT0)}, {s(sT0)}, {base}
v_mul_u32_u24 v5, 336, v4
v_lshl_add_u32 v5, v3, 4, v5
v_add_u32 {v(r0)}, {s(sT0)}, v5
s_lshl_b32 {s(sT1)}, {s(sRB)}, 7
s_lshl_b32 {s(sT2)}, {s(sW)}, 5
s_add_u32 {s(sT1)}, {s(sT1)}, {s(sT2)}
s_mul_i32 {s(sT1)}, {s(sT1)}, 5120
s_mul_i32 {s(sT2)}, {s(sCB)}, 320
s_add_u32 {s(sT1)}, {s(sT1)}, {s(sT2)}
s_add_u32 {s(sT1)}, {s(sT1)}, {2560 if side == 'B' else 0}
v_and_b32 v3, 63, v0""")
        for m in range(5):
            S(f"""v_add_u32 v4, {64*m}, v3
v_mul_u32_u24 v5, 3277, v4
v_lshrrev_b32 v5, 16, v5
v_lshlrev_b32 v4, 4, v4
v_lshl_add_u32 v6, v5, 4, v4
v_add_u32 {v(r0+7+m)}, {s(sT0)}, v6
v_mul_u32_u24 v5, 4800, v5
v_add3_u32 {v(r0+2+m)}, v5, v4, {s(sT1)}""")
        S(f"s_mov_b32 {s(sHX0)}, {16*5120}")

    def store_out(self, S, acc, r0, tmp):
        m_ = {0: "", 1: " nt", 2: " sc1", 3: " sc0 sc1"}[self.opt.get("omod", 0)]
        for i in range(2):
            for n in range(5):
                S(f"ds_write_b128 {v(r0)}, {v(acc + (n*2+i)*4, 4)} offset:{64*n + 16*336*i}")
        for i in range(2):
            for m in range(5):
                S(f"ds_read_b128 {v(tmp + 4*(5*i+m), 4)}, {v(r0+7+m)} offset:{16*336*i}")
        for i in range(2):
            for m in range(5):
                S(f"buffer_store_dwordx4 {v(tmp + 4*(5*i+m), 4)}, {v(r0+2+m)}, {s(SO,4)}, {s(sHX0) if i else 0} offen{m_}")

    def side_B(self):
        S = Stream()
        self.cur = S
        S("L_sideB:")
        CST = 48
        CL8, CL128, CCF = 88, 90, 92
        vSCW, vSCC, vSCH, vEP, vTW, vTB, vHS, vHF, vHP = 25, 26, 27, 28, 29, 30, 32, 33, 34
        vSEG, vXS = 94, 95
        PRM = 136
        VE = 118
        VX = 96
        CW = 126
        vHW, vGRP, vDS = 128, 129, 131
        RC = 132
        XSA = 108
        BIG = 136
        S(f"""s_and_b32 {s(sT2)}, {s(sW)}, 1
s_lshl_b32 {s(sT1)}, {s(sT2)}, 6
v_xor_b32 v7, {s(sT1)}, v5
s_mul_i32 {s(sT2)}, {s(sT2)}, 40
s_mul_i32 {s(sT1)}, {s(sCB)}, 80
s_add_u32 {s(sT2)}, {s(sT2)}, {s(sT1)}
s_mul_i32 {s(sT2)}, {s(sT2)}, 1280
v_mul_u32_u24 v8, 1280, v2
v_add3_u32 {v(WA)}, v7, v8, {s(sT2)}
v_xor_b32 v8, 64, {v(WA)}""")
        for i in range(1, 5):
            S(f"v_add_u32 {v(WA+i)}, {8*i*1280 - 1024*(i & 3)}, {'v8' if i & 1 else v(WA)}")
        S(f"""s_cmp_ge_u32 {s(sW)}, 2
s_cselect_b32 {s(SW)}, s18, s16
s_cselect_b32 {s(SW+1)}, s19, s17
s_cselect_b32 {s(SC)}, s22, s20
s_cselect_b32 {s(SC+1)}, s23, s21
s_mov_b32 {s(SW+2)}, {640*1280}
s_mov_b32 {s(SW+3)}, 0x20000""")
        S.add(self.dma_w(16 * K, WA, SW, sT0, "st0", "", self.wmod))
        self.late_setup(S)
        S(f"""v_subrev_u32 {v(RW)}, {s(sMX)}, {v(RX)}
v_xor_b32 {v(RW+3)}, 64, {v(RW)}
v_add_u32 {v(RW+1)}, 0x10000, {v(RW)}
v_add_u32 {v(RW+4)}, 0x10000, {v(RW+3)}""")
        S(f"""s_mul_i32 {s(sT0)}, {s(sCB)}, 160
v_lshl_add_u32 v9, v4, 1, {s(sT0)}
v_min_u32 v11, 59, v1
v_mul_u32_u24 {v(vGRP)}, 205, v11
v_lshrrev_b32 {v(vGRP)}, 12, {v(vGRP)}
v_mul_u32_u24 v8, 20, {v(vGRP)}
v_sub_u32 v11, v11, v8
s_mul_i32 {s(sT1)}, {s(sW)}, 20
v_add_u32 v11, {s(sT1)}, v11
v_lshl_add_u32 v10, v11, 1, {s(sT0)}""")
        self.common_srds(S)
        S(f"s_mov_b32 {s(SC+2)}, {640*1280}\ns_mov_b32 {s(SC+3)}, 0x20000")
        self.srd(S, SP0, 12, 1280)
        self.srd(S, SP1, 14, 1280)
        self.srd(S, SP2, 24, 1280)
        self.srd(S, SP3, 26, 1280)
        early = []
        for t in range(6):
            for k, sp in enumerate((SP0, SP1, SP2)):
                ad, off = ("v9", 32 * t) if t < 5 else ("v10", 0)
                early += mk(f"buffer_load_ushort {v(PRM + 3*t + k)}, {ad}, {s(sp,4)}, 0 offen offset:{off}")

        F = []
        def f(t): F.extend(groups(t))
        F0, F1 = s(sF0), s(sF1)
        f(f"""s_lshl_b32 {F0}, {s(sW)}, 2
v_add_u32 {v(vSEG)}, {F0}, v3
v_mul_u32_u24 v2, 640, {v(vSEG)}
v_lshl_add_u32 v2, v4, 3, v2
v_add_u32 {v(vSCW)}, {SCAN}, v2
v_lshlrev_b32 v2, 3, v11
v_add_u32 {v(vSCC)}, {SCAN}, v2
v_mul_u32_u24 v5, 640, {v(vGRP)}
v_add_u32 {v(vHW)}, {v(vSCC)}, v5
v_lshlrev_b32 v2, 3, v4
v_add_u32 {v(vSCH)}, {SCAN + 10240}, v2
v_lshlrev_b32 {v(vSEG)}, 3, {v(vSEG)}
v_cvt_f32_u32 {v(vSEG)}, {v(vSEG)}""")
        f(f"""s_mul_i32 {F0}, {s(sCB)}, 1280
s_mul_i32 {F1}, {s(sRB)}, 10240
s_add_u32 {F0}, {F0}, {F1}
v_lshl_add_u32 v2, v11, 4, {F0}
v_mov_b32 v5, {OOB}
v_cmp_gt_u32 vcc, 20, v1
+v_cndmask_b32 {v(vEP)}, v5, v2, vcc
v_mul_u32_u24 v5, 51200, {v(vGRP)}
v_add_u32 v2, v2, v5""")
        for j in range(5):
            f(f"v_add_u32 {v(VE+j)}, {((j - 15) * 10240) & 0xffffffff:#x}, v2")
        f(f"""s_mul_i32 {F0}, {s(sW)}, 10240
s_add_u32 {F0}, {F0}, {TBUF}
v_bfe_u32 v2, v4, 1, 2
v_lshrrev_b32 v5, 3, v4
v_lshlrev_b32 v5, 1, v5
v_xor_b32 v2, v2, v5
v_xor_b32 v2, v2, v3
v_lshlrev_b32 v2, 4, v2
v_lshl_add_u32 v2, v4, 6, v2
v_add_u32 {v(vTW)}, {F0}, v2
v_and_b32 v2, 1, v3
v_bfe_u32 v5, v1, 2, 2
v_lshl_add_u32 v6, v2, 3, v5
v_lshlrev_b32 v6, 6, v6
v_lshrrev_b32 v5, 1, v5
v_bfe_u32 v7, v1, 1, 1
v_xor_b32 v5, v5, v7
v_lshl_add_u32 v5, v2, 1, v5
v_lshl_add_u32 v6, v5, 4, v6
v_and_b32 v5, 1, v1
v_lshl_add_u32 v6, v5, 3, v6
v_lshrrev_b32 v5, 1, v3
v_lshl_add_u32 v6, v5, 10, v6
v_add_u32 {v(vTB)}, {F0}, v6
v_xor_b32 {v(vTB+1)}, 32, {v(vTB)}""")
        f(f"""s_lshl_b32 {F0}, {s(sRB)}, 2
s_add_u32 {F0}, {F0}, {s(sW)}
s_mul_i32 {s(sAW)}, {F0}, 81920
s_add_u32 {s(sAW)}, {s(sAW)}, {WS_H}
s_mul_i32 {F1}, {s(sCB)}, 10240
s_add_u32 {F1}, {F1}, {s(sAW)}
v_add_u32 {v(vHS)}, {F1}, {v(vL16)}
s_lshl_b32 {F0}, {F0}, 10
s_add_u32 {F0}, {F0}, {WS_HF}
v_lshrrev_b32 v2, 3, v1
v_lshlrev_b32 v2, 7, v2
v_add_u32 {v(vHP)}, {F0}, v2
s_lshl_b32 {F1}, {s(sCB)}, 7
s_add_u32 {F0}, {F0}, {F1}
v_mov_b32 v2, {F0}
v_mov_b32 v5, {OOB}
v_cmp_eq_u32 vcc, 0, v1
+v_cndmask_b32 {v(vHF)}, v5, v2, vcc""")
        f(f"""v_and_b32 v2, 1, v3
v_lshrrev_b32 v5, 1, v4
v_xor_b32 v2, v2, v5
v_lshlrev_b32 v2, 4, v2
v_lshl_add_u32 v2, v4, 7, v2
v_lshrrev_b32 v5, 1, v3
v_mul_u32_u24 v5, 10240, v5
v_add_u32 {v(RC)}, v5, v2
v_xor_b32 {v(RC+1)}, 32, {v(RC)}
v_xor_b32 {v(RC+2)}, 64, {v(RC)}
v_xor_b32 {v(RC+3)}, 96, {v(RC)}""")
        f(f"""s_lshl_b32 {F0}, {s(sRB)}, 7
s_lshl_b32 {F1}, {s(sW)}, 5
s_add_u32 {F0}, {F0}, {F1}
s_mul_i32 {F0}, {F0}, 1280
s_mul_i32 {F1}, {s(sCB)}, 160
v_lshl_add_u32 {v(vDS)}, v3, 3, {F1}
s_add_u32 {F0}, {F0}, {F1}
s_mul_i32 {F1}, {s(sW)}, 5120
s_add_u32 {s(sAW+4)}, {F1}, {76*K}
v_mul_u32_u24 v2, 160, v4
v_lshl_add_u32 v2, v3, 3, v2
v_add_u32 {v(vXS)}, {s(sAW+4)}, v2""")
        for m in range(5):
            f(f"""v_add_u32 v2, {64*m}, v1
v_mul_u32_u24 v5, 6554, v2
v_lshrrev_b32 v5, 16, v5
v_mul_u32_u24 v5, 1120, v5
v_lshl_add_u32 v5, v2, 4, v5
v_add_u32 v5, {(-1024*(m & 3)) & 0xffffffff:#x}, v5
v_add_u32 {v(XSA+m)}, {F0}, v5""")

        f(f"""s_lshr_b32 {F0}, s2, 3
s_mul_i32 {F0}, {F0}, 200
s_and_b32 {F1}, {s(sW)}, 1
s_mul_i32 {F1}, {F1}, 100
s_add_u32 {F0}, {F0}, {F1}
v_add_u32 v35, {F0}, v1
v_lshlrev_b32 v35, 7, v35
v_add_u32 v36, 8192, v35""")
        F_addr = F
        F = []

        def power(n, dr, di):
            t = ""
            if n is None:
                t += "v_mov_b32 v12, v8\nv_mov_b32 v13, v9\n"
            else:
                t += f"v_mul_f32 v12, {n}, v8\nv_mul_f32 v13, {n}, v9\n"
            t += f"""v_exp_f32 v12, v12
v_fract_f32 v13, v13
v_cos_f32 v14, v13
v_sin_f32 v15, v13
v_mul_f32 {v(dr)}, v12, v14
v_mul_f32 {v(di)}, v12, v15"""
            return t
        for t in range(6):
            lr, li, ld = PRM + 3 * t, PRM + 3 * t + 1, PRM + 3 * t + 2
            c = CST + 8 * t
            f(f"""v_lshlrev_b32 {v(ld)}, 16, {v(ld)}
v_lshlrev_b32 {v(lr)}, 16, {v(lr)}
v_lshlrev_b32 {v(li)}, 16, {v(li)}
v_mul_f32 v2, {f2u(LOG2E)}, {v(ld)}
v_exp_f32 v2, v2
v_cvt_pk_bf16_f32 v2, v2, v2
v_and_b32 v2, 0xffff0000, v2
v_mul_f32 v8, v2, {v(lr)}
v_mul_f32 v9, v2, {v(li)}
v_mul_f32 v8, {f2u(LOG2E)}, v8
v_mul_f32 v9, 0.15915494, v9""")
            Lr, Li = (c, c + 2) if t < 5 else (6, 7)
            cf = c + 4 if t < 5 else CCF
            f(power(None, Lr, Li))
            f(f"""v_add_f32 v2, -1.0, {v(Lr)}
v_mul_f32 v5, {v(lr)}, {v(lr)}
v_fmac_f32 v5, {v(li)}, {v(li)}
v_rcp_f32 v5, v5
v_mul_f32 v10, v2, {v(lr)}
v_fmac_f32 v10, {v(Li)}, {v(li)}
v_add_f32 v5, v5, v5
v_mul_f32 {v(cf)}, v10, v5
v_mul_f32 v10, {v(Li)}, {v(lr)}
v_fma_f32 v10, -v2, {v(li)}, v10
v_mul_f32 {v(cf+1)}, v10, v5""")
            if t < 5:
                f(f"""v_mul_f32 v2, {v(Li)}, {v(Li)}
v_fma_f32 {v(c+1)}, {v(Lr)}, {v(Lr)}, -v2
v_mul_f32 v2, {v(Lr)}, {v(Li)}
v_add_f32 {v(c+3)}, v2, v2""")
                f(power(v(vSEG), c + 6, c + 7))
            else:
                f(power(f2u(8.0), CL8, CL8 + 1))
                f(power(f2u(128.0), CL128, CL128 + 1))
                f(f"""v_sub_u32 v10, 2, {v(vGRP)}
v_mul_u32_u24 v10, 640, v10
v_cvt_f32_u32 v10, v10""")
                f(power("v10", 6, 7))
                f(f"""v_mul_f32 {v(CW)}, {v(CCF)}, v6
v_mul_f32 {v(CW+1)}, {v(CCF)}, v7
v_fma_f32 {v(CW)}, -{v(CCF+1)}, v7, {v(CW)}
v_fmac_f32 {v(CW+1)}, {v(CCF+1)}, v6""")
        f(f"""s_add_u32 {s(SE)}, {s(SWS)}, {WS_E}
+s_addc_u32 {s(SE+1)}, {s(SWS+1)}, 0
s_mov_b32 {s(SE+2)}, 163840""")

        def cchunk(k):
            pre = f"""s_add_u32 {s(sT1)}, {s(sAW+2)}, {k}
s_sub_u32 {s(sT2)}, {s(sT1)}, 10
s_cselect_b32 {s(sT1)}, {s(sT1)}, {s(sT2)}
s_lshl_b32 {s(sT1)}, {s(sT1)}, 7
"""
            return self.dma_w(CH[k], WA, SC, sT1, f"c{k}", pre)
        S(f"s_mul_i32 {s(sAW+2)}, {s(sCB)}, 5\ns_lshr_b32 {s(sAW+2)}, {s(sAW+2)}, 2")
        pf = [mk(f"buffer_load_dword v{37+k}, v{35+k}, {s(SC,4)}, 0 offen") for k in range(2)]
        xs = []
        for m in range(5):
            pre = f"s_add_u32 m0, {s(sAW+4)}, {4096*(m >> 2)}\n" if (m & 3) == 0 else ""
            xs.append(mk(pre + f"buffer_load_dwordx4 {v(XSA+m)}, {s(SX,4)}, 0 offen offset:{1024*(m & 3)} lds", "xs"))
        F_addr += [mk(f"buffer_load_dwordx2 {a(240 + 2*n, 2)}, {v(vDS)}, {s(SP3,4)}, 0 offen offset:{32*n}") for n in range(5)]
        xr = [mk("@waittag xs")] + [mk(f"ds_read_b64 {a(2*(5*i+n), 2)}, {v(vXS)} offset:{32*n + 2560*i}") for i in range(2) for n in range(5)]
        pt = []
        if self.opt.get("pretouch", 0):
            F_addr += groups(f"""v_mul_u32_u24 v2, 112, v1
v_add_u32 v123, {v(vHS)}, v2
v_add_u32 v124, 8192, v123
v_mov_b32 v5, {OOB}
v_cmp_gt_u32 vcc, 16, v1
+v_cndmask_b32 v124, v5, v124, vcc""")
            pt = [mk(f"buffer_load_dword v{125+5*k}, v{123+k}, {s(SWS,4)}, 0 offen nt") for k in range(2)]
        self.mainloop(S, "B", early, F_addr, F, xs + (pf + pt if self.opt.get("ptlast", 1) else pt + pf), xr)
        self.stamp(S, 4)

        re = lambda t, k: ACC + (t * 2 + (k >> 1)) * 4 + 2 * (k & 1)
        im = lambda t, k: ACC + ((t + 5) * 2 + (k >> 1)) * 4 + 2 * (k & 1)
        HI = "op_sel:[1,0,0] op_sel_hi:[1,1,1]"
        NEG = "neg_lo:[1,0,0] neg_hi:[1,0,0]"
        T0 = BIG
        cur = None
        for k in range(1, 4):
            dst = T0 if k & 1 else BIG + 20
            for t in range(5):
                c = CST + 8 * t
                sr, si = (re(t, 0), im(t, 0)) if k == 1 else (cur + 4 * t, cur + 4 * t + 2)
                S(f"v_pk_fma_f32 {v(dst+4*t,2)}, {v(c,2)}, {v(sr,2)}, {v(re(t,k),2)} {HI}")
                S(f"v_pk_fma_f32 {v(dst+4*t+2,2)}, {v(c,2)}, {v(si,2)}, {v(im(t,k),2)} {HI}")
            for t in range(5):
                c = CST + 8 * t
                sr, si = (re(t, 0), im(t, 0)) if k == 1 else (cur + 4 * t, cur + 4 * t + 2)
                S(f"v_pk_fma_f32 {v(dst+4*t,2)}, {v(c+2,2)}, {v(si,2)}, {v(dst+4*t,2)} {HI} {NEG}")
                S(f"v_pk_fma_f32 {v(dst+4*t+2,2)}, {v(c+2,2)}, {v(sr,2)}, {v(dst+4*t+2,2)} {HI}")
            cur = dst
        EE = BIG + 20
        for t in range(5):
            c, b = CST + 8 * t, cur + 4 * t
            S(f"v_fma_f32 {v(EE+2*t)}, {v(c)}, {v(b)}, {v(b+1)}\nv_fma_f32 {v(EE+2*t+1)}, {v(c)}, {v(b+2)}, {v(b+3)}")
        for t in range(5):
            c, b = CST + 8 * t, cur + 4 * t
            S(f"v_fma_f32 {v(EE+2*t)}, -{v(c+2)}, {v(b+2)}, {v(EE+2*t)}\nv_fmac_f32 {v(EE+2*t+1)}, {v(c+2)}, {v(b)}")
            S(f"ds_write_b64 {v(vSCW)}, {v(EE+2*t,2)} offset:{128*t}")
        S("@waitlgkm0\ns_barrier")
        ch = lambda j: BIG + 2 * j
        for j in range(16):
            S(f"ds_read_b64 {v(ch(j),2)}, {v(vSCC)} offset:{640*j}")
        for j in range(1, 16):
            p, c = ch(j - 1), ch(j)
            S(f"""v_fmac_f32 {v(c)}, {v(CL8)}, {v(p)}
v_fmac_f32 {v(c+1)}, {v(CL8)}, {v(p+1)}
v_fma_f32 {v(c)}, -{v(CL8+1)}, {v(p+1)}, {v(c)}
v_fmac_f32 {v(c+1)}, {v(CL8+1)}, {v(p)}""")
            if j == 1:
                S(f"v_mov_b32 {v(BIG+32)}, {s(sNON)}\nv_mov_b32 {v(BIG+33)}, {s(sNON)}")
        S(f"buffer_store_dwordx4 {v(BIG+30,4)}, {v(vEP)}, {s(SE,4)}, 0 offen sc1")
        self.stamp(S, 5)
        S_main = S
        S = Stream()
        S(f"v_mov_b32 v2, 0\nv_mov_b32 v3, 0\nds_write_b64 {v(vSCC)}, v[2:3]")
        for j in range(15):
            c = ch(j)
            d = 4 + 2 * (j & 3)
            S(f"""v_mul_f32 {v(d)}, {v(CCF)}, {v(c)}
v_mul_f32 {v(d+1)}, {v(CCF)}, {v(c+1)}
v_fma_f32 {v(d)}, -{v(CCF+1)}, {v(c+1)}, {v(d)}
v_fmac_f32 {v(d+1)}, {v(CCF+1)}, {v(c)}
ds_write_b64 {v(vSCC)}, {v(d,2)} offset:{640*(j+1)}""")
        LO = "op_sel:[0,0] op_sel_hi:[0,1]"
        for t in range(5):
            cf = CST + 8 * t + 4
            for k in range(4):
                d = 2 + 2 * (k & 1)
                S(f"""v_pk_mul_f32 {v(d,2)}, {v(cf,2)}, {v(re(t,k),2)} op_sel:[1,0] op_sel_hi:[1,1]
v_pk_mul_f32 {v(re(t,k),2)}, {v(cf,2)}, {v(re(t,k),2)} {LO}
v_pk_fma_f32 {v(re(t,k),2)}, {v(cf,2)}, {v(im(t,k),2)}, {v(re(t,k),2)} {HI} {NEG}
v_pk_fma_f32 {v(im(t,k),2)}, {v(cf,2)}, {v(im(t,k),2)}, {v(d,2)} op_sel:[0,0,0] op_sel_hi:[0,1,1]""")
        for x in range(7, 0, -1):
            for t in range(5):
                c = CST + 8 * t
                ur, ui = re(t, x >> 1) + (x & 1), im(t, x >> 1) + (x & 1)
                pr, pi = re(t, (x - 1) >> 1) + ((x - 1) & 1), im(t, (x - 1) >> 1) + ((x - 1) & 1)
                S(f"""v_fmac_f32 {v(ur)}, {v(c)}, {v(pr)}
v_fmac_f32 {v(ui)}, {v(c)}, {v(pi)}
v_fma_f32 {v(ur)}, -{v(c+2)}, {v(pi)}, {v(ur)}
v_fmac_f32 {v(ui)}, {v(c+2)}, {v(pr)}""")
        cq = [self.xi_load(36)] + [x for k in range(5) for x in cchunk(k)]
        S_main.add(interleave(S.items, (cq, 4, len(S.items) - 40)))
        S = S_main
        SL = 108
        S("@waitlgkm0\ns_barrier")
        for t in range(5):
            S(f"ds_read_b64 {v(SL+2*t,2)}, {v(vSCW)} offset:{128*t}")
        self.stamp(S, 6)
        S.add(self.xi_eval(36))
        S(f"v_mov_b32 v2, {s(sNON)}")
        for j in range(5):
            S(f"v_cmp_le_i32 vcc, 0, {v(VE+j)}\nv_cndmask_b32_e64 {v(VX+j)}, 0, v2, vcc")
        S("@waitlgkm0")
        lp, done = self.lab("epoll"), self.lab("edone")
        S(f"s_mov_b32 {s(sCNT)}, 0x40000\n{lp}:")
        for j in range(5):
            S(f"buffer_load_dwordx4 {v(BIG+4*j,4)}, {v(VE+j)}, {s(SE,4)}, 0 offen sc1")
        S("s_waitcnt vmcnt(0)")
        for j in range(5):
            d, hp = BIG + 4 * j, BIG + 4 * j - 4
            S(f"v_xor_b32 {v(d+2)}, {v(d+2)}, {v(VX+j)}")
            if j:
                S(f"""v_fmac_f32 {v(d)}, {v(CL128)}, {v(hp)}
v_fmac_f32 {v(d+1)}, {v(CL128)}, {v(hp+1)}
v_or_b32 {v(d+2)}, {v(d+2)}, {v(hp+2)}
v_fma_f32 {v(d)}, -{v(CL128+1)}, {v(hp+1)}, {v(d)}
v_fmac_f32 {v(d+1)}, {v(CL128+1)}, {v(hp)}""")
        hp = BIG + 16
        S(f"""v_cmp_ne_u32 vcc, 0, {v(hp+2)}
v_mul_f32 v4, {v(CW)}, {v(hp)}
v_mul_f32 v5, {v(CW)}, {v(hp+1)}
v_fma_f32 v4, -{v(CW+1)}, {v(hp+1)}, v4
v_fmac_f32 v5, {v(CW+1)}, {v(hp)}
s_cbranch_vccz {done}
s_sub_u32 {s(sCNT)}, {s(sCNT)}, 1
s_cbranch_scc0 {lp}
{done}:""")
        S(f"""ds_write_b64 {v(vHW)}, v[4:5] offset:10240
@waitlgkm0
s_barrier""")
        self.stamp(S, 7)
        HH = BIG
        for t in range(5):
            for g in range(3):
                S(f"ds_read_b64 {v(HH+10*g+2*t,2)}, {v(vSCH)} offset:{128*t + 640*g}")
        for g in (1, 2):
            for t in range(5):
                S(f"v_pk_add_f32 {v(HH+2*t,2)}, {v(HH+2*t,2)}, {v(HH+10*g+2*t,2)}")
        for t in range(5):
            ls, h_, sl = CST + 8 * t + 6, HH + 2 * t, SL + 2 * t
            S(f"""v_fmac_f32 {v(sl)}, {v(ls)}, {v(h_)}
v_fmac_f32 {v(sl+1)}, {v(ls)}, {v(h_+1)}
v_fma_f32 {v(sl)}, -{v(ls+1)}, {v(h_+1)}, {v(sl)}
v_fmac_f32 {v(sl+1)}, {v(ls+1)}, {v(h_)}""")
        for t in range(5):
            c, sl = CST + 8 * t, SL + 2 * t
            S(f"v_pk_fma_f32 {v(re(t,0),2)}, {v(c,2)}, {v(sl,2)}, {v(re(t,0),2)} op_sel:[0,0,0] op_sel_hi:[1,0,1]")
            S(f"v_pk_fma_f32 {v(im(t,0),2)}, {v(c,2)}, {v(sl,2)}, {v(im(t,0),2)} op_sel:[0,1,0] op_sel_hi:[1,1,1]")
        for t in range(5):
            c, sl = CST + 8 * t, SL + 2 * t
            S(f"v_pk_fma_f32 {v(re(t,0),2)}, {v(c+2,2)}, {v(sl,2)}, {v(re(t,0),2)} op_sel:[0,1,0] op_sel_hi:[1,1,1] {NEG}")
            S(f"v_pk_fma_f32 {v(im(t,0),2)}, {v(c+2,2)}, {v(sl,2)}, {v(im(t,0),2)} op_sel:[0,0,0] op_sel_hi:[1,0,1]")
        for k in range(1, 4):
            for t in range(5):
                c = CST + 8 * t
                S(f"v_pk_fma_f32 {v(re(t,k),2)}, {v(c,2)}, {v(re(t,k-1),2)}, {v(re(t,k),2)} {HI}")
                S(f"v_pk_fma_f32 {v(im(t,k),2)}, {v(c,2)}, {v(im(t,k-1),2)}, {v(im(t,k),2)} {HI}")
            for t in range(5):
                c = CST + 8 * t
                S(f"v_pk_fma_f32 {v(re(t,k),2)}, {v(c+2,2)}, {v(im(t,k-1),2)}, {v(re(t,k),2)} {HI} {NEG}")
                S(f"v_pk_fma_f32 {v(im(t,k),2)}, {v(c+2,2)}, {v(re(t,k-1),2)}, {v(im(t,k),2)} {HI}")
        CV = 48
        for t in range(5):
            for ri in range(2):
                d = CV + 4 * (2 * t + ri)
                for k in range(4):
                    r = re(t, k) if ri == 0 else im(t, k)
                    n = "" if ri == 0 else "-"
                    S(f"v_cvt_pk_bf16_f32 {v(d+k)}, {n}{v(r)}, {n}{v(r+1)}")
                S(f"ds_write_b128 {v(vTW)}, {v(d,4)} offset:{1024*(2*t+ri)}")
        HFR = ACC
        for t in range(5):
            for i in range(2):
                d = HFR + 4 * (2 * t + i)
                for j in range(2):
                    S(f"ds_read_b64_tr_b16 {v(d+2*j,2)}, {v(vTB + (i ^ j))} offset:{2048*t + 256*j}")
        S(f"v_add_u32 v2, 4096, {v(vHS)}\nv_add_u32 v3, 8192, {v(vHS)}")
        S("@waitlgkm0")
        self.two_way(S, "\n".join(f"buffer_store_dwordx4 {v(HFR+4*m,4)}, {[v(vHS), 'v2', 'v3'][m >> 2]}, {s(SWS,4)}, 0 offen offset:{1024*(m & 3)}@M" for m in range(10)), "hst")
        S("s_barrier")
        S(f"v_mov_b32 v4, {s(sNON)}")
        S("@waittag hst")
        self.flag_store(S, vHF)
        self.stamp(S, 8)
        XK, DK = 48, 68
        for x in range(30):
            S(f"v_accvgpr_read_b32 {v(XK + x)}, {a(x if x < 20 else 220 + x)}")
        for k in (5, 6, 7):
            S.add(cchunk(k))
        AC2 = ACC + 40
        for n in range(5):
            S(f"""v_lshlrev_b32 v4, 16, {v(DK+2*n)}
v_and_b32 v5, 0xffff0000, {v(DK+2*n)}
v_lshlrev_b32 v6, 16, {v(DK+2*n+1)}
v_and_b32 v7, 0xffff0000, {v(DK+2*n+1)}""")
            for i in range(2):
                x = XK + 2 * (5 * i + n)
                c = AC2 + (n * 2 + i) * 4
                S(f"""v_lshlrev_b32 v8, 16, {v(x)}
v_and_b32 v9, 0xffff0000, {v(x)}
v_lshlrev_b32 v10, 16, {v(x+1)}
v_and_b32 v11, 0xffff0000, {v(x+1)}
v_pk_mul_f32 v[8:9], v[8:9], v[4:5]
v_pk_mul_f32 v[10:11], v[10:11], v[6:7]
v_cvt_pk_bf16_f32 v12, v8, v9
v_cvt_pk_bf16_f32 v13, v10, v11
v_lshlrev_b32 {v(c)}, 16, v12
v_and_b32 {v(c+1)}, 0xffff0000, v12
v_lshlrev_b32 {v(c+2)}, 16, v13
v_and_b32 {v(c+3)}, 0xffff0000, v13""")
        S(f"v_add_u32 v14, {s(sAW)}, {v(vL16)}\nv_add_u32 v15, 4096, v14")
        for k in range(3):
            for j in range(4):
                S(f"v_add_u32 {v(96 + 4*k + j)}, {k * 0x10000}, {v(RC + j)}")
        self.out_addrs(S, "B", 20 * K, 48)
        self.poll_flags(S, vHP, 1, 4)
        self.stamp(S, 9)
        DEPTH = self.opt.get("hdepth", 6)
        def hload(u):
            c, tl = u >> 2, u & 3
            L = []
            pre = ""
            if tl == 0:
                pre = f"""s_add_u32 {s(sT0)}, {s(sAW+2)}, {c}
s_sub_u32 {s(sAW+3)}, {s(sT0)}, 10
s_cselect_b32 {s(sT0)}, {s(sT0)}, {s(sAW+3)}
s_lshl_b32 {s(sT0)}, {s(sT0)}, 13
"""
            for i in range(2):
                off = tl * 2048 + i * 1024
                d = ((u % 32) * 2 + i) * 4
                L.append(mk(pre + f"buffer_load_dwordx4 {a(d,4)}, v{14 + (off >> 12)}, {s(SWS,4)}, {s(sT0)} offen offset:{off & 4095}{self.lmod}"))
                pre = ""
            return L
        CF = 108
        def creads(u):
            c, tl = u >> 2, u & 3
            L = []
            for n in range(5):
                off = CH[c] + 2048 * n
                L.append(I(f"ds_read_b128 {v(CF + 20*(u & 1) + 4*n, 4)}, {v(96 + 4*(off >> 16) + tl)} offset:{off & 0xffff}"))
            return L
        for u in range(DEPTH):
            S.add(hload(u))
        S("@waittag c0 c1 c2 c3 c4 c5 c6 c7\ns_barrier")
        S.add(creads(0))
        for u in range(40):
            pre = []
            if u % 4 == 0:
                self.tr(S, 1)
            if u == 7:
                S("@waitlgkm0\ns_barrier")
            if u == 31:
                S("@waittag c8 c9\ns_barrier")
            mf = []
            for n in range(5):
                for i in range(2):
                    c = AC2 + (n * 2 + i) * 4
                    mf.append(I(f"{MF} {v(c,4)}, {v(CF + 20*(u & 1) + 4*n, 4)}, {a(((u % 32)*2+i)*4, 4)}, {v(c,4)}"))
            ld = hload(u + DEPTH) if u + DEPTH < 40 else []
            if 8 <= u < 18:
                ld = ld + [(cchunk(8) + cchunk(9))[u - 8]]
            rd = creads(u + 1) if u < 39 else []
            S.add(interleave(mf, (rd, 0, 4), (ld, 2, 9)))
        self.stamp(S, 10)
        self.store_out(S, AC2, 48, 176)
        self.stamp(S, 11)
        self.dump_stamps(S)
        S("s_endpgm")
        return S

    def phi_pairs(self, S, pairs, EPS, CPH):
        G = 4
        for b in range(0, len(pairs), G):
            blk = pairs[b:b + G]
            for x, (c, d) in enumerate(blk):
                S(f"v_pk_fma_f32 {v(2+2*x,2)}, {v(c,2)}, {v(CPH,2)}, {v(CPH,2)} op_sel:[0,0,1] op_sel_hi:[1,0,1]")
            for x, (c, d) in enumerate(blk):
                S(f"v_exp_f32 {v(2+2*x)}, {v(2+2*x)} clamp\nv_max_f32 {v(c)}, {v(EPS)}, {v(c)}")
                S(f"v_exp_f32 {v(3+2*x)}, {v(3+2*x)} clamp\nv_max_f32 {v(c+1)}, {v(EPS)}, {v(c+1)}")
            for x, (c, d) in enumerate(blk):
                S(f"v_pk_add_f32 {v(c,2)}, {v(c,2)}, {v(2+2*x,2)}")
            for x, (c, d) in enumerate(blk):
                S(f"v_cvt_pk_bf16_f32 {v(d)}, {v(c)}, {v(c+1)}")

    def side_A(self):
        S = Stream()
        self.cur = S
        EPSQ, CPH, EPSD = 48, 52, 56
        vXW, PKS, PKO, PKX, V0, V1O, V1X = 60, 61, 62, 63, 64, 65, 66
        PS, PO, P2, vRL, vBP, vKF, vKL, vOS, vOS2, vOL, vOF, vOP, vRX, vK3 = 67, 68, 69, 70, 71, 72, 73, 74, 75, 76, 77, 78, 79, 80
        UQ = 82
        sWO = SP0
        sC4K = SP0 + 5
        vB, vR, vC = UQ, UQ + 1, UQ + 2
        S(f"""v_lshrrev_b32 {v(vR)}, 2, v1
v_lshrrev_b32 v7, 5, v1
v_bfe_u32 {v(vB)}, v1, 1, 1
v_xor_b32 {v(vB)}, {v(vB)}, v7
v_and_b32 v7, 1, v1
v_lshlrev_b32 v7, 4, v7
v_lshl_add_u32 v7, {v(vB)}, 5, v7
s_mul_i32 {s(sT1)}, {s(sCB)}, 160
s_addk_i32 {s(sT1)}, 0x1000
v_add_u32 {v(vC)}, {s(sT1)}, v7
s_mul_i32 {s(sT2)}, {s(sW)}, {16*3840}
v_mul_u32_u24 v7, 3840, {v(vR)}
v_add3_u32 v7, v7, {v(vC)}, {s(sT2)}
v_add_u32 {v(WA)}, 1280, v7
v_add_u32 {v(WA+1)}, {1280 + 64 - 1024}, v7
v_mul_u32_u24 v8, 1120, {v(vB)}
v_add_u32 v9, {(1280 + 128 - 2048) & 0xffffffff:#x}, v7
v_add_u32 {v(WA+2)}, v8, v9
v_add_u32 {v(WA+3)}, {(1280 + 192 + 1120 - 3072) & 0xffffffff:#x}, v7
v_add_u32 {v(WA+4)}, {1280 + 256 + 1120}, v7
s_mul_i32 {s(sT1)}, {s(sT0)}, 1920""")
        self.srd_biased(S, SW, 6, 640 * 3840)
        S.add(self.dma_w(16 * K, WA, SW, sT1, "st0", "", self.wmod))
        self.late_setup(S)
        for c in range(5):
            S(f"s_mul_i32 {s(sAW+c)}, {s(sA128+c)}, 1920")
        S(f"s_mul_i32 {s(sHW0)}, {s(sHX0)}, 1920\ns_mul_i32 {s(sHW1)}, {s(sHX1)}, 1920")
        S(f"""v_bfe_u32 v7, v1, 2, 2
v_and_b32 v9, 1, v3
v_lshl_add_u32 v7, v9, 3, v7
v_lshlrev_b32 v7, 6, v7
v_and_b32 v8, 3, v1
v_lshl_add_u32 v7, v8, 3, v7
v_lshrrev_b32 v8, 1, v3
v_mul_u32_u24 v8, 5120, v8
v_add_u32 v7, v7, v8
v_lshl_add_u32 {v(RW)}, v9, 5, v7
v_xor_b32 {v(RW+3)}, 32, {v(RW)}
v_add_u32 {v(RW+1)}, 0x10000, {v(RW)}
v_add_u32 {v(RW+4)}, 0x10000, {v(RW+3)}""")
        for k in range(4):
            S(f"v_mov_b32 {v(EPSQ+k)}, {f2u(1e-6)}")
        self.common_srds(S)
        self.srd_biased(S, SC, 8, 640 * 1280)

        F = []
        def f(t): F.extend(groups(t))
        F0, F1 = s(sF0), s(sF1)
        HB = 320 * 3840
        f(f"""s_mul_i32 {F0}, {s(sW)}, {16*3840}
v_mul_u32_u24 v7, 3840, {v(vR)}
v_add3_u32 v7, v7, {v(vC)}, {F0}
s_mul_i32 {F0}, {s(sETA)}, {HB}
s_sub_u32 {F1}, {HB - 160}, {F0}
v_add_u32 v8, {F0}, v7
v_add_u32 v9, {F1}, v7
v_mov_b32 {v(WQ)}, v8
v_add_u32 {v(WQ+1)}, {(64 - 1024) & 0xffffffff:#x}, v8
v_cmp_eq_u32 vcc, 0, {v(vB)}
+v_cndmask_b32 v10, v9, v8, vcc
v_add_u32 {v(WQ+2)}, {(128 - 2048) & 0xffffffff:#x}, v10
v_add_u32 {v(WQ+3)}, {(192 - 3072) & 0xffffffff:#x}, v9
v_add_u32 {v(WQ+4)}, 256, v9""")
        H2 = 80 * 1280 - 160
        f(f"""s_lshl_b32 {F0}, {s(sW)}, 1
v_lshrrev_b32 v7, 3, {v(vR)}
v_add_u32 v7, {F0}, v7
v_and_b32 v7, 3, v7
v_mul_u32_u24 v7, 5, v7
v_and_b32 v8, 3, {v(vR)}
v_mul_u32_u24 v8, 20, v8
v_bfe_u32 v10, {v(vR)}, 2, 1
v_add3_u32 v7, v7, v8, v10
v_mul_u32_u24 v7, 1280, v7
v_add_u32 {v(WO)}, v7, {v(vC)}
v_add_u32 {v(WO+1)}, {(64 - 1024) & 0xffffffff:#x}, {v(WO)}
v_mul_u32_u24 v8, {H2}, {v(vB)}
v_add_u32 v9, {(128 - 2048) & 0xffffffff:#x}, {v(WO)}
v_add_u32 {v(WO+2)}, v8, v9
v_add_u32 {v(WO+3)}, {192 + H2 - 3072}, {v(WO)}
v_add_u32 {v(WO+4)}, {256 + H2}, {v(WO)}
v_mul_u32_u24 {v(UQ+3)}, {79*1280}, v10
v_mul_u32_u24 v8, {240*1280}, {v(vB)}
v_add_u32 {v(UQ+4)}, {v(UQ+3)}, v8
v_add_u32 {v(UQ+5)}, {240*1280}, {v(UQ+3)}""")
        f(f"s_lshr_b32 {F0}, {s(sW)}, 1\ns_mul_i32 {F1}, {F0}, 2560")
        for c in range(4):
            f(f"s_add_u32 {s(sWO+c)}, {F1}, {160*1280*c}")
        f(f"s_mul_i32 {F0}, {F0}, {160*1280}\ns_add_u32 {s(sWO+4)}, {F0}, {4*1280}")
        f(f"""s_movk_i32 {s(sC4K)}, 0x1000
s_movk_i32 {s(sC4K+1)}, 0x2000
v_mov_b32 {v(CPH)}, {f2u(LOG2E)}
v_mov_b32 {v(CPH+1)}, {f2u(-1e-6*LOG2E)}
v_mov_b32 {v(EPSD)}, 0
v_mov_b32 {v(EPSD+1)}, {f2u(1e-6)}
v_mov_b32 {v(EPSD+2)}, 0
v_mov_b32 {v(EPSD+3)}, {f2u(1e-6)}""")
        f(f"""s_mul_i32 {F0}, {s(sW)}, {XS}
s_add_u32 {F0}, {F0}, {XCH}
v_add_u32 {v(vXW)}, {F0}, {v(vL16)}
v_and_b32 v7, 1, v1
v_mul_u32_u24 v8, 0x3f80, v7
v_lshl_or_b32 v8, v8, 16, v8
v_lshl_add_u32 v35, v7, 4, {F0}
v_mov_b32 v54, v8""")
        def pk(dst, hh, aa):
            f(f"""{hh}
{aa}
v_mov_b32 v12, {XCH + 10240}
v_mov_b32 v7, {F1}
v_lshl_add_u32 v7, v7, 4, v4
v_mov_b32 v8, {F0}
v_lshlrev_b32 v9, 2, v8
v_sub_u32 v7, v7, v9
v_add_u32 v8, {F1}, v8
v_lshl_add_u32 v8, v8, 10, {v(vL16)}
v_add_u32 v8, {XCH}, v8
v_cmp_gt_u32 vcc, 20, v7
+v_cndmask_b32 {v(dst)}, v12, v8, vcc""")
        pk(PKS, f"s_mov_b32 {F0}, {s(sW)}", f"s_and_b32 {F1}, {s(sW)}, 1")
        pk(PKO, f"s_mov_b32 {F0}, {s(sW)}", f"s_andn2_b32 {F1}, 1, {s(sW)}")
        pk(PKX, f"s_xor_b32 {F0}, {s(sW)}, 1", f"s_and_b32 {F1}, {s(sW)}, 1")
        def coladdr(dst, col):
            return f"""v_lshrrev_b32 v9, 4, {col}
v_and_b32 v10, 15, {col}
v_lshlrev_b32 v10, 4, v10
v_lshl_add_u32 v10, v3, 8, v10
v_lshl_add_u32 v10, v9, 10, v10
v_add_u32 {dst}, {XCH + 5*1024}, v10"""
        f(f"""v_lshrrev_b32 v13, 2, v4
v_mul_u32_u24 v13, 5, v13
v_and_b32 v14, 3, v4
s_mul_i32 {F0}, {s(sW)}, 20
v_add3_u32 v7, v13, v14, {F0}
""" + coladdr(v(V0), "v7"))
        for dst, hh in ((V1O, f"s_mov_b32 {F0}, {s(sW)}"), (V1X, f"s_xor_b32 {F0}, {s(sW)}, 1")):
            f(f"""{hh}
s_and_b32 {F1}, {F0}, 1
s_lshl_b32 {F1}, {F1}, 1
s_mul_i32 {F0}, {F0}, 20
v_add3_u32 v7, v13, 4, {F0}
""" + coladdr("v8", "v7") + f"""
v_subrev_u32 v7, {F1}, v14
v_mov_b32 v9, {XCH + 10240}
v_mov_b32 v10, {XCH + 10256}
v_cmp_eq_u32 vcc, 1, v7
+v_cndmask_b32 v9, v9, v10, vcc
v_cmp_eq_u32 vcc, 0, v7
+v_cndmask_b32 {v(dst)}, v9, v8, vcc""")
        f(f"""s_lshl_b32 {F0}, {s(sCB)}, 2
s_add_u32 {F0}, {F0}, {s(sW)}
s_lshl_b32 {F1}, {F0}, 5
s_add_u32 {F1}, {F1}, {s(sRB)}
s_lshl_b32 {F1}, {F1}, 6
s_add_u32 {F1}, {F1}, {WS_KV}
v_lshl_add_u32 v7, v4, 2, {F1}
v_lshl_add_u32 v7, v3, 10, v7
v_mov_b32 v12, {OOB}
v_cmp_gt_u32 vcc, 32, v1
+v_cndmask_b32 {v(vKF)}, v12, v7, vcc
s_mul_i32 {F0}, {F0}, 98304
s_add_u32 {F0}, {F0}, {WS_P}
v_lshrrev_b32 v7, 5, v1
v_mul_u32_u24 v7, 49152, v7
v_bfe_u32 v8, v1, 2, 3
v_lshl_add_u32 v7, v8, 10, v7
v_and_b32 v9, 3, v1
v_lshl_add_u32 v7, v9, 4, v7
s_lshl_b32 {F1}, {s(sRB)}, 6
v_add3_u32 v7, v7, {F1}, 0
v_add_u32 v7, {F0}, v7
v_cmp_gt_u32 vcc, 6, v8
+v_cndmask_b32 {v(vRL)}, v12, v7, vcc
+v_cndmask_b32_e64 {v(vRX)}, 0, -1, vcc
s_mul_i32 {F1}, {s(sRB)}, 6144
s_add_u32 {F0}, {F0}, {F1}
v_add_u32 v7, {F0}, {v(vL16)}
v_add_u32 {v(P2)}, 4096, v7
s_and_b32 {F1}, {s(sW)}, 1
s_lshl_b32 {F1}, {F1}, 11
v_add_u32 {v(PS)}, {F1}, v7
s_xor_b32 {F1}, {F1}, 2048
v_add_u32 {v(PO)}, {F1}, v7
v_bfe_u32 v7, v1, 4, 1
v_lshl_add_u32 v8, v7, 1, v9
v_add_u32 v7, 4, v7
v_cmp_gt_u32 vcc, 2, v9
+v_cndmask_b32 v7, v7, v8, vcc
v_bfe_u32 v8, v1, 2, 2
v_lshl_add_u32 v7, v7, 2, v8
v_lshlrev_b32 {v(vBP)}, 2, v7
v_cmp_eq_u32 vcc, 3, v9
+v_cndmask_b32_e64 {v(vK3)}, 0, -1, vcc
s_lshl_b32 {F0}, {s(sCB)}, 13
s_add_u32 {F0}, {F0}, {WS_KV}
v_lshl_add_u32 {v(vKL)}, v1, 4, {F0}""")
        f(f"""s_lshl_b32 {F0}, {s(sRB)}, 2
s_add_u32 {F0}, {F0}, {s(sW)}
s_mul_i32 {F1}, {F0}, 40960
s_add_u32 {F1}, {F1}, {WS_PQ}
v_add_u32 {v(vOL)}, {F1}, {v(vL16)}
s_lshl_b32 {F0}, {F0}, 10
s_add_u32 {F0}, {F0}, {WS_AF}
v_lshrrev_b32 v7, 3, v1
v_lshl_add_u32 {v(vOP)}, v7, 7, {F0}
s_lshl_b32 {F1}, {s(sCB)}, 7
s_add_u32 {F0}, {F0}, {F1}
v_mov_b32 v7, {F0}
v_cmp_eq_u32 vcc, 0, v1
+v_cndmask_b32 {v(vOF)}, v12, v7, vcc
s_lshr_b32 {F0}, {s(sCB)}, 1
s_mul_i32 {F0}, {F0}, 10240
v_add_u32 v7, {F0}, {v(vOL)}
s_and_b32 {F0}, {s(sCB)}, 1
s_lshl_b32 {F1}, {F0}, 12
v_add_u32 {v(vOS)}, {F1}, v7
s_lshl_b32 {F0}, {F0}, 10
s_add_u32 {F0}, {F0}, 8192
v_lshlrev_b32 v8, 3, v1
v_sub_u32 v7, v7, v8
v_add_u32 {v(vOS2)}, {F0}, v7
v_sub_u32 v81, {v(vOL)}, v8
v_mul_u32_u24 v8, 112, v1
v_add_u32 v9, {v(vOS)}, v8
v_mul_u32_u24 v8, 120, v1
v_add3_u32 v8, v8, {v(vOS2)}, 0
v_add_u32 v8, {(-32*128) & 0xffffffff:#x}, v8
v_cmp_gt_u32 vcc, 32, v1
+v_cndmask_b32 v8, v8, v9, vcc
v_cmp_gt_u32 vcc, 40, v1
+v_cndmask_b32 v55, v12, v8, vcc""")

        f(f"""s_lshr_b32 {F0}, s2, 3
s_lshl_b32 {F0}, {F0}, 2
s_add_u32 {F0}, {F0}, {s(sW)}
s_mul_i32 {F0}, {F0}, 50
v_add_u32 v7, {F0}, v1
v_lshlrev_b32 v37, 7, v7
v_add_u32 v37, 0x1000, v37
v_mul_u32_u24 v8, 6554, v7
v_lshrrev_b32 v8, 16, v8
v_mul_u32_u24 v8, 2560, v8
v_add_u32 v36, v37, v8""")
        pf = [mk(f"buffer_load_dword v38, v36, {s(SW,4)}, 0 offen"), mk(f"buffer_load_dword v97, v37, {s(SC,4)}, 0 offen")]
        qch = [self.dma_w(CH[c], WQ, SW, sAW + c, f"q{c}") for c in range(5)]
        n0 = self.opt.get("afill0", len(F))
        pt = [mk(f"buffer_load_dword v55, v55, {s(SWS,4)}, 0 offen nt")] if self.opt.get("pretouch", 0) else []
        apf = self.opt.get("apf", 0)
        if apf:
            self.mainloop(S, "A", [], F[:n0], F[n0:], pt, qch[0], EPSQ, pf)
        else:
            self.mainloop(S, "A", [], F[:n0], F[n0:], pf + pt, [], EPSQ)
            qch[1] = qch[0] + qch[1]
        self.stamp(S, 4)
        self.tr(S, 1)
        S("v_mov_b32 v12, v54\nv_mov_b32 v13, v54\nv_mov_b32 v14, v54\nv_mov_b32 v15, v54\nds_write_b128 v35, v[12:15] offset:10240")
        S_main = S
        S = Stream()
        FRG = 108
        self.phi_pairs(S, [(ACC + (n*2 + (k >> 1))*4 + 2*(k & 1), FRG + 4*n + k) for n in range(5) for k in range(4)], EPSQ, CPH)
        for n in range(5):
            S(f"ds_write_b128 {v(vXW)}, {v(FRG+4*n,4)} offset:{1024*n}")
        for n in range(5, 10):
            for k in range(4):
                c = ACC + (n*2 + (k >> 1))*4 + 2*(k & 1)
                S(f"v_cvt_pk_bf16_f32 {v(FRG+4*n+k)}, {v(c)}, {v(c+1)}")
            S(f"ds_write_b128 {v(vXW)}, {v(FRG+4*n,4)} offset:{1024*n}")
        S_main.add(interleave(S.items, (qch[1] + qch[2], 4 if apf else 100, len(S.items) - 1)))
        S = S_main
        self.tr(S, 1)
        S("@waittag q0\n@waitlgkm0\ns_barrier")
        self.tr(S, 1)
        DS, DO, D2 = 144, 152, 160
        for r in (148, 156, 164, 170, 174, 142):
            S(f"v_mov_b32 {v(r)}, {s(sNON)}")
        G = lambda ks, x: a(AW + 24 * (ks & 1) + 4 * x, 4)
        def grd(ks):
            return [I(f"ds_read_b128 {G(ks,x)}, {v(r)} offset:{ks*XS}") for x, r in enumerate((PKS, V0, PKO, V1O, PKX, V1X))]
        S.add(grd(0))
        S.add(grd(1))
        for ks in range(4):
            z = lambda d: "0" if ks == 0 else v(d, 4)
            S(f"""{MF} {v(DS,4)}, {G(ks,0)}, {G(ks,1)}, {z(DS)}
{MF} {v(DO,4)}, {G(ks,2)}, {G(ks,1)}, {z(DO)}
{MF} {v(D2,4)}, {G(ks,0)}, {G(ks,3)}, {z(D2)}
{MF} {v(D2,4)}, {G(ks,4)}, {G(ks,5)}, {v(D2,4)}""")
            if ks < 2:
                S.add(grd(ks + 2))
            S.add((qch[3] + qch[4])[(10 * ks) // 4:(10 * ks + 10) // 4])
        QA = ACC
        def qreads(u):
            c, hf, kk = u >> 2, (u >> 1) & 1, u & 1
            L = []
            for n in range(5):
                L += self.tr_frag(208 + 20 * (u & 1) + 4 * n, CH[c] + kk * 10240, 5 * hf + n)
            return L
        self.tr(S, 1)
        S.add(qreads(0))
        for d, ad, t in ((DS, PS, 168), (DO, PO, 172), (D2, P2, 140)):
            S(f"""v_mov_b32 {v(t)}, {v(d)}
v_mov_b32 {v(t+1)}, {v(d+1)}
buffer_store_dwordx4 {v(d+2,4)}, {v(ad)}, {s(SWS,4)}, 0 offen offset:1024 sc1
buffer_store_dwordx4 {v(t,4)}, {v(ad)}, {s(SWS,4)}, 0 offen sc1""")
        S(f"v_and_b32 {v(vRX)}, {s(sNON)}, {v(vRX)}")
        self.stamp(S, 5)
        RB = 108
        KK = 108
        T1 = 140
        woch = [self.dma_w(CH[c], WO, SC, sWO + c, f"wo{c}") for c in range(5)]
        wofix = [mk(f"v_add_u32 {v(WO+i)}, {v(WO+i)}, {v(UQ + [3, 3, 4, 5, 5][i])}") for i in range(5)]
        def rloads():
            return [mk(f"s_mov_b32 {s(sT1)}, {6144*x}\nbuffer_load_dwordx3 {v(RB+4*x,3)}, {v(vRL)}, {s(SWS,4)}, {s(sT1)} offen sc1") for x in range(8)]
        def rcheck():
            t = f"v_xor_b32 v14, {v(RB+2)}, {v(vRX)}\n"
            for x in range(1, 8):
                t += f"v_bitop3_b32 v14, v14, {v(RB+4*x+2)}, {v(vRX)} bitop3:0xf6\n"
            return t + "v_cmp_ne_u32 vcc, 0, v14"
        def kloads():
            return [mk(f"buffer_load_dwordx4 {v(KK+4*x,4)}, {[v(vKL), 'v15'][x >> 2]}, {s(SWS,4)}, 0 offen offset:{1024*(x & 3)} sc1") for x in range(8)]
        def kcheck():
            t = f"v_xor_b32 v14, {s(sNON)}, {v(KK+3)}\n"
            for x in range(1, 8):
                t += f"v_bitop3_b32 v14, v14, {v(KK+4*x+3)}, {s(sNON)} bitop3:0xf6\n"
            return t + "v_cmp_ne_u32 vcc, 0, v14"
        def retry(loads, check):
            lp, done = self.lab("rp"), self.lab("rd")
            S(check)
            S(f"s_cbranch_vccz {done}\ns_mov_b32 {s(sCNT)}, 0x40000\n{lp}:", tag="opaque")
            for x in loads:
                for y in x:
                    y.tag = "opaque"
            S.add(loads)
            S("s_waitcnt vmcnt(0)\n" + check + f"""
s_cbranch_vccz {done}
s_sub_u32 {s(sCNT)}, {s(sCNT)}, 1
s_cbranch_scc0 {lp}
{done}:""", tag="opaque")
        UR = self.opt.get("ur", 9)
        UC = self.opt.get("uc", 14)
        for u in range(20):
            c, hf, kk = u >> 2, (u >> 1) & 1, u & 1
            st = c + 5 * hf
            ex = []
            if u in (0, 3, 7, 11, 14, 15, 19):
                self.tr(S, 1)
            if (u & 3) == 3:
                S(f"@waittag q{c+1}\n@waitlgkm0\ns_barrier")
                ex = (wofix if c == 4 else []) + woch[c][:3]
            elif (u & 3) == 0 and u:
                ex = woch[c - 1][3:]
            if u == 1:
                ex = [self.xi_load(12)]
            if u == UR:
                ex = rloads() + ex
            if u == UC:
                retry(rloads(), rcheck())
                for x in range(1, 8):
                    ex.append(mk(f"v_pk_add_f32 {v(RB,2)}, {v(RB,2)}, {v(RB+4*x,2)}"))
                ex += groups(f"""v_permlane32_swap_b32 {v(RB)}, {v(RB+1)}
v_add_f32 {v(RB)}, {v(RB)}, {v(RB+1)}
ds_bpermute_b32 {v(RB+4)}, {v(vBP)}, {v(RB)}
ds_bpermute_b32 {v(RB+5)}, {v(vBP)}, {v(RB)} offset:128""")
            if u == UC + 1:
                ex = groups(f"""v_cvt_pk_bf16_f32 {v(RB+4)}, {v(RB+4)}, {v(RB+5)}
v_bfi_b32 {v(RB+4)}, {v(vK3)}, {v(148)}, {v(RB+4)}
buffer_store_dword {v(RB+4)}, {v(vKF)}, {s(SWS,4)}, 0 offen sc1""") + ex
            if u == UC + 2:
                ex = ex + [self.xi_eval(12)]
            mf = []
            for n in range(5):
                for i in range(2):
                    d = QA + (n * 2 + i) * 4
                    cin = v(EPSQ, 4) if u == 0 else v(d, 4)
                    mf.append(I(f"{MF} {v(d,4)}, {a(208 + 20*(u & 1) + 4*n, 4)}, {a(AX + ((2*st+kk)*2+i)*4, 4)}, {cin}"))
            S.add(interleave(mf, (qreads(u + 1) if u < 19 else [], 0, 7), (ex, 1, 9)))
        S.add(woch[4][3:])
        self.stamp(S, 6)
        PQR = 150
        S_main = S
        S = Stream()
        self.phi_pairs(S, [(QA + (n*2 + i)*4 + 2*k, PQR + 10*i + 2*n + k) for i in range(2) for n in range(5) for k in range(2)], EPSQ, CPH)
        S_main(f"v_add_u32 v15, 4096, {v(vKL)}")
        p0 = self.opt.get("kpos", 60)
        S_main.add(interleave(S.items, (kloads(), p0, p0 + 30)))
        S = S_main
        retry(kloads(), kcheck())
        self.stamp(S, 7)
        for m in range(2):
            for x in range(4):
                S(f"v_mov_b32 {v(T1+4*m+x)}, {v(KK + 16*m + 8*(x >> 1) + 4*(x & 1) + 2)}")
        for h in range(4):
            S(f"v_mov_b32 {v(KK+8*h+2)}, {v(KK+8*h+4)}\nv_mov_b32 {v(KK+8*h+3)}, {v(KK+8*h+5)}")
        DT, OF = ACC, 82
        for i in range(2):
            for m in range(2):
                d = DT + 32 * i + 16 * m
                w0 = PQR + 10 * i + 4 * m
                S(f"""{MF} {v(d,4)}, {v(KK+16*m,4)}, {v(w0,4)}, 0
{MF} {v(d+4,4)}, {v(T1+4*m,4)}, {v(w0,4)}, {v(EPSD,4)}
{MF} {v(d+8,4)}, {v(KK+16*m+8,4)}, {v(w0+2,4)}, 0
{MF} {v(d+12,4)}, {v(T1+4*m,4)}, {v(w0+2,4)}, {v(EPSD,4)}""")
        for i in range(2):
            for m in range(2):
                d = DT + 32 * i + 16 * m
                S(f"v_rcp_f32 {v(d+5)}, {v(d+5)}\nv_rcp_f32 {v(d+15)}, {v(d+15)}")
            for m in range(2):
                d = DT + 32 * i + 16 * m
                S(f"""v_pk_mul_f32 {v(d,2)}, {v(d,2)}, {v(d+4,2)} op_sel:[0,1] op_sel_hi:[1,1]
v_pk_mul_f32 {v(d+8,2)}, {v(d+8,2)}, {v(d+14,2)} op_sel:[0,1] op_sel_hi:[1,1]
v_pk_mul_f32 {v(d+2,2)}, {v(d+2,2)}, {v(d+4,2)} op_sel:[0,1] op_sel_hi:[1,1]
v_pk_mul_f32 {v(d+10,2)}, {v(d+10,2)}, {v(d+14,2)} op_sel:[0,1] op_sel_hi:[1,1]
v_mul_f32 {v(d+4)}, {v(d+4)}, {v(d+5)}
v_mul_f32 {v(d+14)}, {v(d+14)}, {v(d+15)}""")
            for e in range(5):
                for m in range(2):
                    d = DT + 32 * i + 16 * m
                    ra, rb = (d + e, d + 8 + e) if e < 4 else (d + 4, d + 14)
                    S(f"v_cvt_pk_bf16_f32 {v(OF + 10*i + 2*e + m)}, {v(ra)}, {v(rb)}")
        t = ""
        for i in range(2):
            for fq in range(2):
                t += f"buffer_store_dwordx4 {v(OF+10*i+4*fq,4)}, {v(vOS)}, {s(SWS,4)}, 0 offen offset:{1024*(2*fq+i)}@M\n"
            t += f"buffer_store_dwordx2 {v(OF+10*i+8,2)}, {v(vOS2)}, {s(SWS,4)}, 0 offen offset:{512*i}@M\n"
        self.two_way(S, t, "ost")
        S(f"v_mov_b32 v4, {s(sNON)}")
        S("@waittag ost wo4")
        self.flag_store(S, vOF)
        S("s_barrier")
        self.stamp(S, 8)
        AC2, WF = 216, 160
        def woreads(f):
            H, e = f // 5, f % 5
            c, rbk, hf = (H, e & 1, e >> 1) if e < 4 else (4, H & 1, H >> 1)
            L = []
            for n in range(5):
                L += self.tr_frag(WF + 20 * (f & 1) + 4 * n, CH[c] + rbk * 10240, 5 * hf + n)
            return L
        S.add(woreads(0))
        self.out_addrs(S, "A", 112 * K, 48)
        self.poll_flags(S, vOP, 1, 4)
        self.stamp(S, 9)
        def oload(x):
            pre = f"s_mov_b32 {s(sT1)}, {4096*(x >> 2)}\n" if (x & 3) == 0 else ""
            if x % 10 >= 8:
                o = 1024 * ((x & 3) & 2) + 512 * (x & 1)
                return mk(pre + f"""buffer_load_dwordx2 {a(4*x,2)}, v81, {s(SWS,4)}, {s(sT1)} offen offset:{o}{self.lmod}
buffer_load_dwordx2 {a(4*x+2,2)}, v81, {s(SWS,4)}, {s(sT1)} offen offset:{o+1024}{self.lmod}""")
            return mk(pre + f"buffer_load_dwordx4 {a(4*x,4)}, {v(vOL)}, {s(SWS,4)}, {s(sT1)} offen offset:{1024*(x & 3)}{self.lmod}")
        DEPTH = self.opt.get("odepth", 5)
        for x in range(2 * DEPTH):
            S.add(oload(x))
        for f_ in range(20):
            mf = []
            for n in range(5):
                for i in range(2):
                    c = AC2 + (n * 2 + i) * 4
                    mf.append(I(f"{MF} {v(c,4)}, {a(WF + 20*(f_ & 1) + 4*n, 4)}, {a((f_*2+i)*4, 4)}, {'0' if f_ == 0 else v(c,4)}"))
            ld = [oload(2 * (f_ + DEPTH) + i) for i in range(2)] if f_ + DEPTH < 20 else []
            S.add(interleave(mf, (woreads(f_ + 1) if f_ < 19 else [], 0, 7), (ld, 3, 9)))
        self.stamp(S, 10)
        self.store_out(S, AC2, 48, 176)
        self.stamp(S, 11)
        self.dump_stamps(S)
        S("s_endpgm")
        return S


    def build(self):
        P = Stream()
        self.prologue(P)
        A = self.side_A()
        B = self.side_B()
        out = []
        tot = 0
        np_ = len(P.items)
        SA = Stream(); SA.items = P.items + A.items
        ia, na = finalize(SA)
        SB = Stream(); SB.items = P.items + B.items
        ib, nb = finalize(SB)
        k = next(i for i, x in enumerate(ib) if x.text == "L_sideB:")
        ka = next(i for i, x in enumerate(ia) if x.text.startswith("s_cbranch_scc1 L_sideB"))
        assert [x.text for x in ia[:ka + 1]] == [x.text for x in ib[:k]], "prologue mismatch"
        body = ia + ib[k:]
        hdr = open("concat_heads__linear_attn_block__ssm_conv_s5__prompt.s.ref").read().split("\n")
        hdr = [l for l in hdr if l.startswith(";") and "@launch" not in l]
        txt = "\n".join(hdr) + "\n; @launch grid=(256,1,1) block=(256,1,1) lds=163840\n"
        txt += f""".amdgcn_target "amdgcn-amd-amdhsa--gfx950"
.text
.globl {KN}
.p2align 8
.type {KN},@function
{KN}:
"""
        for x in body:
            txt += (x.text if x.kind == "label" else "    " + x.text) + "\n"
        txt += f"""L_end:
    s_endpgm
.section .rodata,"a"
.p2align 6
.amdhsa_kernel {KN}
  .amdhsa_next_free_vgpr 512
  .amdhsa_next_free_sgpr 102
  .amdhsa_accum_offset 256
  .amdhsa_group_segment_fixed_size 0
  .amdhsa_kernarg_size 120
  .amdhsa_user_sgpr_count 2
  .amdhsa_user_sgpr_kernarg_segment_ptr 1
  .amdhsa_system_sgpr_workgroup_id_x 1
.end_amdhsa_kernel
"""
        print(f"instructions: A {len(ia)} (nops {na}), B {len(ib)} (nops {nb})", file=sys.stderr)
        return txt


if __name__ == "__main__":
    import argparse
    ap = argparse.ArgumentParser()
    ap.add_argument("out")
    ap.add_argument("--ts", action="store_true")
    ap.add_argument("-o", action="append", default=[])
    ar = ap.parse_args()
    opt = {}
    for o in ar.o:
        k_, _, v_ = o.partition("=")
        opt[k_] = int(v_) if v_ else 1
    open(ar.out, "w").write(Gen(ar.ts, opt).build())
```

```python
import sys, struct
from fw import *

KN = "concat_heads__linear_attn_block__ssm_conv_s5__prompt_kernel"
K = 1024

WS_E = 0x010000
WS_HF = 0x040000
WS_PF = 0x060000
WS_AF = 0x080000
WS_KV = 0x0A0000
WS_XI = 0x0C0000
WS_P = 0x100000
WS_PQ = 0x400000
WS_H = 0x800000
WS_TS = 0x1000000
OOB = 0x80000000

SLOT = 36 * K
NSLOT = 4
CH = [80 * K, 0, 20 * K, 40 * K, 60 * K, 100 * K, 120 * K, 140 * K, 80 * K, 0]
SCAN = 108 * K
TBUF = 120 * K
XCH = 112 * K
XS = 10496
KVL = 112 * K

SX, SW, SC, SWS, SO, SD = 36, 40, 44, 48, 52, 56
SP0, SP1, SP2, SP3 = 60, 64, 68, 72
sW, sRB, sCB, sNON, sT0, sT1, sCNT = 76, 77, 78, 79, 80, 81, 82
sA128 = 83
sAW = 88
sHX0, sHX1, sHW0, sHW1 = 93, 94, 95, 96
sMX, sMW = 97, 98
sETA, sXCD = 99, 100
sT2 = 101
sSAME = 34
sF0, sF1 = 3, 35
SE = SP0

XA, WA, WQ, WO = 16, 20, 25, 30
RX, RW = 98, 39
vL16, vNA, vNV = 45, 46, 47
vXI = 104
ACC = 176
AX, AW = 0, 160

LOG2E = 1.4426950408889634
def f2u(x):
    return "0x%08x" % struct.unpack("<I", struct.pack("<f", x))[0]

def v(b, n=1): return f"v{b}" if n == 1 else f"v[{b}:{b+n-1}]"
def a(b, n=1): return f"a{b}" if n == 1 else f"a[{b}:{b+n-1}]"
def s(b, n=1): return f"s{b}" if n == 1 else f"s[{b}:{b+n-1}]"
MF = "v_mfma_f32_16x16x32_bf16"


class Gen:
    def __init__(self, ts=False, opt=None):
        self.ts = ts
        self.opt = opt or {}
        self.nlab = 0
        self.trn = {}
        self.cur = None
        self.lmod = {0: '', 1: ' nt', 2: ' sc1'}[self.opt.get('lmod', 0)]
        xnt = self.opt.get("xnt", 0)
        self.xmod0 = " nt" if xnt == 1 else ""
        self.xmods = {"A": " nt" if xnt else "", "B": self.xmod0}
        self.wmod = " nt" if self.opt.get("wnt", 0) else ""

    def lab(self, b):
        self.nlab += 1
        return f"L_{b}_{self.nlab}"

    def stamp(self, S, k):
        if "pi" in self.opt:
            if k == self.opt["pi"]: S("s_memrealtime s[4:5]")
            if k == self.opt["pj"]: S("s_memrealtime s[6:7]")
        if self.ts and (not self.opt.get("trace") or k == 11):
            assert k < 12
            S(f"s_memtime s[{4+2*k}:{5+2*k}]")

    def tr(self, S, region):
        if self.ts and self.opt.get("trace") == region:
            k = self.trn.get(id(self.cur), 0)
            if k < 11:
                S(f"s_memtime s[{4+2*k}:{5+2*k}]")
            self.trn[id(self.cur)] = k + 1

    def dump_stamps(self, S):
        if "endprobe" in self.opt:
            m = " nt" if self.opt.get("epnt") else ""
            S(f"s_mul_i32 s3, s2, {4*256*128}\ns_add_u32 s3, s3, {self.opt['endprobe'] << 20}\nv_lshl_add_u32 v2, v0, 7, s3")
            for i in range(4):
                S(f"s_mov_b32 s3, {i*256*128}\nbuffer_load_dword v{4+i}, v2, {s(SWS,4)}, s3 offen{m}")
            S("s_waitcnt vmcnt(0)")
        if "pi" in self.opt:
            l1, l2 = self.lab("pr"), self.lab("pr")
            t0 = "s32" if self.opt["pi"] < 0 else "s4"
            S(f"""s_memrealtime s[8:9]
s_waitcnt lgkmcnt(0)
s_cmp_lg_u32 s2, {self.opt["pwg"]}
s_cbranch_scc1 {l2}
{"s_sub_u32 s10, 0, s32" if "startprobe" in self.opt else f"s_sub_u32 s10, s6, {t0}"}
s_mul_i32 s10, s10, {self.opt["pscale"]}
s_min_u32 s10, s10, 20000
{l1}:
s_memrealtime s[12:13]
s_waitcnt lgkmcnt(0)
s_sub_u32 s11, s12, s8
s_cmp_lt_u32 s11, s10
s_cbranch_scc1 {l1}
{l2}:""")
        if self.opt.get("protrace"):
            self.ts = True
            self.stamp(S, 11)
        if not self.ts:
            return
        S("s_memrealtime s[30:31]")
        S("s_waitcnt lgkmcnt(0)")
        S("v_mov_b32 v1, 0")
        for k in range(13):
            S(f"v_writelane_b32 v1, s{4+2*k}, {k}")
        S("v_writelane_b32 v1, s33, 13")
        S("v_writelane_b32 v1, s32, 14")
        S("v_writelane_b32 v1, s30, 15")
        S(f"s_lshl_b32 s3, s2, 10\ns_add_u32 s3, s3, {WS_TS}")
        S(f"v_lshl_add_u32 v2, v0, 2, s3")
        S(f"buffer_store_dword v1, v2, {s(SWS,4)}, 0 offen")

    def prologue(self, S):
        S("s_cmp_ge_u32 s2, 256\ns_cbranch_scc1 L_end")
        S("s_load_dwordx16 s[4:19], s[0:1], 0")
        S("s_load_dwordx8 s[20:27], s[0:1], 64")
        S("s_load_dwordx4 s[28:31], s[0:1], 96")
        S("s_load_dwordx2 s[32:33], s[0:1], 112")
        if self.ts or "pi" in self.opt:
            S("s_memrealtime s[34:35]")
        if self.ts:
            S(f"s_memtime s[{SP3}:{SP3+1}]")
        S(f"""v_lshrrev_b32 v2, 6, v0
v_and_b32 v1, 63, v0
v_readfirstlane_b32 {s(sW)}, v2
s_and_b32 {s(sXCD)}, s2, 7
s_lshr_b32 s3, s2, 3
s_lshr_b32 {s(sCB)}, s3, 2
s_and_b32 s3, s3, 3""")
        if self.opt.get("cpf", 1):
            S(f"""s_cmp_lg_u32 s3, {s(sW)}
s_cbranch_scc1 L_nopf
s_getpc_b64 s[{SP0}:{SP0+1}]
L_pc:
s_cmp_ge_u32 {s(sXCD)}, 4
s_cselect_b32 {s(sT0)}, L_sideB-L_pc, 0
s_sub_u32 {s(SP0+2)}, L_end-L_pc, {s(sT0)}
s_add_u32 {s(SP0)}, {s(SP0)}, {s(sT0)}
s_addc_u32 {s(SP0+1)}, {s(SP0+1)}, 0
s_mov_b32 {s(SP0+3)}, 0x20000
v_lshlrev_b32 v3, 7, v0
buffer_load_dword v255, v3, {s(SP0,4)}, 0 offen
L_nopf:""", tag="opaque")
        S(f"""s_and_b32 {s(sT0)}, {s(sXCD)}, 3
s_lshl_b32 {s(sRB)}, {s(sT0)}, 2
s_add_u32 {s(sRB)}, {s(sRB)}, s3
s_mul_i32 s3, s3, 20
s_mul_i32 {s(sT0)}, {s(sT0)}, 5
s_add_u32 s3, s3, {s(sT0)}
s_mul_i32 {s(sT0)}, {s(sCB)}, 10
s_add_u32 s3, s3, {s(sT0)}
s_lshr_b32 s3, s3, 3""")
        if self.opt.get("norot"):
            S("s_mov_b32 s3, 0")
        S(f"""s_sub_u32 {s(sT0)}, s3, 10
s_cselect_b32 s3, s3, {s(sT0)}
s_lshl_b32 {s(sT0)}, s3, 7
s_lshl_b32 {s(sMX)}, {s(sW)}, 12
s_lshl_b32 {s(sT1)}, {s(sRB)}, 2
s_add_u32 {s(sT1)}, {s(sT1)}, {s(sW)}
s_mul_i32 {s(sT2)}, {s(sT1)}, {32*1280}""")
        S(f"""v_lshrrev_b32 v2, 3, v1
v_lshrrev_b32 v3, 4, v1
v_and_b32 v5, 7, v1
v_xor_b32 v5, v5, v3
v_lshlrev_b32 v5, 4, v5
s_movk_i32 {s(sA128+1)}, {8*1280-1024}
s_movk_i32 {s(sA128+2)}, {16*1280-2048}
s_movk_i32 {s(sA128+3)}, {24*1280-3072}
s_cmp_ge_u32 {s(sXCD)}, 4
s_cselect_b32 {s(sHX0)}, 1, 0
s_cselect_b32 {s(sA128+1)}, {16*1280-1024}, {s(sA128+1)}
s_cselect_b32 {s(sA128+2)}, {4*1280-2048}, {s(sA128+2)}
s_cselect_b32 {s(sA128+3)}, {20*1280-3072}, {s(sA128+3)}
v_and_b32 v7, 4, v2
v_mad_u32_u24 v7, v7, {s(sHX0)}, v2
v_mul_u32_u24 v7, 1280, v7
v_add3_u32 {v(XA)}, v7, v5, {s(sT2)}
v_xor_b32 v8, 64, {v(XA)}
v_add_u32 {v(XA+1)}, {s(sA128+1)}, v8
v_add_u32 {v(XA+2)}, {s(sA128+2)}, {v(XA)}
v_add_u32 {v(XA+3)}, {s(sA128+3)}, v8
s_mov_b32 m0, {s(sMX)}
s_mov_b32 {s(SX+2)}, {2048*1280}
s_mov_b32 {s(SX+3)}, 0x20000
s_cselect_b32 {s(SX)}, s10, s4
s_cselect_b32 {s(SX+1)}, s11, s5""")
        if "startprobe" in self.opt:
            m = " nt" if self.opt["startprobe"] == 2 else ""
            S(f"""s_and_b32 s70, s2, 3
s_lshr_b32 s71, s2, 3
s_lshl_b32 s71, s71, 2
s_or_b32 s70, s70, s71
s_mul_i32 s70, s70, 20480
v_lshl_add_u32 v9, v0, 7, s70
v_mov_b32 v10, 0x80000000
v_cmp_gt_u32 vcc, 160, v0
v_cndmask_b32 v9, v10, v9, vcc
s_memrealtime s[68:69]
buffer_load_dword v9, v9, {s(SX,4)}, 0 offen{m}
s_waitcnt vmcnt(0)
s_barrier
s_memrealtime s[70:71]
s_waitcnt lgkmcnt(0)
s_sub_u32 s34, s68, s70
s_cmp_ge_u32 {s(sXCD)}, 4""")
        for i in range(4):
            S(f"buffer_load_dwordx4 {v(XA+i)}, {s(SX,4)}, {s(sT0)} offen offset:{1024*i}{self.xmod0} lds", tag="st0")
        S(f"s_mul_i32 {s(sMW)}, {s(sW)}, 5120")
        S(f"s_cbranch_scc1 L_sideB")

    def late_setup(self, S):
        S(f"""s_sub_u32 {s(sT1)}, s3, 5
s_cselect_b32 s3, s3, {s(sT1)}
s_cselect_b32 {s(sETA)}, 0, 1""")
        for c in range(5):
            S(f"""s_add_u32 {s(sT2)}, s3, {c}
s_sub_u32 {s(sT1)}, {s(sT2)}, 5
s_cselect_b32 {s(sT2)}, {s(sT2)}, {s(sT1)}
s_lshl_b32 {s(sA128+c)}, {s(sT2)}, 7""")
        S(f"""s_mul_i32 {s(sHX0)}, {s(sETA)}, 640
s_sub_u32 {s(sHX1)}, 640, {s(sHX0)}
v_and_b32 v4, 15, v1
v_lshlrev_b32 {v(vL16)}, 4, v1
v_lshrrev_b32 v6, 1, v4
v_xor_b32 v6, v6, v3
v_lshlrev_b32 v6, 4, v6
v_lshl_add_u32 v6, v4, 7, v6
v_add_u32 {v(RX)}, {s(sMX)}, v6
v_xor_b32 {v(RX+3)}, 64, {v(RX)}
v_add_u32 {v(RX+1)}, 0x10000, {v(RX)}
v_add_u32 {v(RX+4)}, 0x10000, {v(RX+3)}
s_lshl_b32 s3, s2, 8
v_or_b32 v7, s3, v0
v_mov_b32 v8, {OOB}
v_cmp_eq_u32 vcc, 0, v7
v_cndmask_b32_e64 {v(vNA)}, v8, 0, vcc""")

    def srd(self, S, d, p, n):
        S(f"s_mov_b32 {s(d)}, {s(p)}\ns_mov_b32 {s(d+1)}, {s(p+1)}\ns_mov_b32 {s(d+2)}, {n}\ns_mov_b32 {s(d+3)}, 0x20000")

    def srd_biased(self, S, d, p, n):
        S(f"s_sub_u32 {s(d)}, {s(p)}, 4096\ns_subb_u32 {s(d+1)}, {s(p+1)}, 0\ns_mov_b32 {s(d+2)}, {n + 4096}\ns_mov_b32 {s(d+3)}, 0x20000")

    def common_srds(self, S):
        self.srd(S, SWS, 32, "0x10000000")
        self.srd(S, SO, 28, 2048 * 5120)
        self.srd(S, SD, 30, 256)
        if self.ts or "pi" in self.opt:
            S("s_mov_b32 s32, s34")
        if self.ts:
            S(f"s_mov_b32 s33, s{SP3}")
            S("s_memtime s[28:29]")

    def dma_stage(self, st, side):
        slot = (st % NSLOT) * SLOT
        tag = f"st{st}"
        hx = sHX0 if st < 5 else sHX1
        L = []
        for i in range(4):
            pre = f"s_add_u32 m0, {s(sMX)}, {slot}\ns_add_u32 {s(sT0)}, {s(sA128 + st % 5)}, {s(hx)}\n" if i == 0 else ""
            L.append(mk(pre + f"buffer_load_dwordx4 {v(XA+i)}, {s(SX,4)}, {s(sT0)} offen offset:{1024*i}{self.xmods[side]} lds", tag))
        so = sT0
        pre2 = ""
        if side == "A":
            so = sT1
            hw = sHW0 if st < 5 else sHW1
            pre2 = f"s_add_u32 {s(sT1)}, {s(sAW + st % 5)}, {s(hw)}\n"
        L += self.dma_w(slot + 16 * K, WA, SW, so, tag, pre2, self.wmod)
        return L

    def dma_w(self, ldsbase, areg, srd, so, tag, pre2="", extra=""):
        L = []
        for i in range(5):
            pre = ""
            if i == 0:
                pre = f"s_add_u32 m0, {s(sMW)}, {ldsbase}\n" + pre2
            if i == 4:
                pre = f"s_add_u32 m0, {s(sMW)}, {ldsbase + 4096}\n"
            L.append(mk(pre + f"buffer_load_dwordx4 {v(areg+i)}, {s(srd,4)}, {s(so)} offen offset:{1024*(i&3)}{extra} lds", tag))
        return L

    def reads(self, h, side):
        st, kk = h >> 1, h & 1
        slot = (st % NSLOT) * SLOT
        fs = h & 1
        L = []
        for i in range(2):
            off = slot + 2048 * i
            L.append(I(f"ds_read_b128 {a(AX + (h*2+i)*4, 4)}, {v(RX + 3*kk + (off >> 16))} offset:{off & 0xffff}"))
        for n in range(10):
            d = AW + 40 * fs + 4 * n
            if side == "B":
                off = slot + 16 * K + 2048 * n
                L.append(I(f"ds_read_b128 {a(d,4)}, {v(RW + 3*kk + (off >> 16))} offset:{off & 0xffff}"))
            else:
                L += self.tr_frag(d, slot + 16 * K + kk * 10240, n)
        return L

    def tr_frag(self, d, base, u, dst="a"):
        L = []
        for j in range(2):
            off = base + 256 * j + 1024 * (u >> 1)
            r = a(d + 2 * j, 2) if dst == "a" else v(d + 2 * j, 2)
            L.append(I(f"ds_read_b64_tr_b16 {r}, {v(RW + 3*(u & 1) + (off >> 16))} offset:{off & 0xffff}"))
        return L

    def mfmas(self, h, side, epsq=None):
        L = []
        for n in range(10):
            for i in range(2):
                c = ACC + (n * 2 + i) * 4
                cin = v(c, 4)
                if h == 0:
                    cin = v(epsq, 4) if (side == "A" and n < 5) else "0"
                L.append(I(f"{MF} {v(c,4)}, {a(AX + (h*2+i)*4, 4)}, {a(AW + 40*(h & 1) + 4*n, 4)}, {cin}"))
        return L

    def nonce_make(self):
        return mk(f"""v_add_u32 {v(vNV)}, 0x9E3779B1, {v(vNV)}
v_cmp_eq_u32 vcc, 0, {v(vNV)}
v_cndmask_b32_e64 {v(vNV)}, {v(vNV)}, 1, vcc
buffer_store_dword {v(vNV)}, {v(vNA)}, {s(SWS,4)}, 0 offen sc1
buffer_store_dword {v(vNV)}, {v(vNA)}, {s(SD,4)}, 0 offen sc1""")

    def nonce_get(self, S):
        done = self.lab("nonce")
        lp = self.lab("nlp")
        S(f"v_readfirstlane_b32 {s(sNON)}, {v(vNV)}")
        S(f"""s_cmp_lg_u32 {s(sNON)}, 0
s_cbranch_scc1 {done}
s_mov_b32 {s(sCNT)}, 0x40000
{lp}:
buffer_load_dword {v(vNV)}, off, {s(SD,4)}, 0 sc1
s_waitcnt vmcnt(0)
v_readfirstlane_b32 {s(sNON)}, {v(vNV)}
s_cmp_lg_u32 {s(sNON)}, 0
s_cbranch_scc1 {done}
s_sub_u32 {s(sCNT)}, {s(sCNT)}, 1
s_cbranch_scc0 {lp}
{done}:""", tag="opaque")

    def mainloop(self, S, side, early, fill0, fill1, pf, tail, epsq=None, pf0=[]):
        S(f"buffer_load_dword {v(vNV)}, {v(vNA)}, {s(SWS,4)}, 0 offen sc1")
        S.add(early)
        d1 = self.dma_stage(1, side)
        S.add(d1[:2])
        S(f"v_add_u32 {v(RX+2)}, 0x20000, {v(RX)}\nv_add_u32 {v(RX+5)}, 0x20000, {v(RX+3)}")
        S(f"v_add_u32 {v(RW+2)}, 0x20000, {v(RW)}\nv_add_u32 {v(RW+5)}, 0x20000, {v(RW+3)}")
        S(f"""s_lshr_b32 s3, {s(sXCD)}, 2
s_lshl_b32 s3, s3, 4
s_add_u32 s3, s3, {s(sRB)}
s_lshl_b32 s3, s3, 10
s_add_u32 s3, s3, {WS_XI}
v_lshrrev_b32 v7, 3, v1
v_lshl_add_u32 {v(vXI+1)}, v7, 7, s3
s_lshl_b32 {s(sSAME)}, {s(sCB)}, 7
s_add_u32 s3, s3, {s(sSAME)}
v_mov_b32 v7, s3
v_mov_b32 v8, {OOB}
v_cmp_eq_u32 vcc, 0, v0
v_cndmask_b32 {v(vXI)}, v8, v7, vcc
s_getreg_b32 s3, hwreg(HW_REG_XCC_ID, 0, 4)
v_mov_b32 {v(vXI+3)}, s3""")
        S.add(fill0)
        S.add(d1[2:])
        S.add(pf0)
        self.stamp(S, 0)
        S("@waittag st0\ns_barrier")
        self.stamp(S, 1)
        S.add(self.reads(0, side))
        q = {h: [] for h in range(21)}
        q[0] = self.dma_stage(2, side)
        d = self.dma_stage(3, side)
        q[1] = [self.nonce_make()] + d[:5]
        q[2] = d[5:]
        for st in range(4, 10):
            d = self.dma_stage(st, side)
            q[2 * st - 5] += d[:5]
            q[2 * st - 4] += d[5:]
        q[12] += [mk(f"buffer_load_dword {v(vNV)}, off, {s(SD,4)}, 0 sc1")]
        q[15] += [mk(f"""v_mov_b32 {v(vXI+2)}, {s(sNON)}
buffer_store_dwordx2 {v(vXI+2,2)}, {v(vXI)}, {s(SWS,4)}, 0 offen sc1""")] + pf
        q[19] += tail
        f0, f1 = 0, self.opt.get("f1", 5)
        nf = len(fill1)
        for h in range(20):
            st = h >> 1
            if h & 1:
                if st + 1 < 10:
                    S(f"@waittag st{st+1}")
                if h == 19:
                    S("@waitlgkm0")
                S("s_barrier")
            if h == 15:
                self.nonce_get(S)
            if h in (5, 11):
                self.stamp(S, 2 if h == 5 else 3)
            rd = self.reads(h + 1, side) if h < 19 else []
            fl = []
            if f0 <= h <= f1:
                lo = (h - f0) * nf // (f1 - f0 + 1)
                hi = (h - f0 + 1) * nf // (f1 - f0 + 1)
                fl = fill1[lo:hi]
            mf = self.mfmas(h, side, epsq)
            last = a(AW + 40 * (h & 1) + 36, 4)
            if side == "B":
                mf[0] = [I(f"@need {last}"), mf[0]]
            else:
                mf[0] = [I(f"@need {a(AW + 40 * (h & 1) + 16, 4)}"), mf[0]]
                mf[8] = [I(f"@need {last}"), mf[8]]
            S.add(interleave(mf, (rd, 0, 11 if side == "B" else 14), (q[h], 1, 19), (fl, 2, 19)))

    def xi_load(self, d):
        return mk(f"buffer_load_dwordx2 {v(d,2)}, {v(vXI+1)}, {s(SWS,4)}, 0 offen sc1")

    def xi_eval(self, d):
        t = f"""v_cmp_ne_u64 vcc, {v(d,2)}, {v(vXI+2,2)}
s_cmp_eq_u64 vcc, 0
s_cselect_b32 {s(sSAME)}, 1, 0"""
        if self.opt.get("nosame"):
            t += f"\ns_mov_b32 {s(sSAME)}, 0"
        return mk(t)

    def two_way(self, S, text, tag=None):
        l1, l2 = self.lab("wt"), self.lab("j")
        S(f"s_cmp_eq_u32 {s(sSAME)}, 0\ns_cbranch_scc1 {l1}")
        S(text.replace("@M", ""), tag=tag)
        S(f"s_branch {l2}\n{l1}:")
        S(text.replace("@M", " sc1"), tag="opaque")
        S(f"{l2}:")

    def flag_store(self, S, ad):
        if self.opt.get("pflag", 1):
            self.two_way(S, f"buffer_store_dword v4, {v(ad)}, {s(SWS,4)}, 0 offen@M")
        else:
            S(f"buffer_store_dword v4, {v(ad)}, {s(SWS,4)}, 0 offen sc1")

    def poll_flags(self, S, areg, nloads, dreg, step=0):
        lp, done = self.lab("poll"), self.lab("pdone")
        S(f"s_mov_b32 {s(sCNT)}, 0x40000\n{lp}:")
        for k in range(nloads):
            S(f"buffer_load_dword {v(dreg+k)}, {v(areg+k)}, {s(SWS,4)}, 0 offen sc1")
        S("s_waitcnt vmcnt(0)")
        S(f"v_xor_b32 {v(dreg)}, {s(sNON)}, {v(dreg)}")
        for k in range(1, nloads):
            S(f"v_xor_b32 {v(dreg+k)}, {s(sNON)}, {v(dreg+k)}\nv_or_b32 {v(dreg)}, {v(dreg)}, {v(dreg+k)}")
        S(f"""v_cmp_ne_u32 vcc, 0, {v(dreg)}
s_cbranch_vccz {done}
s_sub_u32 {s(sCNT)}, {s(sCNT)}, 1
s_cbranch_scc0 {lp}
{done}:""")

    def out_addrs(self, S, side, base, r0):
        S(f"""v_and_b32 v4, 15, v0
v_bfe_u32 v3, v0, 4, 2
s_mul_i32 {s(sT0)}, {s(sW)}, 10752
s_add_u32 {s(sT0)}, {s(sT0)}, {base}
v_mul_u32_u24 v5, 336, v4
v_lshl_add_u32 v5, v3, 4, v5
v_add_u32 {v(r0)}, {s(sT0)}, v5
s_lshl_b32 {s(sT1)}, {s(sRB)}, 7
s_lshl_b32 {s(sT2)}, {s(sW)}, 5
s_add_u32 {s(sT1)}, {s(sT1)}, {s(sT2)}
s_mul_i32 {s(sT1)}, {s(sT1)}, 5120
s_mul_i32 {s(sT2)}, {s(sCB)}, 320
s_add_u32 {s(sT1)}, {s(sT1)}, {s(sT2)}
s_add_u32 {s(sT1)}, {s(sT1)}, {2560 if side == 'B' else 0}
v_and_b32 v3, 63, v0""")
        for m in range(5):
            S(f"""v_add_u32 v4, {64*m}, v3
v_mul_u32_u24 v5, 3277, v4
v_lshrrev_b32 v5, 16, v5
v_lshlrev_b32 v4, 4, v4
v_lshl_add_u32 v6, v5, 4, v4
v_add_u32 {v(r0+7+m)}, {s(sT0)}, v6
v_mul_u32_u24 v5, 4800, v5
v_add3_u32 {v(r0+2+m)}, v5, v4, {s(sT1)}""")
        S(f"s_mov_b32 {s(sHX0)}, {16*5120}")

    def store_out(self, S, acc, r0, tmp):
        m_ = {0: "", 1: " nt", 2: " sc1", 3: " sc0 sc1"}[self.opt.get("omod", 0)]
        for i in range(2):
            for n in range(5):
                S(f"ds_write_b128 {v(r0)}, {v(acc + (n*2+i)*4, 4)} offset:{64*n + 16*336*i}")
        for i in range(2):
            for m in range(5):
                S(f"ds_read_b128 {v(tmp + 4*(5*i+m), 4)}, {v(r0+7+m)} offset:{16*336*i}")
        for i in range(2):
            for m in range(5):
                S(f"buffer_store_dwordx4 {v(tmp + 4*(5*i+m), 4)}, {v(r0+2+m)}, {s(SO,4)}, {s(sHX0) if i else 0} offen{m_}")

    def side_B(self):
        S = Stream()
        self.cur = S
        S("L_sideB:")
        CST = 48
        CL8, CL128, CCF = 88, 90, 92
        vSCW, vSCC, vSCH, vEP, vTW, vTB, vHS, vHF, vHP = 25, 26, 27, 28, 29, 30, 32, 33, 34
        vSEG, vXS = 94, 95
        PRM = 136
        VE = 118
        VX = 96
        CW = 126
        vHW, vGRP, vDS = 128, 129, 131
        RC = 132
        XSA = 108
        BIG = 136
        S(f"""s_and_b32 {s(sT2)}, {s(sW)}, 1
s_lshl_b32 {s(sT1)}, {s(sT2)}, 6
v_xor_b32 v7, {s(sT1)}, v5
s_mul_i32 {s(sT2)}, {s(sT2)}, 40
s_mul_i32 {s(sT1)}, {s(sCB)}, 80
s_add_u32 {s(sT2)}, {s(sT2)}, {s(sT1)}
s_mul_i32 {s(sT2)}, {s(sT2)}, 1280
v_mul_u32_u24 v8, 1280, v2
v_add3_u32 {v(WA)}, v7, v8, {s(sT2)}
v_xor_b32 v8, 64, {v(WA)}""")
        for i in range(1, 5):
            S(f"v_add_u32 {v(WA+i)}, {8*i*1280 - 1024*(i & 3)}, {'v8' if i & 1 else v(WA)}")
        S(f"""s_cmp_ge_u32 {s(sW)}, 2
s_cselect_b32 {s(SW)}, s18, s16
s_cselect_b32 {s(SW+1)}, s19, s17
s_cselect_b32 {s(SC)}, s22, s20
s_cselect_b32 {s(SC+1)}, s23, s21
s_mov_b32 {s(SW+2)}, {640*1280}
s_mov_b32 {s(SW+3)}, 0x20000""")
        S.add(self.dma_w(16 * K, WA, SW, sT0, "st0", "", self.wmod))
        self.late_setup(S)
        S(f"""v_subrev_u32 {v(RW)}, {s(sMX)}, {v(RX)}
v_xor_b32 {v(RW+3)}, 64, {v(RW)}
v_add_u32 {v(RW+1)}, 0x10000, {v(RW)}
v_add_u32 {v(RW+4)}, 0x10000, {v(RW+3)}""")
        S(f"""s_mul_i32 {s(sT0)}, {s(sCB)}, 160
v_lshl_add_u32 v9, v4, 1, {s(sT0)}
v_min_u32 v11, 59, v1
v_mul_u32_u24 {v(vGRP)}, 205, v11
v_lshrrev_b32 {v(vGRP)}, 12, {v(vGRP)}
v_mul_u32_u24 v8, 20, {v(vGRP)}
v_sub_u32 v11, v11, v8
s_mul_i32 {s(sT1)}, {s(sW)}, 20
v_add_u32 v11, {s(sT1)}, v11
v_lshl_add_u32 v10, v11, 1, {s(sT0)}""")
        self.common_srds(S)
        S(f"s_mov_b32 {s(SC+2)}, {640*1280}\ns_mov_b32 {s(SC+3)}, 0x20000")
        self.srd(S, SP0, 12, 1280)
        self.srd(S, SP1, 14, 1280)
        self.srd(S, SP2, 24, 1280)
        self.srd(S, SP3, 26, 1280)
        early = []
        for t in range(6):
            for k, sp in enumerate((SP0, SP1, SP2)):
                ad, off = ("v9", 32 * t) if t < 5 else ("v10", 0)
                early += mk(f"buffer_load_ushort {v(PRM + 3*t + k)}, {ad}, {s(sp,4)}, 0 offen offset:{off}")

        F = []
        def f(t): F.extend(groups(t))
        F0, F1 = s(sF0), s(sF1)
        f(f"""s_lshl_b32 {F0}, {s(sW)}, 2
v_add_u32 {v(vSEG)}, {F0}, v3
v_mul_u32_u24 v2, 640, {v(vSEG)}
v_lshl_add_u32 v2, v4, 3, v2
v_add_u32 {v(vSCW)}, {SCAN}, v2
v_lshlrev_b32 v2, 3, v11
v_add_u32 {v(vSCC)}, {SCAN}, v2
v_mul_u32_u24 v5, 640, {v(vGRP)}
v_add_u32 {v(vHW)}, {v(vSCC)}, v5
v_lshlrev_b32 v2, 3, v4
v_add_u32 {v(vSCH)}, {SCAN + 10240}, v2
v_lshlrev_b32 {v(vSEG)}, 3, {v(vSEG)}
v_cvt_f32_u32 {v(vSEG)}, {v(vSEG)}""")
        f(f"""s_mul_i32 {F0}, {s(sCB)}, 1280
s_mul_i32 {F1}, {s(sRB)}, 10240
s_add_u32 {F0}, {F0}, {F1}
v_lshl_add_u32 v2, v11, 4, {F0}
v_mov_b32 v5, {OOB}
v_cmp_gt_u32 vcc, 20, v1
+v_cndmask_b32 {v(vEP)}, v5, v2, vcc
v_mul_u32_u24 v5, 51200, {v(vGRP)}
v_add_u32 v2, v2, v5""")
        for j in range(5):
            f(f"v_add_u32 {v(VE+j)}, {((j - 15) * 10240) & 0xffffffff:#x}, v2")
        f(f"""s_mul_i32 {F0}, {s(sW)}, 10240
s_add_u32 {F0}, {F0}, {TBUF}
v_bfe_u32 v2, v4, 1, 2
v_lshrrev_b32 v5, 3, v4
v_lshlrev_b32 v5, 1, v5
v_xor_b32 v2, v2, v5
v_xor_b32 v2, v2, v3
v_lshlrev_b32 v2, 4, v2
v_lshl_add_u32 v2, v4, 6, v2
v_add_u32 {v(vTW)}, {F0}, v2
v_and_b32 v2, 1, v3
v_bfe_u32 v5, v1, 2, 2
v_lshl_add_u32 v6, v2, 3, v5
v_lshlrev_b32 v6, 6, v6
v_lshrrev_b32 v5, 1, v5
v_bfe_u32 v7, v1, 1, 1
v_xor_b32 v5, v5, v7
v_lshl_add_u32 v5, v2, 1, v5
v_lshl_add_u32 v6, v5, 4, v6
v_and_b32 v5, 1, v1
v_lshl_add_u32 v6, v5, 3, v6
v_lshrrev_b32 v5, 1, v3
v_lshl_add_u32 v6, v5, 10, v6
v_add_u32 {v(vTB)}, {F0}, v6
v_xor_b32 {v(vTB+1)}, 32, {v(vTB)}""")
        f(f"""s_lshl_b32 {F0}, {s(sRB)}, 2
s_add_u32 {F0}, {F0}, {s(sW)}
s_mul_i32 {s(sAW)}, {F0}, 81920
s_add_u32 {s(sAW)}, {s(sAW)}, {WS_H}
s_mul_i32 {F1}, {s(sCB)}, 10240
s_add_u32 {F1}, {F1}, {s(sAW)}
v_add_u32 {v(vHS)}, {F1}, {v(vL16)}
s_lshl_b32 {F0}, {F0}, 10
s_add_u32 {F0}, {F0}, {WS_HF}
v_lshrrev_b32 v2, 3, v1
v_lshlrev_b32 v2, 7, v2
v_add_u32 {v(vHP)}, {F0}, v2
s_lshl_b32 {F1}, {s(sCB)}, 7
s_add_u32 {F0}, {F0}, {F1}
v_mov_b32 v2, {F0}
v_mov_b32 v5, {OOB}
v_cmp_eq_u32 vcc, 0, v1
+v_cndmask_b32 {v(vHF)}, v5, v2, vcc""")
        f(f"""v_and_b32 v2, 1, v3
v_lshrrev_b32 v5, 1, v4
v_xor_b32 v2, v2, v5
v_lshlrev_b32 v2, 4, v2
v_lshl_add_u32 v2, v4, 7, v2
v_lshrrev_b32 v5, 1, v3
v_mul_u32_u24 v5, 10240, v5
v_add_u32 {v(RC)}, v5, v2
v_xor_b32 {v(RC+1)}, 32, {v(RC)}
v_xor_b32 {v(RC+2)}, 64, {v(RC)}
v_xor_b32 {v(RC+3)}, 96, {v(RC)}""")
        f(f"""s_lshl_b32 {F0}, {s(sRB)}, 7
s_lshl_b32 {F1}, {s(sW)}, 5
s_add_u32 {F0}, {F0}, {F1}
s_mul_i32 {F0}, {F0}, 1280
s_mul_i32 {F1}, {s(sCB)}, 160
v_lshl_add_u32 {v(vDS)}, v3, 3, {F1}
s_add_u32 {F0}, {F0}, {F1}
s_mul_i32 {F1}, {s(sW)}, 5120
s_add_u32 {s(sAW+4)}, {F1}, {76*K}
v_mul_u32_u24 v2, 160, v4
v_lshl_add_u32 v2, v3, 3, v2
v_add_u32 {v(vXS)}, {s(sAW+4)}, v2""")
        for m in range(5):
            f(f"""v_add_u32 v2, {64*m}, v1
v_mul_u32_u24 v5, 6554, v2
v_lshrrev_b32 v5, 16, v5
v_mul_u32_u24 v5, 1120, v5
v_lshl_add_u32 v5, v2, 4, v5
v_add_u32 v5, {(-1024*(m & 3)) & 0xffffffff:#x}, v5
v_add_u32 {v(XSA+m)}, {F0}, v5""")

        f(f"""s_lshr_b32 {F0}, s2, 3
s_mul_i32 {F0}, {F0}, 200
s_and_b32 {F1}, {s(sW)}, 1
s_mul_i32 {F1}, {F1}, 100
s_add_u32 {F0}, {F0}, {F1}
v_add_u32 v35, {F0}, v1
v_lshlrev_b32 v35, 7, v35
v_add_u32 v36, 8192, v35""")
        F_addr = F
        F = []

        def power(n, dr, di):
            t = ""
            if n is None:
                t += "v_mov_b32 v12, v8\nv_mov_b32 v13, v9\n"
            else:
                t += f"v_mul_f32 v12, {n}, v8\nv_mul_f32 v13, {n}, v9\n"
            t += f"""v_exp_f32 v12, v12
v_fract_f32 v13, v13
v_cos_f32 v14, v13
v_sin_f32 v15, v13
v_mul_f32 {v(dr)}, v12, v14
v_mul_f32 {v(di)}, v12, v15"""
            return t
        for t in range(6):
            lr, li, ld = PRM + 3 * t, PRM + 3 * t + 1, PRM + 3 * t + 2
            c = CST + 8 * t
            f(f"""v_lshlrev_b32 {v(ld)}, 16, {v(ld)}
v_lshlrev_b32 {v(lr)}, 16, {v(lr)}
v_lshlrev_b32 {v(li)}, 16, {v(li)}
v_mul_f32 v2, {f2u(LOG2E)}, {v(ld)}
v_exp_f32 v2, v2
v_cvt_pk_bf16_f32 v2, v2, v2
v_and_b32 v2, 0xffff0000, v2
v_mul_f32 v8, v2, {v(lr)}
v_mul_f32 v9, v2, {v(li)}
v_mul_f32 v8, {f2u(LOG2E)}, v8
v_mul_f32 v9, 0.15915494, v9""")
            Lr, Li = (c, c + 2) if t < 5 else (6, 7)
            cf = c + 4 if t < 5 else CCF
            f(power(None, Lr, Li))
            f(f"""v_add_f32 v2, -1.0, {v(Lr)}
v_mul_f32 v5, {v(lr)}, {v(lr)}
v_fmac_f32 v5, {v(li)}, {v(li)}
v_rcp_f32 v5, v5
v_mul_f32 v10, v2, {v(lr)}
v_fmac_f32 v10, {v(Li)}, {v(li)}
v_add_f32 v5, v5, v5
v_mul_f32 {v(cf)}, v10, v5
v_mul_f32 v10, {v(Li)}, {v(lr)}
v_fma_f32 v10, -v2, {v(li)}, v10
v_mul_f32 {v(cf+1)}, v10, v5""")
            if t < 5:
                f(f"""v_mul_f32 v2, {v(Li)}, {v(Li)}
v_fma_f32 {v(c+1)}, {v(Lr)}, {v(Lr)}, -v2
v_mul_f32 v2, {v(Lr)}, {v(Li)}
v_add_f32 {v(c+3)}, v2, v2""")
                f(power(v(vSEG), c + 6, c + 7))
            else:
                f(power(f2u(8.0), CL8, CL8 + 1))
                f(power(f2u(128.0), CL128, CL128 + 1))
                f(f"""v_sub_u32 v10, 2, {v(vGRP)}
v_mul_u32_u24 v10, 640, v10
v_cvt_f32_u32 v10, v10""")
                f(power("v10", 6, 7))
                f(f"""v_mul_f32 {v(CW)}, {v(CCF)}, v6
v_mul_f32 {v(CW+1)}, {v(CCF)}, v7
v_fma_f32 {v(CW)}, -{v(CCF+1)}, v7, {v(CW)}
v_fmac_f32 {v(CW+1)}, {v(CCF+1)}, v6""")
        f(f"""s_add_u32 {s(SE)}, {s(SWS)}, {WS_E}
+s_addc_u32 {s(SE+1)}, {s(SWS+1)}, 0
s_mov_b32 {s(SE+2)}, 163840""")

        def cchunk(k):
            pre = f"""s_add_u32 {s(sT1)}, {s(sAW+2)}, {k}
s_sub_u32 {s(sT2)}, {s(sT1)}, 10
s_cselect_b32 {s(sT1)}, {s(sT1)}, {s(sT2)}
s_lshl_b32 {s(sT1)}, {s(sT1)}, 7
"""
            return self.dma_w(CH[k], WA, SC, sT1, f"c{k}", pre)
        S(f"s_mul_i32 {s(sAW+2)}, {s(sCB)}, 5\ns_lshr_b32 {s(sAW+2)}, {s(sAW+2)}, 2")
        pf = [mk(f"buffer_load_dword v{37+k}, v{35+k}, {s(SC,4)}, 0 offen") for k in range(2)]
        xs = []
        for m in range(5):
            pre = f"s_add_u32 m0, {s(sAW+4)}, {4096*(m >> 2)}\n" if (m & 3) == 0 else ""
            xs.append(mk(pre + f"buffer_load_dwordx4 {v(XSA+m)}, {s(SX,4)}, 0 offen offset:{1024*(m & 3)} lds", "xs"))
        F_addr += [mk(f"buffer_load_dwordx2 {a(240 + 2*n, 2)}, {v(vDS)}, {s(SP3,4)}, 0 offen offset:{32*n}") for n in range(5)]
        xr = [mk("@waittag xs")] + [mk(f"ds_read_b64 {a(2*(5*i+n), 2)}, {v(vXS)} offset:{32*n + 2560*i}") for i in range(2) for n in range(5)]
        pt = []
        if self.opt.get("pretouch", 0):
            F_addr += groups(f"""v_mul_u32_u24 v2, 112, v1
v_add_u32 v123, {v(vHS)}, v2
v_add_u32 v124, 8192, v123
v_mov_b32 v5, {OOB}
v_cmp_gt_u32 vcc, 16, v1
+v_cndmask_b32 v124, v5, v124, vcc""")
            pt = [mk(f"buffer_load_dword v{125+5*k}, v{123+k}, {s(SWS,4)}, 0 offen nt") for k in range(2)]
        self.mainloop(S, "B", early, F_addr, F, xs + (pf + pt if self.opt.get("ptlast", 1) else pt + pf), xr)
        self.stamp(S, 4)

        re = lambda t, k: ACC + (t * 2 + (k >> 1)) * 4 + 2 * (k & 1)
        im = lambda t, k: ACC + ((t + 5) * 2 + (k >> 1)) * 4 + 2 * (k & 1)
        HI = "op_sel:[1,0,0] op_sel_hi:[1,1,1]"
        NEG = "neg_lo:[1,0,0] neg_hi:[1,0,0]"
        T0 = BIG
        cur = None
        for k in range(1, 4):
            dst = T0 if k & 1 else BIG + 20
            for t in range(5):
                c = CST + 8 * t
                sr, si = (re(t, 0), im(t, 0)) if k == 1 else (cur + 4 * t, cur + 4 * t + 2)
                S(f"v_pk_fma_f32 {v(dst+4*t,2)}, {v(c,2)}, {v(sr,2)}, {v(re(t,k),2)} {HI}")
                S(f"v_pk_fma_f32 {v(dst+4*t+2,2)}, {v(c,2)}, {v(si,2)}, {v(im(t,k),2)} {HI}")
            for t in range(5):
                c = CST + 8 * t
                sr, si = (re(t, 0), im(t, 0)) if k == 1 else (cur + 4 * t, cur + 4 * t + 2)
                S(f"v_pk_fma_f32 {v(dst+4*t,2)}, {v(c+2,2)}, {v(si,2)}, {v(dst+4*t,2)} {HI} {NEG}")
                S(f"v_pk_fma_f32 {v(dst+4*t+2,2)}, {v(c+2,2)}, {v(sr,2)}, {v(dst+4*t+2,2)} {HI}")
            cur = dst
        EE = BIG + 20
        for t in range(5):
            c, b = CST + 8 * t, cur + 4 * t
            S(f"v_fma_f32 {v(EE+2*t)}, {v(c)}, {v(b)}, {v(b+1)}\nv_fma_f32 {v(EE+2*t+1)}, {v(c)}, {v(b+2)}, {v(b+3)}")
        for t in range(5):
            c, b = CST + 8 * t, cur + 4 * t
            S(f"v_fma_f32 {v(EE+2*t)}, -{v(c+2)}, {v(b+2)}, {v(EE+2*t)}\nv_fmac_f32 {v(EE+2*t+1)}, {v(c+2)}, {v(b)}")
            S(f"ds_write_b64 {v(vSCW)}, {v(EE+2*t,2)} offset:{128*t}")
        S("@waitlgkm0\ns_barrier")
        ch = lambda j: BIG + 2 * j
        for j in range(16):
            S(f"ds_read_b64 {v(ch(j),2)}, {v(vSCC)} offset:{640*j}")
        for j in range(1, 16):
            p, c = ch(j - 1), ch(j)
            S(f"""v_fmac_f32 {v(c)}, {v(CL8)}, {v(p)}
v_fmac_f32 {v(c+1)}, {v(CL8)}, {v(p+1)}
v_fma_f32 {v(c)}, -{v(CL8+1)}, {v(p+1)}, {v(c)}
v_fmac_f32 {v(c+1)}, {v(CL8+1)}, {v(p)}""")
            if j == 1:
                S(f"v_mov_b32 {v(BIG+32)}, {s(sNON)}\nv_mov_b32 {v(BIG+33)}, {s(sNON)}")
        S(f"buffer_store_dwordx4 {v(BIG+30,4)}, {v(vEP)}, {s(SE,4)}, 0 offen sc1")
        self.stamp(S, 5)
        S_main = S
        S = Stream()
        S(f"v_mov_b32 v2, 0\nv_mov_b32 v3, 0\nds_write_b64 {v(vSCC)}, v[2:3]")
        for j in range(15):
            c = ch(j)
            d = 4 + 2 * (j & 3)
            S(f"""v_mul_f32 {v(d)}, {v(CCF)}, {v(c)}
v_mul_f32 {v(d+1)}, {v(CCF)}, {v(c+1)}
v_fma_f32 {v(d)}, -{v(CCF+1)}, {v(c+1)}, {v(d)}
v_fmac_f32 {v(d+1)}, {v(CCF+1)}, {v(c)}
ds_write_b64 {v(vSCC)}, {v(d,2)} offset:{640*(j+1)}""")
        LO = "op_sel:[0,0] op_sel_hi:[0,1]"
        for t in range(5):
            cf = CST + 8 * t + 4
            for k in range(4):
                d = 2 + 2 * (k & 1)
                S(f"""v_pk_mul_f32 {v(d,2)}, {v(cf,2)}, {v(re(t,k),2)} op_sel:[1,0] op_sel_hi:[1,1]
v_pk_mul_f32 {v(re(t,k),2)}, {v(cf,2)}, {v(re(t,k),2)} {LO}
v_pk_fma_f32 {v(re(t,k),2)}, {v(cf,2)}, {v(im(t,k),2)}, {v(re(t,k),2)} {HI} {NEG}
v_pk_fma_f32 {v(im(t,k),2)}, {v(cf,2)}, {v(im(t,k),2)}, {v(d,2)} op_sel:[0,0,0] op_sel_hi:[0,1,1]""")
        for x in range(7, 0, -1):
            for t in range(5):
                c = CST + 8 * t
                ur, ui = re(t, x >> 1) + (x & 1), im(t, x >> 1) + (x & 1)
                pr, pi = re(t, (x - 1) >> 1) + ((x - 1) & 1), im(t, (x - 1) >> 1) + ((x - 1) & 1)
                S(f"""v_fmac_f32 {v(ur)}, {v(c)}, {v(pr)}
v_fmac_f32 {v(ui)}, {v(c)}, {v(pi)}
v_fma_f32 {v(ur)}, -{v(c+2)}, {v(pi)}, {v(ur)}
v_fmac_f32 {v(ui)}, {v(c+2)}, {v(pr)}""")
        cq = [self.xi_load(36)] + [x for k in range(5) for x in cchunk(k)]
        S_main.add(interleave(S.items, (cq, 4, len(S.items) - 40)))
        S = S_main
        SL = 108
        S("@waitlgkm0\ns_barrier")
        for t in range(5):
            S(f"ds_read_b64 {v(SL+2*t,2)}, {v(vSCW)} offset:{128*t}")
        self.stamp(S, 6)
        S.add(self.xi_eval(36))
        S(f"v_mov_b32 v2, {s(sNON)}")
        for j in range(5):
            S(f"v_cmp_le_i32 vcc, 0, {v(VE+j)}\nv_cndmask_b32_e64 {v(VX+j)}, 0, v2, vcc")
        S("@waitlgkm0")
        lp, done = self.lab("epoll"), self.lab("edone")
        S(f"s_mov_b32 {s(sCNT)}, 0x40000\n{lp}:")
        for j in range(5):
            S(f"buffer_load_dwordx4 {v(BIG+4*j,4)}, {v(VE+j)}, {s(SE,4)}, 0 offen sc1")
        S("s_waitcnt vmcnt(0)")
        for j in range(5):
            d, hp = BIG + 4 * j, BIG + 4 * j - 4
            S(f"v_xor_b32 {v(d+2)}, {v(d+2)}, {v(VX+j)}")
            if j:
                S(f"""v_fmac_f32 {v(d)}, {v(CL128)}, {v(hp)}
v_fmac_f32 {v(d+1)}, {v(CL128)}, {v(hp+1)}
v_or_b32 {v(d+2)}, {v(d+2)}, {v(hp+2)}
v_fma_f32 {v(d)}, -{v(CL128+1)}, {v(hp+1)}, {v(d)}
v_fmac_f32 {v(d+1)}, {v(CL128+1)}, {v(hp)}""")
        hp = BIG + 16
        S(f"""v_cmp_ne_u32 vcc, 0, {v(hp+2)}
v_mul_f32 v4, {v(CW)}, {v(hp)}
v_mul_f32 v5, {v(CW)}, {v(hp+1)}
v_fma_f32 v4, -{v(CW+1)}, {v(hp+1)}, v4
v_fmac_f32 v5, {v(CW+1)}, {v(hp)}
s_cbranch_vccz {done}
s_sub_u32 {s(sCNT)}, {s(sCNT)}, 1
s_cbranch_scc0 {lp}
{done}:""")
        S(f"""ds_write_b64 {v(vHW)}, v[4:5] offset:10240
@waitlgkm0
s_barrier""")
        self.stamp(S, 7)
        HH = BIG
        for t in range(5):
            for g in range(3):
                S(f"ds_read_b64 {v(HH+10*g+2*t,2)}, {v(vSCH)} offset:{128*t + 640*g}")
        for g in (1, 2):
            for t in range(5):
                S(f"v_pk_add_f32 {v(HH+2*t,2)}, {v(HH+2*t,2)}, {v(HH+10*g+2*t,2)}")
        for t in range(5):
            ls, h_, sl = CST + 8 * t + 6, HH + 2 * t, SL + 2 * t
            S(f"""v_fmac_f32 {v(sl)}, {v(ls)}, {v(h_)}
v_fmac_f32 {v(sl+1)}, {v(ls)}, {v(h_+1)}
v_fma_f32 {v(sl)}, -{v(ls+1)}, {v(h_+1)}, {v(sl)}
v_fmac_f32 {v(sl+1)}, {v(ls+1)}, {v(h_)}""")
        for t in range(5):
            c, sl = CST + 8 * t, SL + 2 * t
            S(f"v_pk_fma_f32 {v(re(t,0),2)}, {v(c,2)}, {v(sl,2)}, {v(re(t,0),2)} op_sel:[0,0,0] op_sel_hi:[1,0,1]")
            S(f"v_pk_fma_f32 {v(im(t,0),2)}, {v(c,2)}, {v(sl,2)}, {v(im(t,0),2)} op_sel:[0,1,0] op_sel_hi:[1,1,1]")
        for t in range(5):
            c, sl = CST + 8 * t, SL + 2 * t
            S(f"v_pk_fma_f32 {v(re(t,0),2)}, {v(c+2,2)}, {v(sl,2)}, {v(re(t,0),2)} op_sel:[0,1,0] op_sel_hi:[1,1,1] {NEG}")
            S(f"v_pk_fma_f32 {v(im(t,0),2)}, {v(c+2,2)}, {v(sl,2)}, {v(im(t,0),2)} op_sel:[0,0,0] op_sel_hi:[1,0,1]")
        for k in range(1, 4):
            for t in range(5):
                c = CST + 8 * t
                S(f"v_pk_fma_f32 {v(re(t,k),2)}, {v(c,2)}, {v(re(t,k-1),2)}, {v(re(t,k),2)} {HI}")
                S(f"v_pk_fma_f32 {v(im(t,k),2)}, {v(c,2)}, {v(im(t,k-1),2)}, {v(im(t,k),2)} {HI}")
            for t in range(5):
                c = CST + 8 * t
                S(f"v_pk_fma_f32 {v(re(t,k),2)}, {v(c+2,2)}, {v(im(t,k-1),2)}, {v(re(t,k),2)} {HI} {NEG}")
                S(f"v_pk_fma_f32 {v(im(t,k),2)}, {v(c+2,2)}, {v(re(t,k-1),2)}, {v(im(t,k),2)} {HI}")
        CV = 48
        for t in range(5):
            for ri in range(2):
                d = CV + 4 * (2 * t + ri)
                for k in range(4):
                    r = re(t, k) if ri == 0 else im(t, k)
                    n = "" if ri == 0 else "-"
                    S(f"v_cvt_pk_bf16_f32 {v(d+k)}, {n}{v(r)}, {n}{v(r+1)}")
                S(f"ds_write_b128 {v(vTW)}, {v(d,4)} offset:{1024*(2*t+ri)}")
        HFR = ACC
        for t in range(5):
            for i in range(2):
                d = HFR + 4 * (2 * t + i)
                for j in range(2):
                    S(f"ds_read_b64_tr_b16 {v(d+2*j,2)}, {v(vTB + (i ^ j))} offset:{2048*t + 256*j}")
        S(f"v_add_u32 v2, 4096, {v(vHS)}\nv_add_u32 v3, 8192, {v(vHS)}")
        S("@waitlgkm0")
        self.two_way(S, "\n".join(f"buffer_store_dwordx4 {v(HFR+4*m,4)}, {[v(vHS), 'v2', 'v3'][m >> 2]}, {s(SWS,4)}, 0 offen offset:{1024*(m & 3)}@M" for m in range(10)), "hst")
        S("s_barrier")
        S(f"v_mov_b32 v4, {s(sNON)}")
        S("@waittag hst")
        self.flag_store(S, vHF)
        self.stamp(S, 8)
        XK, DK = 48, 68
        for x in range(30):
            S(f"v_accvgpr_read_b32 {v(XK + x)}, {a(x if x < 20 else 220 + x)}")
        for k in (5, 6, 7):
            S.add(cchunk(k))
        AC2 = ACC + 40
        for n in range(5):
            S(f"""v_lshlrev_b32 v4, 16, {v(DK+2*n)}
v_and_b32 v5, 0xffff0000, {v(DK+2*n)}
v_lshlrev_b32 v6, 16, {v(DK+2*n+1)}
v_and_b32 v7, 0xffff0000, {v(DK+2*n+1)}""")
            for i in range(2):
                x = XK + 2 * (5 * i + n)
                c = AC2 + (n * 2 + i) * 4
                S(f"""v_lshlrev_b32 v8, 16, {v(x)}
v_and_b32 v9, 0xffff0000, {v(x)}
v_lshlrev_b32 v10, 16, {v(x+1)}
v_and_b32 v11, 0xffff0000, {v(x+1)}
v_pk_mul_f32 v[8:9], v[8:9], v[4:5]
v_pk_mul_f32 v[10:11], v[10:11], v[6:7]
v_cvt_pk_bf16_f32 v12, v8, v9
v_cvt_pk_bf16_f32 v13, v10, v11
v_lshlrev_b32 {v(c)}, 16, v12
v_and_b32 {v(c+1)}, 0xffff0000, v12
v_lshlrev_b32 {v(c+2)}, 16, v13
v_and_b32 {v(c+3)}, 0xffff0000, v13""")
        S(f"v_add_u32 v14, {s(sAW)}, {v(vL16)}\nv_add_u32 v15, 4096, v14")
        for k in range(3):
            for j in range(4):
                S(f"v_add_u32 {v(96 + 4*k + j)}, {k * 0x10000}, {v(RC + j)}")
        self.out_addrs(S, "B", 20 * K, 48)
        self.poll_flags(S, vHP, 1, 4)
        self.stamp(S, 9)
        DEPTH = self.opt.get("hdepth", 6)
        def hload(u):
            c, tl = u >> 2, u & 3
            L = []
            pre = ""
            if tl == 0:
                pre = f"""s_add_u32 {s(sT0)}, {s(sAW+2)}, {c}
s_sub_u32 {s(sAW+3)}, {s(sT0)}, 10
s_cselect_b32 {s(sT0)}, {s(sT0)}, {s(sAW+3)}
s_lshl_b32 {s(sT0)}, {s(sT0)}, 13
"""
            for i in range(2):
                off = tl * 2048 + i * 1024
                d = ((u % 32) * 2 + i) * 4
                L.append(mk(pre + f"buffer_load_dwordx4 {a(d,4)}, v{14 + (off >> 12)}, {s(SWS,4)}, {s(sT0)} offen offset:{off & 4095}{self.lmod}"))
                pre = ""
            return L
        CF = 108
        def creads(u):
            c, tl = u >> 2, u & 3
            L = []
            for n in range(5):
                off = CH[c] + 2048 * n
                L.append(I(f"ds_read_b128 {v(CF + 20*(u & 1) + 4*n, 4)}, {v(96 + 4*(off >> 16) + tl)} offset:{off & 0xffff}"))
            return L
        for u in range(DEPTH):
            S.add(hload(u))
        S("@waittag c0 c1 c2 c3 c4 c5 c6 c7\ns_barrier")
        S.add(creads(0))
        for u in range(40):
            pre = []
            if u % 4 == 0:
                self.tr(S, 1)
            if u == 7:
                S("@waitlgkm0\ns_barrier")
            if u == 31:
                S("@waittag c8 c9\ns_barrier")
            mf = []
            for n in range(5):
                for i in range(2):
                    c = AC2 + (n * 2 + i) * 4
                    mf.append(I(f"{MF} {v(c,4)}, {v(CF + 20*(u & 1) + 4*n, 4)}, {a(((u % 32)*2+i)*4, 4)}, {v(c,4)}"))
            ld = hload(u + DEPTH) if u + DEPTH < 40 else []
            if 8 <= u < 18:
                ld = ld + [(cchunk(8) + cchunk(9))[u - 8]]
            rd = creads(u + 1) if u < 39 else []
            S.add(interleave(mf, (rd, 0, 4), (ld, 2, 9)))
        self.stamp(S, 10)
        self.store_out(S, AC2, 48, 176)
        self.stamp(S, 11)
        self.dump_stamps(S)
        S("s_endpgm")
        return S

    def phi_pairs(self, S, pairs, EPS, CPH):
        G = 4
        for b in range(0, len(pairs), G):
            blk = pairs[b:b + G]
            for x, (c, d) in enumerate(blk):
                S(f"v_pk_fma_f32 {v(2+2*x,2)}, {v(c,2)}, {v(CPH,2)}, {v(CPH,2)} op_sel:[0,0,1] op_sel_hi:[1,0,1]")
            for x, (c, d) in enumerate(blk):
                S(f"v_exp_f32 {v(2+2*x)}, {v(2+2*x)} clamp\nv_max_f32 {v(c)}, {v(EPS)}, {v(c)}")
                S(f"v_exp_f32 {v(3+2*x)}, {v(3+2*x)} clamp\nv_max_f32 {v(c+1)}, {v(EPS)}, {v(c+1)}")
            for x, (c, d) in enumerate(blk):
                S(f"v_pk_add_f32 {v(c,2)}, {v(c,2)}, {v(2+2*x,2)}")
            for x, (c, d) in enumerate(blk):
                S(f"v_cvt_pk_bf16_f32 {v(d)}, {v(c)}, {v(c+1)}")

    def side_A(self):
        S = Stream()
        self.cur = S
        EPSQ, CPH, EPSD = 48, 52, 56
        vXW, PKS, PKO, PKX, V0, V1O, V1X = 60, 61, 62, 63, 64, 65, 66
        PS, PO, P2, vRL, vBP, vKF, vKL, vOS, vOS2, vOL, vOF, vOP, vRX, vK3 = 67, 68, 69, 70, 71, 72, 73, 74, 75, 76, 77, 78, 79, 80
        UQ = 82
        sWO = SP0
        sC4K = SP0 + 5
        vB, vR, vC = UQ, UQ + 1, UQ + 2
        S(f"""v_lshrrev_b32 {v(vR)}, 2, v1
v_lshrrev_b32 v7, 5, v1
v_bfe_u32 {v(vB)}, v1, 1, 1
v_xor_b32 {v(vB)}, {v(vB)}, v7
v_and_b32 v7, 1, v1
v_lshlrev_b32 v7, 4, v7
v_lshl_add_u32 v7, {v(vB)}, 5, v7
s_mul_i32 {s(sT1)}, {s(sCB)}, 160
s_addk_i32 {s(sT1)}, 0x1000
v_add_u32 {v(vC)}, {s(sT1)}, v7
s_mul_i32 {s(sT2)}, {s(sW)}, {16*3840}
v_mul_u32_u24 v7, 3840, {v(vR)}
v_add3_u32 v7, v7, {v(vC)}, {s(sT2)}
v_add_u32 {v(WA)}, 1280, v7
v_add_u32 {v(WA+1)}, {1280 + 64 - 1024}, v7
v_mul_u32_u24 v8, 1120, {v(vB)}
v_add_u32 v9, {(1280 + 128 - 2048) & 0xffffffff:#x}, v7
v_add_u32 {v(WA+2)}, v8, v9
v_add_u32 {v(WA+3)}, {(1280 + 192 + 1120 - 3072) & 0xffffffff:#x}, v7
v_add_u32 {v(WA+4)}, {1280 + 256 + 1120}, v7
s_mul_i32 {s(sT1)}, {s(sT0)}, 1920""")
        self.srd_biased(S, SW, 6, 640 * 3840)
        S.add(self.dma_w(16 * K, WA, SW, sT1, "st0", "", self.wmod))
        self.late_setup(S)
        for c in range(5):
            S(f"s_mul_i32 {s(sAW+c)}, {s(sA128+c)}, 1920")
        S(f"s_mul_i32 {s(sHW0)}, {s(sHX0)}, 1920\ns_mul_i32 {s(sHW1)}, {s(sHX1)}, 1920")
        S(f"""v_bfe_u32 v7, v1, 2, 2
v_and_b32 v9, 1, v3
v_lshl_add_u32 v7, v9, 3, v7
v_lshlrev_b32 v7, 6, v7
v_and_b32 v8, 3, v1
v_lshl_add_u32 v7, v8, 3, v7
v_lshrrev_b32 v8, 1, v3
v_mul_u32_u24 v8, 5120, v8
v_add_u32 v7, v7, v8
v_lshl_add_u32 {v(RW)}, v9, 5, v7
v_xor_b32 {v(RW+3)}, 32, {v(RW)}
v_add_u32 {v(RW+1)}, 0x10000, {v(RW)}
v_add_u32 {v(RW+4)}, 0x10000, {v(RW+3)}""")
        for k in range(4):
            S(f"v_mov_b32 {v(EPSQ+k)}, {f2u(1e-6)}")
        self.common_srds(S)
        self.srd_biased(S, SC, 8, 640 * 1280)

        F = []
        def f(t): F.extend(groups(t))
        F0, F1 = s(sF0), s(sF1)
        HB = 320 * 3840
        f(f"""s_mul_i32 {F0}, {s(sW)}, {16*3840}
v_mul_u32_u24 v7, 3840, {v(vR)}
v_add3_u32 v7, v7, {v(vC)}, {F0}
s_mul_i32 {F0}, {s(sETA)}, {HB}
s_sub_u32 {F1}, {HB - 160}, {F0}
v_add_u32 v8, {F0}, v7
v_add_u32 v9, {F1}, v7
v_mov_b32 {v(WQ)}, v8
v_add_u32 {v(WQ+1)}, {(64 - 1024) & 0xffffffff:#x}, v8
v_cmp_eq_u32 vcc, 0, {v(vB)}
+v_cndmask_b32 v10, v9, v8, vcc
v_add_u32 {v(WQ+2)}, {(128 - 2048) & 0xffffffff:#x}, v10
v_add_u32 {v(WQ+3)}, {(192 - 3072) & 0xffffffff:#x}, v9
v_add_u32 {v(WQ+4)}, 256, v9""")
        H2 = 80 * 1280 - 160
        f(f"""s_lshl_b32 {F0}, {s(sW)}, 1
v_lshrrev_b32 v7, 3, {v(vR)}
v_add_u32 v7, {F0}, v7
v_and_b32 v7, 3, v7
v_mul_u32_u24 v7, 5, v7
v_and_b32 v8, 3, {v(vR)}
v_mul_u32_u24 v8, 20, v8
v_bfe_u32 v10, {v(vR)}, 2, 1
v_add3_u32 v7, v7, v8, v10
v_mul_u32_u24 v7, 1280, v7
v_add_u32 {v(WO)}, v7, {v(vC)}
v_add_u32 {v(WO+1)}, {(64 - 1024) & 0xffffffff:#x}, {v(WO)}
v_mul_u32_u24 v8, {H2}, {v(vB)}
v_add_u32 v9, {(128 - 2048) & 0xffffffff:#x}, {v(WO)}
v_add_u32 {v(WO+2)}, v8, v9
v_add_u32 {v(WO+3)}, {192 + H2 - 3072}, {v(WO)}
v_add_u32 {v(WO+4)}, {256 + H2}, {v(WO)}
v_mul_u32_u24 {v(UQ+3)}, {79*1280}, v10
v_mul_u32_u24 v8, {240*1280}, {v(vB)}
v_add_u32 {v(UQ+4)}, {v(UQ+3)}, v8
v_add_u32 {v(UQ+5)}, {240*1280}, {v(UQ+3)}""")
        f(f"s_lshr_b32 {F0}, {s(sW)}, 1\ns_mul_i32 {F1}, {F0}, 2560")
        for c in range(4):
            f(f"s_add_u32 {s(sWO+c)}, {F1}, {160*1280*c}")
        f(f"s_mul_i32 {F0}, {F0}, {160*1280}\ns_add_u32 {s(sWO+4)}, {F0}, {4*1280}")
        f(f"""s_movk_i32 {s(sC4K)}, 0x1000
s_movk_i32 {s(sC4K+1)}, 0x2000
v_mov_b32 {v(CPH)}, {f2u(LOG2E)}
v_mov_b32 {v(CPH+1)}, {f2u(-1e-6*LOG2E)}
v_mov_b32 {v(EPSD)}, 0
v_mov_b32 {v(EPSD+1)}, {f2u(1e-6)}
v_mov_b32 {v(EPSD+2)}, 0
v_mov_b32 {v(EPSD+3)}, {f2u(1e-6)}""")
        f(f"""s_mul_i32 {F0}, {s(sW)}, {XS}
s_add_u32 {F0}, {F0}, {XCH}
v_add_u32 {v(vXW)}, {F0}, {v(vL16)}
v_and_b32 v7, 1, v1
v_mul_u32_u24 v8, 0x3f80, v7
v_lshl_or_b32 v8, v8, 16, v8
v_lshl_add_u32 v35, v7, 4, {F0}
v_mov_b32 v54, v8""")
        def pk(dst, hh, aa):
            f(f"""{hh}
{aa}
v_mov_b32 v12, {XCH + 10240}
v_mov_b32 v7, {F1}
v_lshl_add_u32 v7, v7, 4, v4
v_mov_b32 v8, {F0}
v_lshlrev_b32 v9, 2, v8
v_sub_u32 v7, v7, v9
v_add_u32 v8, {F1}, v8
v_lshl_add_u32 v8, v8, 10, {v(vL16)}
v_add_u32 v8, {XCH}, v8
v_cmp_gt_u32 vcc, 20, v7
+v_cndmask_b32 {v(dst)}, v12, v8, vcc""")
        pk(PKS, f"s_mov_b32 {F0}, {s(sW)}", f"s_and_b32 {F1}, {s(sW)}, 1")
        pk(PKO, f"s_mov_b32 {F0}, {s(sW)}", f"s_andn2_b32 {F1}, 1, {s(sW)}")
        pk(PKX, f"s_xor_b32 {F0}, {s(sW)}, 1", f"s_and_b32 {F1}, {s(sW)}, 1")
        def coladdr(dst, col):
            return f"""v_lshrrev_b32 v9, 4, {col}
v_and_b32 v10, 15, {col}
v_lshlrev_b32 v10, 4, v10
v_lshl_add_u32 v10, v3, 8, v10
v_lshl_add_u32 v10, v9, 10, v10
v_add_u32 {dst}, {XCH + 5*1024}, v10"""
        f(f"""v_lshrrev_b32 v13, 2, v4
v_mul_u32_u24 v13, 5, v13
v_and_b32 v14, 3, v4
s_mul_i32 {F0}, {s(sW)}, 20
v_add3_u32 v7, v13, v14, {F0}
""" + coladdr(v(V0), "v7"))
        for dst, hh in ((V1O, f"s_mov_b32 {F0}, {s(sW)}"), (V1X, f"s_xor_b32 {F0}, {s(sW)}, 1")):
            f(f"""{hh}
s_and_b32 {F1}, {F0}, 1
s_lshl_b32 {F1}, {F1}, 1
s_mul_i32 {F0}, {F0}, 20
v_add3_u32 v7, v13, 4, {F0}
""" + coladdr("v8", "v7") + f"""
v_subrev_u32 v7, {F1}, v14
v_mov_b32 v9, {XCH + 10240}
v_mov_b32 v10, {XCH + 10256}
v_cmp_eq_u32 vcc, 1, v7
+v_cndmask_b32 v9, v9, v10, vcc
v_cmp_eq_u32 vcc, 0, v7
+v_cndmask_b32 {v(dst)}, v9, v8, vcc""")
        f(f"""s_lshl_b32 {F0}, {s(sCB)}, 2
s_add_u32 {F0}, {F0}, {s(sW)}
s_lshl_b32 {F1}, {F0}, 5
s_add_u32 {F1}, {F1}, {s(sRB)}
s_lshl_b32 {F1}, {F1}, 6
s_add_u32 {F1}, {F1}, {WS_KV}
v_lshl_add_u32 v7, v4, 2, {F1}
v_lshl_add_u32 v7, v3, 10, v7
v_mov_b32 v12, {OOB}
v_cmp_gt_u32 vcc, 32, v1
+v_cndmask_b32 {v(vKF)}, v12, v7, vcc
s_mul_i32 {F0}, {F0}, 98304
s_add_u32 {F0}, {F0}, {WS_P}
v_lshrrev_b32 v7, 5, v1
v_mul_u32_u24 v7, 49152, v7
v_bfe_u32 v8, v1, 2, 3
v_lshl_add_u32 v7, v8, 10, v7
v_and_b32 v9, 3, v1
v_lshl_add_u32 v7, v9, 4, v7
s_lshl_b32 {F1}, {s(sRB)}, 6
v_add3_u32 v7, v7, {F1}, 0
v_add_u32 v7, {F0}, v7
v_cmp_gt_u32 vcc, 6, v8
+v_cndmask_b32 {v(vRL)}, v12, v7, vcc
+v_cndmask_b32_e64 {v(vRX)}, 0, -1, vcc
s_mul_i32 {F1}, {s(sRB)}, 6144
s_add_u32 {F0}, {F0}, {F1}
v_add_u32 v7, {F0}, {v(vL16)}
v_add_u32 {v(P2)}, 4096, v7
s_and_b32 {F1}, {s(sW)}, 1
s_lshl_b32 {F1}, {F1}, 11
v_add_u32 {v(PS)}, {F1}, v7
s_xor_b32 {F1}, {F1}, 2048
v_add_u32 {v(PO)}, {F1}, v7
v_bfe_u32 v7, v1, 4, 1
v_lshl_add_u32 v8, v7, 1, v9
v_add_u32 v7, 4, v7
v_cmp_gt_u32 vcc, 2, v9
+v_cndmask_b32 v7, v7, v8, vcc
v_bfe_u32 v8, v1, 2, 2
v_lshl_add_u32 v7, v7, 2, v8
v_lshlrev_b32 {v(vBP)}, 2, v7
v_cmp_eq_u32 vcc, 3, v9
+v_cndmask_b32_e64 {v(vK3)}, 0, -1, vcc
s_lshl_b32 {F0}, {s(sCB)}, 13
s_add_u32 {F0}, {F0}, {WS_KV}
v_lshl_add_u32 {v(vKL)}, v1, 4, {F0}""")
        f(f"""s_lshl_b32 {F0}, {s(sRB)}, 2
s_add_u32 {F0}, {F0}, {s(sW)}
s_mul_i32 {F1}, {F0}, 40960
s_add_u32 {F1}, {F1}, {WS_PQ}
v_add_u32 {v(vOL)}, {F1}, {v(vL16)}
s_lshl_b32 {F0}, {F0}, 10
s_add_u32 {F0}, {F0}, {WS_AF}
v_lshrrev_b32 v7, 3, v1
v_lshl_add_u32 {v(vOP)}, v7, 7, {F0}
s_lshl_b32 {F1}, {s(sCB)}, 7
s_add_u32 {F0}, {F0}, {F1}
v_mov_b32 v7, {F0}
v_cmp_eq_u32 vcc, 0, v1
+v_cndmask_b32 {v(vOF)}, v12, v7, vcc
s_lshr_b32 {F0}, {s(sCB)}, 1
s_mul_i32 {F0}, {F0}, 10240
v_add_u32 v7, {F0}, {v(vOL)}
s_and_b32 {F0}, {s(sCB)}, 1
s_lshl_b32 {F1}, {F0}, 12
v_add_u32 {v(vOS)}, {F1}, v7
s_lshl_b32 {F0}, {F0}, 10
s_add_u32 {F0}, {F0}, 8192
v_lshlrev_b32 v8, 3, v1
v_sub_u32 v7, v7, v8
v_add_u32 {v(vOS2)}, {F0}, v7
v_sub_u32 v81, {v(vOL)}, v8
v_mul_u32_u24 v8, 112, v1
v_add_u32 v9, {v(vOS)}, v8
v_mul_u32_u24 v8, 120, v1
v_add3_u32 v8, v8, {v(vOS2)}, 0
v_add_u32 v8, {(-32*128) & 0xffffffff:#x}, v8
v_cmp_gt_u32 vcc, 32, v1
+v_cndmask_b32 v8, v8, v9, vcc
v_cmp_gt_u32 vcc, 40, v1
+v_cndmask_b32 v55, v12, v8, vcc""")

        f(f"""s_lshr_b32 {F0}, s2, 3
s_lshl_b32 {F0}, {F0}, 2
s_add_u32 {F0}, {F0}, {s(sW)}
s_mul_i32 {F0}, {F0}, 50
v_add_u32 v7, {F0}, v1
v_lshlrev_b32 v37, 7, v7
v_add_u32 v37, 0x1000, v37
v_mul_u32_u24 v8, 6554, v7
v_lshrrev_b32 v8, 16, v8
v_mul_u32_u24 v8, 2560, v8
v_add_u32 v36, v37, v8""")
        pf = [mk(f"buffer_load_dword v38, v36, {s(SW,4)}, 0 offen"), mk(f"buffer_load_dword v97, v37, {s(SC,4)}, 0 offen")]
        qch = [self.dma_w(CH[c], WQ, SW, sAW + c, f"q{c}") for c in range(5)]
        n0 = self.opt.get("afill0", len(F))
        pt = [mk(f"buffer_load_dword v55, v55, {s(SWS,4)}, 0 offen nt")] if self.opt.get("pretouch", 0) else []
        apf = self.opt.get("apf", 0)
        if apf:
            self.mainloop(S, "A", [], F[:n0], F[n0:], pt, qch[0], EPSQ, pf)
        else:
            self.mainloop(S, "A", [], F[:n0], F[n0:], pf + pt, [], EPSQ)
            qch[1] = qch[0] + qch[1]
        self.stamp(S, 4)
        self.tr(S, 1)
        S("v_mov_b32 v12, v54\nv_mov_b32 v13, v54\nv_mov_b32 v14, v54\nv_mov_b32 v15, v54\nds_write_b128 v35, v[12:15] offset:10240")
        S_main = S
        S = Stream()
        FRG = 108
        self.phi_pairs(S, [(ACC + (n*2 + (k >> 1))*4 + 2*(k & 1), FRG + 4*n + k) for n in range(5) for k in range(4)], EPSQ, CPH)
        for n in range(5):
            S(f"ds_write_b128 {v(vXW)}, {v(FRG+4*n,4)} offset:{1024*n}")
        for n in range(5, 10):
            for k in range(4):
                c = ACC + (n*2 + (k >> 1))*4 + 2*(k & 1)
                S(f"v_cvt_pk_bf16_f32 {v(FRG+4*n+k)}, {v(c)}, {v(c+1)}")
            S(f"ds_write_b128 {v(vXW)}, {v(FRG+4*n,4)} offset:{1024*n}")
        S_main.add(interleave(S.items, (qch[1] + qch[2], 4 if apf else 100, len(S.items) - 1)))
        S = S_main
        self.tr(S, 1)
        S("@waittag q0\n@waitlgkm0\ns_barrier")
        self.tr(S, 1)
        DS, DO, D2 = 144, 152, 160
        for r in (148, 156, 164, 170, 174, 142):
            S(f"v_mov_b32 {v(r)}, {s(sNON)}")
        G = lambda ks, x: a(AW + 24 * (ks & 1) + 4 * x, 4)
        def grd(ks):
            return [I(f"ds_read_b128 {G(ks,x)}, {v(r)} offset:{ks*XS}") for x, r in enumerate((PKS, V0, PKO, V1O, PKX, V1X))]
        S.add(grd(0))
        S.add(grd(1))
        for ks in range(4):
            z = lambda d: "0" if ks == 0 else v(d, 4)
            S(f"""{MF} {v(DS,4)}, {G(ks,0)}, {G(ks,1)}, {z(DS)}
{MF} {v(DO,4)}, {G(ks,2)}, {G(ks,1)}, {z(DO)}
{MF} {v(D2,4)}, {G(ks,0)}, {G(ks,3)}, {z(D2)}
{MF} {v(D2,4)}, {G(ks,4)}, {G(ks,5)}, {v(D2,4)}""")
            if ks < 2:
                S.add(grd(ks + 2))
            S.add((qch[3] + qch[4])[(10 * ks) // 4:(10 * ks + 10) // 4])
        QA = ACC
        def qreads(u):
            c, hf, kk = u >> 2, (u >> 1) & 1, u & 1
            L = []
            for n in range(5):
                L += self.tr_frag(208 + 20 * (u & 1) + 4 * n, CH[c] + kk * 10240, 5 * hf + n)
            return L
        self.tr(S, 1)
        S.add(qreads(0))
        for d, ad, t in ((DS, PS, 168), (DO, PO, 172), (D2, P2, 140)):
            S(f"""v_mov_b32 {v(t)}, {v(d)}
v_mov_b32 {v(t+1)}, {v(d+1)}
buffer_store_dwordx4 {v(d+2,4)}, {v(ad)}, {s(SWS,4)}, 0 offen offset:1024 sc1
buffer_store_dwordx4 {v(t,4)}, {v(ad)}, {s(SWS,4)}, 0 offen sc1""")
        S(f"v_and_b32 {v(vRX)}, {s(sNON)}, {v(vRX)}")
        self.stamp(S, 5)
        RB = 108
        KK = 108
        T1 = 140
        woch = [self.dma_w(CH[c], WO, SC, sWO + c, f"wo{c}") for c in range(5)]
        wofix = [mk(f"v_add_u32 {v(WO+i)}, {v(WO+i)}, {v(UQ + [3, 3, 4, 5, 5][i])}") for i in range(5)]
        def rloads():
            return [mk(f"s_mov_b32 {s(sT1)}, {6144*x}\nbuffer_load_dwordx3 {v(RB+4*x,3)}, {v(vRL)}, {s(SWS,4)}, {s(sT1)} offen sc1") for x in range(8)]
        def rcheck():
            t = f"v_xor_b32 v14, {v(RB+2)}, {v(vRX)}\n"
            for x in range(1, 8):
                t += f"v_bitop3_b32 v14, v14, {v(RB+4*x+2)}, {v(vRX)} bitop3:0xf6\n"
            return t + "v_cmp_ne_u32 vcc, 0, v14"
        def kloads():
            return [mk(f"buffer_load_dwordx4 {v(KK+4*x,4)}, {[v(vKL), 'v15'][x >> 2]}, {s(SWS,4)}, 0 offen offset:{1024*(x & 3)} sc1") for x in range(8)]
        def kcheck():
            t = f"v_xor_b32 v14, {s(sNON)}, {v(KK+3)}\n"
            for x in range(1, 8):
                t += f"v_bitop3_b32 v14, v14, {v(KK+4*x+3)}, {s(sNON)} bitop3:0xf6\n"
            return t + "v_cmp_ne_u32 vcc, 0, v14"
        def retry(loads, check):
            lp, done = self.lab("rp"), self.lab("rd")
            S(check)
            S(f"s_cbranch_vccz {done}\ns_mov_b32 {s(sCNT)}, 0x40000\n{lp}:", tag="opaque")
            for x in loads:
                for y in x:
                    y.tag = "opaque"
            S.add(loads)
            S("s_waitcnt vmcnt(0)\n" + check + f"""
s_cbranch_vccz {done}
s_sub_u32 {s(sCNT)}, {s(sCNT)}, 1
s_cbranch_scc0 {lp}
{done}:""", tag="opaque")
        UR = self.opt.get("ur", 9)
        UC = self.opt.get("uc", 14)
        for u in range(20):
            c, hf, kk = u >> 2, (u >> 1) & 1, u & 1
            st = c + 5 * hf
            ex = []
            if u in (0, 3, 7, 11, 14, 15, 19):
                self.tr(S, 1)
            if (u & 3) == 3:
                S(f"@waittag q{c+1}\n@waitlgkm0\ns_barrier")
                ex = (wofix if c == 4 else []) + woch[c][:3]
            elif (u & 3) == 0 and u:
                ex = woch[c - 1][3:]
            if u == 1:
                ex = [self.xi_load(12)]
            if u == UR:
                ex = rloads() + ex
            if u == UC:
                retry(rloads(), rcheck())
                for x in range(1, 8):
                    ex.append(mk(f"v_pk_add_f32 {v(RB,2)}, {v(RB,2)}, {v(RB+4*x,2)}"))
                ex += groups(f"""v_permlane32_swap_b32 {v(RB)}, {v(RB+1)}
v_add_f32 {v(RB)}, {v(RB)}, {v(RB+1)}
ds_bpermute_b32 {v(RB+4)}, {v(vBP)}, {v(RB)}
ds_bpermute_b32 {v(RB+5)}, {v(vBP)}, {v(RB)} offset:128""")
            if u == UC + 1:
                ex = groups(f"""v_cvt_pk_bf16_f32 {v(RB+4)}, {v(RB+4)}, {v(RB+5)}
v_bfi_b32 {v(RB+4)}, {v(vK3)}, {v(148)}, {v(RB+4)}
buffer_store_dword {v(RB+4)}, {v(vKF)}, {s(SWS,4)}, 0 offen sc1""") + ex
            if u == UC + 2:
                ex = ex + [self.xi_eval(12)]
            mf = []
            for n in range(5):
                for i in range(2):
                    d = QA + (n * 2 + i) * 4
                    cin = v(EPSQ, 4) if u == 0 else v(d, 4)
                    mf.append(I(f"{MF} {v(d,4)}, {a(208 + 20*(u & 1) + 4*n, 4)}, {a(AX + ((2*st+kk)*2+i)*4, 4)}, {cin}"))
            S.add(interleave(mf, (qreads(u + 1) if u < 19 else [], 0, 7), (ex, 1, 9)))
        S.add(woch[4][3:])
        self.stamp(S, 6)
        PQR = 150
        S_main = S
        S = Stream()
        self.phi_pairs(S, [(QA + (n*2 + i)*4 + 2*k, PQR + 10*i + 2*n + k) for i in range(2) for n in range(5) for k in range(2)], EPSQ, CPH)
        S_main(f"v_add_u32 v15, 4096, {v(vKL)}")
        p0 = self.opt.get("kpos", 60)
        S_main.add(interleave(S.items, (kloads(), p0, p0 + 30)))
        S = S_main
        retry(kloads(), kcheck())
        self.stamp(S, 7)
        for m in range(2):
            for x in range(4):
                S(f"v_mov_b32 {v(T1+4*m+x)}, {v(KK + 16*m + 8*(x >> 1) + 4*(x & 1) + 2)}")
        for h in range(4):
            S(f"v_mov_b32 {v(KK+8*h+2)}, {v(KK+8*h+4)}\nv_mov_b32 {v(KK+8*h+3)}, {v(KK+8*h+5)}")
        DT, OF = ACC, 82
        for i in range(2):
            for m in range(2):
                d = DT + 32 * i + 16 * m
                w0 = PQR + 10 * i + 4 * m
                S(f"""{MF} {v(d,4)}, {v(KK+16*m,4)}, {v(w0,4)}, 0
{MF} {v(d+4,4)}, {v(T1+4*m,4)}, {v(w0,4)}, {v(EPSD,4)}
{MF} {v(d+8,4)}, {v(KK+16*m+8,4)}, {v(w0+2,4)}, 0
{MF} {v(d+12,4)}, {v(T1+4*m,4)}, {v(w0+2,4)}, {v(EPSD,4)}""")
        for i in range(2):
            for m in range(2):
                d = DT + 32 * i + 16 * m
                S(f"v_rcp_f32 {v(d+5)}, {v(d+5)}\nv_rcp_f32 {v(d+15)}, {v(d+15)}")
            for m in range(2):
                d = DT + 32 * i + 16 * m
                S(f"""v_pk_mul_f32 {v(d,2)}, {v(d,2)}, {v(d+4,2)} op_sel:[0,1] op_sel_hi:[1,1]
v_pk_mul_f32 {v(d+8,2)}, {v(d+8,2)}, {v(d+14,2)} op_sel:[0,1] op_sel_hi:[1,1]
v_pk_mul_f32 {v(d+2,2)}, {v(d+2,2)}, {v(d+4,2)} op_sel:[0,1] op_sel_hi:[1,1]
v_pk_mul_f32 {v(d+10,2)}, {v(d+10,2)}, {v(d+14,2)} op_sel:[0,1] op_sel_hi:[1,1]
v_mul_f32 {v(d+4)}, {v(d+4)}, {v(d+5)}
v_mul_f32 {v(d+14)}, {v(d+14)}, {v(d+15)}""")
            for e in range(5):
                for m in range(2):
                    d = DT + 32 * i + 16 * m
                    ra, rb = (d + e, d + 8 + e) if e < 4 else (d + 4, d + 14)
                    S(f"v_cvt_pk_bf16_f32 {v(OF + 10*i + 2*e + m)}, {v(ra)}, {v(rb)}")
        t = ""
        for i in range(2):
            for fq in range(2):
                t += f"buffer_store_dwordx4 {v(OF+10*i+4*fq,4)}, {v(vOS)}, {s(SWS,4)}, 0 offen offset:{1024*(2*fq+i)}@M\n"
            t += f"buffer_store_dwordx2 {v(OF+10*i+8,2)}, {v(vOS2)}, {s(SWS,4)}, 0 offen offset:{512*i}@M\n"
        self.two_way(S, t, "ost")
        S(f"v_mov_b32 v4, {s(sNON)}")
        S("@waittag ost wo4")
        self.flag_store(S, vOF)
        S("s_barrier")
        self.stamp(S, 8)
        AC2, WF = 216, 160
        def woreads(f):
            H, e = f // 5, f % 5
            c, rbk, hf = (H, e & 1, e >> 1) if e < 4 else (4, H & 1, H >> 1)
            L = []
            for n in range(5):
                L += self.tr_frag(WF + 20 * (f & 1) + 4 * n, CH[c] + rbk * 10240, 5 * hf + n)
            return L
        S.add(woreads(0))
        self.out_addrs(S, "A", 112 * K, 48)
        self.poll_flags(S, vOP, 1, 4)
        self.stamp(S, 9)
        def oload(x):
            pre = f"s_mov_b32 {s(sT1)}, {4096*(x >> 2)}\n" if (x & 3) == 0 else ""
            if x % 10 >= 8:
                o = 1024 * ((x & 3) & 2) + 512 * (x & 1)
                return mk(pre + f"""buffer_load_dwordx2 {a(4*x,2)}, v81, {s(SWS,4)}, {s(sT1)} offen offset:{o}{self.lmod}
buffer_load_dwordx2 {a(4*x+2,2)}, v81, {s(SWS,4)}, {s(sT1)} offen offset:{o+1024}{self.lmod}""")
            return mk(pre + f"buffer_load_dwordx4 {a(4*x,4)}, {v(vOL)}, {s(SWS,4)}, {s(sT1)} offen offset:{1024*(x & 3)}{self.lmod}")
        DEPTH = self.opt.get("odepth", 5)
        for x in range(2 * DEPTH):
            S.add(oload(x))
        for f_ in range(20):
            mf = []
            for n in range(5):
                for i in range(2):
                    c = AC2 + (n * 2 + i) * 4
                    mf.append(I(f"{MF} {v(c,4)}, {a(WF + 20*(f_ & 1) + 4*n, 4)}, {a((f_*2+i)*4, 4)}, {'0' if f_ == 0 else v(c,4)}"))
            ld = [oload(2 * (f_ + DEPTH) + i) for i in range(2)] if f_ + DEPTH < 20 else []
            S.add(interleave(mf, (woreads(f_ + 1) if f_ < 19 else [], 0, 7), (ld, 3, 9)))
        self.stamp(S, 10)
        self.store_out(S, AC2, 48, 176)
        self.stamp(S, 11)
        self.dump_stamps(S)
        S("s_endpgm")
        return S


    def build(self):
        P = Stream()
        self.prologue(P)
        A = self.side_A()
        B = self.side_B()
        out = []
        tot = 0
        np_ = len(P.items)
        SA = Stream(); SA.items = P.items + A.items
        ia, na = finalize(SA)
        SB = Stream(); SB.items = P.items + B.items
        ib, nb = finalize(SB)
        k = next(i for i, x in enumerate(ib) if x.text == "L_sideB:")
        ka = next(i for i, x in enumerate(ia) if x.text.startswith("s_cbranch_scc1 L_sideB"))
        assert [x.text for x in ia[:ka + 1]] == [x.text for x in ib[:k]], "prologue mismatch"
        body = ia + ib[k:]
        hdr = open("concat_heads__linear_attn_block__ssm_conv_s5__prompt.s.ref").read().split("\n")
        hdr = [l for l in hdr if l.startswith(";") and "@launch" not in l]
        txt = "\n".join(hdr) + "\n; @launch grid=(256,1,1) block=(256,1,1) lds=163840\n"
        txt += f""".amdgcn_target "amdgcn-amd-amdhsa--gfx950"
.text
.globl {KN}
.p2align 8
.type {KN},@function
{KN}:
"""
        for x in body:
            txt += (x.text if x.kind == "label" else "    " + x.text) + "\n"
        txt += f"""L_end:
    s_endpgm
.section .rodata,"a"
.p2align 6
.amdhsa_kernel {KN}
  .amdhsa_next_free_vgpr 512
  .amdhsa_next_free_sgpr 102
  .amdhsa_accum_offset 256
  .amdhsa_group_segment_fixed_size 0
  .amdhsa_kernarg_size 120
  .amdhsa_user_sgpr_count 2
  .amdhsa_user_sgpr_kernarg_segment_ptr 1
  .amdhsa_system_sgpr_workgroup_id_x 1
.end_amdhsa_kernel
"""
        print(f"instructions: A {len(ia)} (nops {na}), B {len(ib)} (nops {nb})", file=sys.stderr)
        return txt


if __name__ == "__main__":
    import argparse
    ap = argparse.ArgumentParser()
    ap.add_argument("out")
    ap.add_argument("--ts", action="store_true")
    ap.add_argument("-o", action="append", default=[])
    ar = ap.parse_args()
    opt = {}
    for o in ar.o:
        k_, _, v_ = o.partition("=")
        opt[k_] = int(v_) if v_ else 1
    open(ar.out, "w").write(Gen(ar.ts, opt).build())
```

```python
import re

REG_RE = re.compile(r"^(-?)(?:abs\()?([vas])(\d+)\)?$")
RNG_RE = re.compile(r"^(-?)([vas])\[(\d+):(\d+)\]$")
TRANS = ("v_exp_f32", "v_log_f32", "v_rcp_f32", "v_rsq_f32", "v_sqrt_f32", "v_sin_f32", "v_cos_f32")


def regs_of(tok):
    tok = tok.strip()
    m = REG_RE.match(tok)
    if m:
        return [(m.group(2), int(m.group(3)))]
    m = RNG_RE.match(tok)
    if m:
        return [(m.group(2), i) for i in range(int(m.group(3)), int(m.group(4)) + 1)]
    if tok == "vcc":
        return [("s", "vcc")]
    if tok == "exec":
        return [("s", "exec")]
    if tok == "m0":
        return [("s", "m0")]
    return []


class I:
    def __init__(self, text, tag=None):
        self.text = text.strip()
        self.tag = tag
        self.kind = None
        self.defs = []
        self.uses = []
        self.srcc = []
        self.store_data = []
        self.parse()

    def parse(self):
        t = self.text
        if t.startswith("@need"):
            self.kind = "need"
            self.uses = [r for o in t.split()[1:] for r in regs_of(o)]
            return
        if t.startswith("@"):
            self.kind = "pseudo"
            return
        if t.startswith(";") or t == "":
            self.kind = "comment"
            return
        if t.endswith(":"):
            self.kind = "label"
            return
        t = t.split(";")[0].strip()
        sp = t.split(None, 1)
        op = sp[0]
        self.op = op
        rest = sp[1] if len(sp) > 1 else ""
        rest_nomod = re.sub(r"\b(op_sel|op_sel_hi|neg_lo|neg_hi|bitop3):(\[[^\]]*\]|\S+)", "", rest)
        ops = []
        for o in rest_nomod.split(","):
            o = o.strip()
            if o:
                ops.append(o.split()[0])
        R = [regs_of(o) for o in ops]
        flat = lambda L: [x for l in L for x in l]
        if op.startswith("v_mfma"):
            self.kind = "mfma"
            self.defs = R[0]
            self.uses = flat(R[1:])
            self.srcab = flat(R[1:3])
            self.srcc = R[3]
        elif op.startswith("ds_read") or op.startswith("ds_bpermute"):
            self.kind = "dsr"
            self.defs = R[0]
            self.uses = flat(R[1:])
        elif op.startswith("ds_write"):
            self.kind = "dsw"
            self.uses = flat(R)
        elif op.startswith("buffer_load"):
            if re.search(r"\blds\b", rest):
                self.kind = "dma"
                self.uses = flat(R) + [("s", "m0")]
            else:
                self.kind = "vld"
                self.defs = R[0]
                self.uses = flat(R[1:])
        elif op.startswith("buffer_store"):
            self.kind = "vst"
            self.uses = flat(R)
            if "x3" in op or "x4" in op:
                self.store_data = R[0]
        elif op.startswith("s_load") or op in ("s_memtime", "s_memrealtime"):
            self.kind = "smem"
            self.defs = R[0]
            self.uses = flat(R[1:])
        elif op in ("s_waitcnt",):
            self.kind = "wait"
        elif op in ("s_barrier",):
            self.kind = "barrier"
        elif op == "s_nop":
            self.kind = "nop"
            self.n = int(ops[0]) + 1
        elif op.startswith("s_cbranch") or op in ("s_branch", "s_endpgm"):
            self.kind = "branch"
            if "vcc" in op:
                self.uses = [("s", "vcc")]
        elif op.startswith("s_"):
            self.kind = "salu"
            if op.startswith("s_cmp") or op in ("s_setprio", "s_sleep"):
                self.uses = flat(R)
            else:
                self.defs = R[0]
                self.uses = flat(R[1:])
                if op in ("s_addk_i32", "s_mulk_i32"):
                    self.uses += R[0]
                if "saveexec" in op:
                    self.defs = R[0] + [("s", "exec")]
        elif op.startswith("v_"):
            self.kind = "valu"
            self.defs = R[0]
            self.uses = flat(R[1:])
            if op.startswith("v_fmac") or op.startswith("v_writelane"):
                self.uses += R[0]
            if "permlane" in op:
                self.defs = R[0] + R[1]
                self.uses = R[0] + R[1]
            self.trans = op.split("_e")[0] in TRANS or op in TRANS
            self.dpp = "row_" in rest or "quad_perm" in rest or "dpp" in op
        else:
            raise ValueError("unknown instruction: " + self.text)


class Stream:
    def __init__(self):
        self.items = []

    def __call__(self, text, tag=None):
        for l in text.split("\n"):
            if l.strip():
                self.items.append(I(l, tag))

    def add(self, items):
        for x in items:
            if isinstance(x, I):
                self.items.append(x)
            elif isinstance(x, (list, tuple)):
                self.add(x)
            else:
                self(x)


def mk(text, tag=None):
    return [I(l, tag) for l in text.split("\n") if l.strip()]


def insert_waits(items):
    out = []
    vm = []
    lg = []
    stats = {"waits": 0}

    def emit(nv, nl):
        parts = []
        if nv is not None:
            parts.append(f"vmcnt({min(nv, 63)})")
        if nl is not None:
            parts.append(f"lgkmcnt({min(nl, 15)})")
        if parts:
            if out and out[-1].kind == "wait" and getattr(out[-1], "gen", False):
                p = out.pop()
                nv2, nl2 = p.nv, p.nl
                nv = nv if nv2 is None else (nv2 if nv is None else min(nv, nv2))
                nl = nl if nl2 is None else (nl2 if nl is None else min(nl, nl2))
                parts = []
                if nv is not None:
                    parts.append(f"vmcnt({min(nv, 63)})")
                if nl is not None:
                    parts.append(f"lgkmcnt({min(nl, 15)})")
            w = I("s_waitcnt " + " ".join(parts))
            w.gen = True
            w.nv, w.nl = nv, nl
            out.append(w)
            stats["waits"] += 1

    for it in items:
        if it.kind == "pseudo":
            p = it.text.split()
            if p[0] == "@waittag":
                idx = [i for i, (d, t) in enumerate(vm) if t in p[1:]]
                if idx:
                    n = len(vm) - 1 - max(idx)
                    if n < 63:
                        emit(n, None)
                    del vm[: max(idx) + 1]
            elif p[0] == "@waitvm0":
                if vm:
                    emit(0, None)
                vm.clear()
            elif p[0] == "@waitlgkm0":
                if lg:
                    emit(None, 0)
                lg.clear()
            elif p[0] == "@drained":
                vm.clear()
            else:
                raise ValueError(it.text)
            continue
        if it.kind in ("comment", "label") or it.tag == "opaque":
            out.append(it)
            continue
        if it.kind == "wait":
            m = re.search(r"vmcnt\((\d+)\)", it.text)
            if m:
                n = int(m.group(1))
                if len(vm) > n:
                    del vm[: len(vm) - n]
            m = re.search(r"lgkmcnt\((\d+)\)", it.text)
            if m:
                n = int(m.group(1))
                if n == 0:
                    lg.clear()
                elif not any(s for _, s in lg) and len(lg) > n:
                    del lg[: len(lg) - n]
            out.append(it)
            continue
        touch = set(it.uses) | set(it.defs)
        nv = nl = None
        idx = [i for i, (d, t) in enumerate(vm) if d & touch]
        if idx:
            k = max(idx)
            n = len(vm) - 1 - k
            if n < 63:
                nv = n
            del vm[: k + 1]
        idx = [i for i, (d, s) in enumerate(lg) if d & touch]
        if idx:
            k = max(idx)
            if any(s for _, s in lg):
                nl = 0
                lg.clear()
            else:
                nl = len(lg) - 1 - k
                del lg[: k + 1]
        emit(nv, nl)
        if it.kind == "need":
            continue
        out.append(it)
        if it.kind in ("vld", "vst", "dma"):
            vm.append((set(it.defs), it.tag))
        elif it.kind in ("dsr", "dsw"):
            lg.append((set(it.defs), False))
        elif it.kind == "smem":
            lg.append((set(it.defs), True))
    return out


def isv(r):
    return r[0] in ("v", "a")


def need_states(p, c):
    n = 0
    pd, cu, cd = set(p.defs), set(c.uses), set(c.defs)
    if p.kind == "valu":
        pv = {r for r in pd if isv(r)}
        ps = {r for r in pd if not isv(r)}
        if c.kind == "mfma" and pv & cu:
            n = max(n, 2)
        if c.kind == "valu":
            if p.trans and pv & cu:
                n = max(n, 1)
            if ("permlane" in c.op or c.dpp) and pv & cu:
                n = max(n, 2)
            if c.op.startswith(("v_readlane", "v_readfirstlane")) and pv & cu:
                n = max(n, 1)
            if ps & cu:
                n = max(n, 4 if c.op.startswith(("v_readlane", "v_writelane")) else 2)
        if c.kind in ("vld", "vst", "dma") and ps & cu:
            n = max(n, 5)
        if c.kind in ("salu", "branch", "smem") and ps & cu:
            n = max(n, 4)
    elif p.kind == "mfma":
        if c.kind == "mfma":
            if pd & set(c.srcab):
                n = max(n, 8)
            if pd & set(c.srcc) and p.defs != c.srcc:
                n = max(n, 6)
            if pd & cd and not (pd & set(c.srcc)):
                n = max(n, 8)
        elif c.kind in ("valu", "vld", "vst", "dma", "dsr", "dsw"):
            if pd & (cu | cd):
                n = max(n, 8)
            if c.kind in ("valu", "vld", "dsr") and set(p.srcc) & cd:
                n = max(n, 3)
    elif p.kind == "salu":
        if ("s", "m0") in pd and c.kind == "dma":
            n = max(n, 1)
    elif p.kind == "vst":
        if set(p.store_data) & cd:
            n = max(n, 2)
    return n


def insert_nops(items):
    out = []
    added = 0
    for it in items:
        if it.kind in ("comment",):
            out.append(it)
            continue
        if it.kind == "label":
            out.append(it)
            continue
        need = 0
        dist = 0
        for p in reversed(out):
            if p.kind in ("comment", "label"):
                continue
            if dist >= 9:
                break
            r = need_states(p, it)
            if r > dist:
                need = max(need, r - dist)
            dist += p.n if p.kind == "nop" else 1
        if need:
            out.append(I(f"s_nop {need - 1}"))
            added += need
        out.append(it)
    return out, added


def finalize(stream):
    items = insert_waits(stream.items)
    items, added = insert_nops(items)
    return items, added


def interleave(backbone, *filler_plans):
    slots = [[] for _ in backbone]
    for items, start, end in filler_plans:
        n = len(items)
        if n == 0:
            continue
        end = min(end, len(backbone) - 1)
        span = end - start + 1
        for i, x in enumerate(items):
            slots[start + (i * span) // n].append(x)
    out = []
    for b, s in zip(backbone, slots):
        out.append(b)
        out.extend(s)
    return out


def groups(text):
    out = []
    for l in text.split("\n"):
        l = l.strip()
        if not l:
            continue
        if l.startswith("+"):
            out[-1].append(I(l[1:]))
        else:
            out.append([I(l)])
    return out


def place(backbone, plan):
    out = []
    for i, b in enumerate(backbone):
        out.append(b)
        out.extend(plan.get(i, []))
    return out


def kstep(mf, reads, mem, per_gap=1):
    plan = {}
    g = 0
    for i in range(0, len(reads), per_gap):
        plan.setdefault(g, []).extend(reads[i:i + per_gap])
        g += 1
    free = list(range(g, len(mf))) or [len(mf) - 1]
    n = len(mem)
    for i, x in enumerate(mem):
        plan.setdefault(free[(i * len(free)) // n] if n <= len(free) else min(len(mf) - 1, 1 + (i * (len(mf) - 1)) // n), []).append(x)
    return place(mf, plan)
```

```python
import sys, struct
from fw import *

KN = "concat_heads__linear_attn_block__ssm_conv_s5__prompt_kernel"
K = 1024

WS_E = 0x010000
WS_HF = 0x040000
WS_PF = 0x060000
WS_AF = 0x080000
WS_KV = 0x0A0000
WS_XI = 0x0C0000
WS_P = 0x100000
WS_PQ = 0x400000
WS_H = 0x800000
WS_TS = 0x1000000
OOB = 0x80000000

SLOT = 36 * K
NSLOT = 4
CH = [80 * K, 0, 20 * K, 40 * K, 60 * K, 100 * K, 120 * K, 140 * K, 80 * K, 0]
SCAN = 108 * K
TBUF = 120 * K
XCH = 112 * K
XS = 10496
KVL = 112 * K

SX, SW, SC, SWS, SO, SD = 36, 40, 44, 48, 52, 56
SP0, SP1, SP2, SP3 = 60, 64, 68, 72
sW, sRB, sCB, sNON, sT0, sT1, sCNT = 76, 77, 78, 79, 80, 81, 82
sA128 = 83
sAW = 88
sHX0, sHX1, sHW0, sHW1 = 93, 94, 95, 96
sMX, sMW = 97, 98
sETA, sXCD = 99, 100
sT2 = 101
sSAME = 34
sF0, sF1 = 3, 35
SE = SP0

XA, WA, WQ, WO = 16, 20, 25, 30
RX, RW = 98, 39
vL16, vNA, vNV = 45, 46, 47
vXI = 104
ACC = 176
AX, AW = 0, 160

LOG2E = 1.4426950408889634
def f2u(x):
    return "0x%08x" % struct.unpack("<I", struct.pack("<f", x))[0]

def v(b, n=1): return f"v{b}" if n == 1 else f"v[{b}:{b+n-1}]"
def a(b, n=1): return f"a{b}" if n == 1 else f"a[{b}:{b+n-1}]"
def s(b, n=1): return f"s{b}" if n == 1 else f"s[{b}:{b+n-1}]"
MF = "v_mfma_f32_16x16x32_bf16"


class Gen:
    def __init__(self, ts=False, opt=None):
        self.ts = ts
        self.opt = opt or {}
        self.nlab = 0
        self.trn = {}
        self.cur = None
        self.lmod = {0: '', 1: ' nt', 2: ' sc1'}[self.opt.get('lmod', 0)]
        xnt = self.opt.get("xnt", 0)
        self.xmod0 = " nt" if xnt == 1 else ""
        self.xmods = {"A": " nt" if xnt else "", "B": self.xmod0}
        self.wmod = " nt" if self.opt.get("wnt", 0) else ""

    def lab(self, b):
        self.nlab += 1
        return f"L_{b}_{self.nlab}"

    def stamp(self, S, k):
        if "pi" in self.opt:
            if k == self.opt["pi"]: S("s_memrealtime s[4:5]")
            if k == self.opt["pj"]: S("s_memrealtime s[6:7]")
        if self.ts and (not self.opt.get("trace") or k == 11):
            assert k < 12
            S(f"s_memtime s[{4+2*k}:{5+2*k}]")

    def tr(self, S, region):
        if self.ts and self.opt.get("trace") == region:
            k = self.trn.get(id(self.cur), 0)
            if k < 11:
                S(f"s_memtime s[{4+2*k}:{5+2*k}]")
            self.trn[id(self.cur)] = k + 1

    def dump_stamps(self, S):
        if "endprobe" in self.opt:
            m = " nt" if self.opt.get("epnt") else ""
            S(f"s_mul_i32 s3, s2, {4*256*128}\ns_add_u32 s3, s3, {self.opt['endprobe'] << 20}\nv_lshl_add_u32 v2, v0, 7, s3")
            for i in range(4):
                S(f"s_mov_b32 s3, {i*256*128}\nbuffer_load_dword v{4+i}, v2, {s(SWS,4)}, s3 offen{m}")
            S("s_waitcnt vmcnt(0)")
        if "pi" in self.opt:
            l1, l2 = self.lab("pr"), self.lab("pr")
            t0 = "s32" if self.opt["pi"] < 0 else "s4"
            S(f"""s_memrealtime s[8:9]
s_waitcnt lgkmcnt(0)
s_cmp_lg_u32 s2, {self.opt["pwg"]}
s_cbranch_scc1 {l2}
{"s_sub_u32 s10, 0, s32" if "startprobe" in self.opt else f"s_sub_u32 s10, s6, {t0}"}
s_mul_i32 s10, s10, {self.opt["pscale"]}
s_min_u32 s10, s10, 20000
{l1}:
s_memrealtime s[12:13]
s_waitcnt lgkmcnt(0)
s_sub_u32 s11, s12, s8
s_cmp_lt_u32 s11, s10
s_cbranch_scc1 {l1}
{l2}:""")
        if self.opt.get("protrace"):
            self.ts = True
            self.stamp(S, 11)
        if not self.ts:
            return
        S("s_memrealtime s[30:31]")
        S("s_waitcnt lgkmcnt(0)")
        S("v_mov_b32 v1, 0")
        for k in range(13):
            S(f"v_writelane_b32 v1, s{4+2*k}, {k}")
        S("v_writelane_b32 v1, s33, 13")
        S("v_writelane_b32 v1, s32, 14")
        S("v_writelane_b32 v1, s30, 15")
        S(f"s_lshl_b32 s3, s2, 10\ns_add_u32 s3, s3, {WS_TS}")
        S(f"v_lshl_add_u32 v2, v0, 2, s3")
        S(f"buffer_store_dword v1, v2, {s(SWS,4)}, 0 offen")

    def prologue(self, S):
        S("s_cmp_ge_u32 s2, 256\ns_cbranch_scc1 L_end")
        S("s_load_dwordx16 s[4:19], s[0:1], 0")
        S("s_load_dwordx8 s[20:27], s[0:1], 64")
        S("s_load_dwordx4 s[28:31], s[0:1], 96")
        S("s_load_dwordx2 s[32:33], s[0:1], 112")
        if self.ts or "pi" in self.opt:
            S("s_memrealtime s[34:35]")
        if self.ts:
            S(f"s_memtime s[{SP3}:{SP3+1}]")
        S(f"""v_lshrrev_b32 v2, 6, v0
v_and_b32 v1, 63, v0
v_readfirstlane_b32 {s(sW)}, v2
s_and_b32 {s(sXCD)}, s2, 7
s_lshr_b32 s3, s2, 3
s_lshr_b32 {s(sCB)}, s3, 2
s_and_b32 s3, s3, 3""")
        if self.opt.get("cpf", 1):
            S(f"""s_cmp_lg_u32 s3, {s(sW)}
s_cbranch_scc1 L_nopf
s_getpc_b64 s[{SP0}:{SP0+1}]
L_pc:
s_cmp_ge_u32 {s(sXCD)}, 4
s_cselect_b32 {s(sT0)}, L_sideB-L_pc, 0
s_sub_u32 {s(SP0+2)}, L_end-L_pc, {s(sT0)}
s_add_u32 {s(SP0)}, {s(SP0)}, {s(sT0)}
s_addc_u32 {s(SP0+1)}, {s(SP0+1)}, 0
s_mov_b32 {s(SP0+3)}, 0x20000
v_lshlrev_b32 v3, 7, v0
buffer_load_dword v255, v3, {s(SP0,4)}, 0 offen
L_nopf:""", tag="opaque")
        S(f"""s_and_b32 {s(sT0)}, {s(sXCD)}, 3
s_lshl_b32 {s(sRB)}, {s(sT0)}, 2
s_add_u32 {s(sRB)}, {s(sRB)}, s3
s_mul_i32 s3, s3, 20
s_mul_i32 {s(sT0)}, {s(sT0)}, 5
s_add_u32 s3, s3, {s(sT0)}
s_mul_i32 {s(sT0)}, {s(sCB)}, 10
s_add_u32 s3, s3, {s(sT0)}
s_lshr_b32 s3, s3, 3""")
        if self.opt.get("norot"):
            S("s_mov_b32 s3, 0")
        rot = self.opt.get("rot", 2)
        if rot == 1:
            S(f"s_add_u32 s3, {s(sRB)}, {s(sCB)}\ns_and_b32 s3, s3, 3\ns_mul_i32 s3, s3, 5\ns_lshr_b32 s3, s3, 1")
        if rot == 2:
            S(f"s_and_b32 s3, {s(sRB)}, 3\ns_add_u32 s3, s3, {s(sCB)}\ns_mul_i32 {s(sT0)}, s3, 52\ns_lshr_b32 {s(sT0)}, {s(sT0)}, 8\ns_mul_i32 {s(sT0)}, {s(sT0)}, 5\ns_sub_u32 s3, s3, {s(sT0)}\ns_lshl_b32 s3, s3, 1")
        if rot == 3:
            S(f"s_add_u32 s3, {s(sRB)}, {s(sCB)}\ns_and_b32 s3, s3, 1\ns_mul_i32 s3, s3, 5")
        S(f"""s_sub_u32 {s(sT0)}, s3, 10
s_cselect_b32 s3, s3, {s(sT0)}
s_lshl_b32 {s(sT0)}, s3, 7
s_lshl_b32 {s(sMX)}, {s(sW)}, 12
s_lshl_b32 {s(sT1)}, {s(sRB)}, 2
s_add_u32 {s(sT1)}, {s(sT1)}, {s(sW)}
s_mul_i32 {s(sT2)}, {s(sT1)}, {32*1280}""")
        S(f"""v_lshrrev_b32 v2, 3, v1
v_lshrrev_b32 v3, 4, v1
v_and_b32 v5, 7, v1
v_xor_b32 v5, v5, v3
v_lshlrev_b32 v5, 4, v5
s_movk_i32 {s(sA128+1)}, {8*1280-1024}
s_movk_i32 {s(sA128+2)}, {16*1280-2048}
s_movk_i32 {s(sA128+3)}, {24*1280-3072}
s_cmp_ge_u32 {s(sXCD)}, 4
s_cselect_b32 {s(sHX0)}, 1, 0
s_cselect_b32 {s(sA128+1)}, {16*1280-1024}, {s(sA128+1)}
s_cselect_b32 {s(sA128+2)}, {4*1280-2048}, {s(sA128+2)}
s_cselect_b32 {s(sA128+3)}, {20*1280-3072}, {s(sA128+3)}
v_and_b32 v7, 4, v2
v_mad_u32_u24 v7, v7, {s(sHX0)}, v2
v_mul_u32_u24 v7, 1280, v7
v_add3_u32 {v(XA)}, v7, v5, {s(sT2)}
v_xor_b32 v8, 64, {v(XA)}
v_add_u32 {v(XA+1)}, {s(sA128+1)}, v8
v_add_u32 {v(XA+2)}, {s(sA128+2)}, {v(XA)}
v_add_u32 {v(XA+3)}, {s(sA128+3)}, v8
s_mov_b32 m0, {s(sMX)}
s_mov_b32 {s(SX+2)}, {2048*1280}
s_mov_b32 {s(SX+3)}, 0x20000
s_cselect_b32 {s(SX)}, s10, s4
s_cselect_b32 {s(SX+1)}, s11, s5""")
        if "startprobe" in self.opt:
            m = " nt" if self.opt["startprobe"] == 2 else ""
            S(f"""s_and_b32 s70, s2, 3
s_lshr_b32 s71, s2, 3
s_lshl_b32 s71, s71, 2
s_or_b32 s70, s70, s71
s_mul_i32 s70, s70, 20480
v_lshl_add_u32 v9, v0, 7, s70
v_mov_b32 v10, 0x80000000
v_cmp_gt_u32 vcc, 160, v0
v_cndmask_b32 v9, v10, v9, vcc
s_memrealtime s[68:69]
buffer_load_dword v9, v9, {s(SX,4)}, 0 offen{m}
s_waitcnt vmcnt(0)
s_barrier
s_memrealtime s[70:71]
s_waitcnt lgkmcnt(0)
s_sub_u32 s34, s68, s70
s_cmp_ge_u32 {s(sXCD)}, 4""")
        for i in range(4):
            S(f"buffer_load_dwordx4 {v(XA+i)}, {s(SX,4)}, {s(sT0)} offen offset:{1024*i}{self.xmod0} lds", tag="st0")
        S(f"s_mul_i32 {s(sMW)}, {s(sW)}, 5120")
        S(f"s_cbranch_scc1 L_sideB")

    def late_setup(self, S):
        S(f"""s_sub_u32 {s(sT1)}, s3, 5
s_cselect_b32 s3, s3, {s(sT1)}
s_cselect_b32 {s(sETA)}, 0, 1""")
        for c in range(5):
            S(f"""s_add_u32 {s(sT2)}, s3, {c}
s_sub_u32 {s(sT1)}, {s(sT2)}, 5
s_cselect_b32 {s(sT2)}, {s(sT2)}, {s(sT1)}
s_lshl_b32 {s(sA128+c)}, {s(sT2)}, 7""")
        S(f"""s_mul_i32 {s(sHX0)}, {s(sETA)}, 640
s_sub_u32 {s(sHX1)}, 640, {s(sHX0)}
v_and_b32 v4, 15, v1
v_lshlrev_b32 {v(vL16)}, 4, v1
v_lshrrev_b32 v6, 1, v4
v_xor_b32 v6, v6, v3
v_lshlrev_b32 v6, 4, v6
v_lshl_add_u32 v6, v4, 7, v6
v_add_u32 {v(RX)}, {s(sMX)}, v6
v_xor_b32 {v(RX+3)}, 64, {v(RX)}
v_add_u32 {v(RX+1)}, 0x10000, {v(RX)}
v_add_u32 {v(RX+4)}, 0x10000, {v(RX+3)}
s_lshl_b32 s3, s2, 8
v_or_b32 v7, s3, v0
v_mov_b32 v8, {OOB}
v_cmp_eq_u32 vcc, 0, v7
v_cndmask_b32_e64 {v(vNA)}, v8, 0, vcc""")

    def srd(self, S, d, p, n):
        S(f"s_mov_b32 {s(d)}, {s(p)}\ns_mov_b32 {s(d+1)}, {s(p+1)}\ns_mov_b32 {s(d+2)}, {n}\ns_mov_b32 {s(d+3)}, 0x20000")

    def srd_biased(self, S, d, p, n):
        S(f"s_sub_u32 {s(d)}, {s(p)}, 4096\ns_subb_u32 {s(d+1)}, {s(p+1)}, 0\ns_mov_b32 {s(d+2)}, {n + 4096}\ns_mov_b32 {s(d+3)}, 0x20000")

    def common_srds(self, S):
        self.srd(S, SWS, 32, "0x10000000")
        self.srd(S, SO, 28, 2048 * 5120)
        self.srd(S, SD, 30, 256)
        if self.ts or "pi" in self.opt:
            S("s_mov_b32 s32, s34")
        if self.ts:
            S(f"s_mov_b32 s33, s{SP3}")
            S("s_memtime s[28:29]")

    def dma_stage(self, st, side):
        slot = (st % NSLOT) * SLOT
        tag = f"st{st}"
        hx = sHX0 if st < 5 else sHX1
        L = []
        for i in range(4):
            pre = f"s_add_u32 m0, {s(sMX)}, {slot}\ns_add_u32 {s(sT0)}, {s(sA128 + st % 5)}, {s(hx)}\n" if i == 0 else ""
            L.append(mk(pre + f"buffer_load_dwordx4 {v(XA+i)}, {s(SX,4)}, {s(sT0)} offen offset:{1024*i}{self.xmods[side]} lds", tag))
        so = sT0
        pre2 = ""
        if side == "A":
            so = sT1
            hw = sHW0 if st < 5 else sHW1
            pre2 = f"s_add_u32 {s(sT1)}, {s(sAW + st % 5)}, {s(hw)}\n"
        L += self.dma_w(slot + 16 * K, WA, SW, so, tag, pre2, self.wmod)
        return L

    def dma_w(self, ldsbase, areg, srd, so, tag, pre2="", extra=""):
        L = []
        for i in range(5):
            pre = ""
            if i == 0:
                pre = f"s_add_u32 m0, {s(sMW)}, {ldsbase}\n" + pre2
            if i == 4:
                pre = f"s_add_u32 m0, {s(sMW)}, {ldsbase + 4096}\n"
            L.append(mk(pre + f"buffer_load_dwordx4 {v(areg+i)}, {s(srd,4)}, {s(so)} offen offset:{1024*(i&3)}{extra} lds", tag))
        return L

    def reads(self, h, side):
        st, kk = h >> 1, h & 1
        slot = (st % NSLOT) * SLOT
        fs = h & 1
        L = []
        for i in range(2):
            off = slot + 2048 * i
            L.append(I(f"ds_read_b128 {a(AX + (h*2+i)*4, 4)}, {v(RX + 3*kk + (off >> 16))} offset:{off & 0xffff}"))
        for n in range(10):
            d = AW + 40 * fs + 4 * n
            if side == "B":
                off = slot + 16 * K + 2048 * n
                L.append(I(f"ds_read_b128 {a(d,4)}, {v(RW + 3*kk + (off >> 16))} offset:{off & 0xffff}"))
            else:
                L += self.tr_frag(d, slot + 16 * K + kk * 10240, n)
        return L

    def tr_frag(self, d, base, u, dst="a"):
        L = []
        for j in range(2):
            off = base + 256 * j + 1024 * (u >> 1)
            r = a(d + 2 * j, 2) if dst == "a" else v(d + 2 * j, 2)
            L.append(I(f"ds_read_b64_tr_b16 {r}, {v(RW + 3*(u & 1) + (off >> 16))} offset:{off & 0xffff}"))
        return L

    def mfmas(self, h, side, epsq=None):
        L = []
        for n in range(10):
            for i in range(2):
                c = ACC + (n * 2 + i) * 4
                cin = v(c, 4)
                if h == 0:
                    cin = v(epsq, 4) if (side == "A" and n < 5) else "0"
                L.append(I(f"{MF} {v(c,4)}, {a(AX + (h*2+i)*4, 4)}, {a(AW + 40*(h & 1) + 4*n, 4)}, {cin}"))
        return L

    def nonce_make(self):
        return mk(f"""v_add_u32 {v(vNV)}, 0x9E3779B1, {v(vNV)}
v_cmp_eq_u32 vcc, 0, {v(vNV)}
v_cndmask_b32_e64 {v(vNV)}, {v(vNV)}, 1, vcc
buffer_store_dword {v(vNV)}, {v(vNA)}, {s(SWS,4)}, 0 offen sc1
buffer_store_dword {v(vNV)}, {v(vNA)}, {s(SD,4)}, 0 offen sc1""")

    def nonce_get(self, S):
        done = self.lab("nonce")
        lp = self.lab("nlp")
        S(f"v_readfirstlane_b32 {s(sNON)}, {v(vNV)}")
        S(f"""s_cmp_lg_u32 {s(sNON)}, 0
s_cbranch_scc1 {done}
s_mov_b32 {s(sCNT)}, 0x40000
{lp}:
buffer_load_dword {v(vNV)}, off, {s(SD,4)}, 0 sc1
s_waitcnt vmcnt(0)
v_readfirstlane_b32 {s(sNON)}, {v(vNV)}
s_cmp_lg_u32 {s(sNON)}, 0
s_cbranch_scc1 {done}
s_sub_u32 {s(sCNT)}, {s(sCNT)}, 1
s_cbranch_scc0 {lp}
{done}:""", tag="opaque")

    def mainloop(self, S, side, early, fill0, fill1, pf, tail, epsq=None, pf0=[], mpf=[]):
        S(f"buffer_load_dword {v(vNV)}, {v(vNA)}, {s(SWS,4)}, 0 offen sc1")
        S.add(early)
        d1 = self.dma_stage(1, side)
        S.add(d1[:2])
        S(f"v_add_u32 {v(RX+2)}, 0x20000, {v(RX)}\nv_add_u32 {v(RX+5)}, 0x20000, {v(RX+3)}")
        S(f"v_add_u32 {v(RW+2)}, 0x20000, {v(RW)}\nv_add_u32 {v(RW+5)}, 0x20000, {v(RW+3)}")
        S(f"""s_lshr_b32 s3, {s(sXCD)}, 2
s_lshl_b32 s3, s3, 4
s_add_u32 s3, s3, {s(sRB)}
s_lshl_b32 s3, s3, 10
s_add_u32 s3, s3, {WS_XI}
v_lshrrev_b32 v7, 3, v1
v_lshl_add_u32 {v(vXI+1)}, v7, 7, s3
s_lshl_b32 {s(sSAME)}, {s(sCB)}, 7
s_add_u32 s3, s3, {s(sSAME)}
v_mov_b32 v7, s3
v_mov_b32 v8, {OOB}
v_cmp_eq_u32 vcc, 0, v0
v_cndmask_b32 {v(vXI)}, v8, v7, vcc
s_getreg_b32 s3, hwreg(HW_REG_XCC_ID, 0, 4)
v_mov_b32 {v(vXI+3)}, s3""")
        n0 = self.opt.get("n0", 120)
        S.add(fill0[:n0])
        fill1 = fill0[n0:] + fill1
        S.add(d1[2:])
        S.add(pf0)
        self.stamp(S, 0)
        S("@waittag st0\ns_barrier")
        self.stamp(S, 1)
        S.add(self.reads(0, side))
        q = {h: [] for h in range(21)}
        q[0] = self.dma_stage(2, side)
        d = self.dma_stage(3, side)
        q[1] = [self.nonce_make()] + d[:5]
        q[2] = d[5:]
        for st in range(4, 10):
            d = self.dma_stage(st, side)
            q[2 * st - 5] += d[:5]
            q[2 * st - 4] += d[5:]
        q[self.opt.get("mpfh", 2)] += mpf
        q[12] += [mk(f"buffer_load_dword {v(vNV)}, off, {s(SD,4)}, 0 sc1")]
        q[15] += [mk(f"""v_mov_b32 {v(vXI+2)}, {s(sNON)}
buffer_store_dwordx2 {v(vXI+2,2)}, {v(vXI)}, {s(SWS,4)}, 0 offen sc1""")] + pf
        q[19] += tail
        f0, f1 = 0, self.opt.get("f1", 5)
        nf = len(fill1)
        for h in range(20):
            st = h >> 1
            if h & 1:
                if st + 1 < 10:
                    S(f"@waittag st{st+1}")
                if h == 19:
                    S("@waitlgkm0")
                S("s_barrier")
            if h == 15:
                self.nonce_get(S)
            if h >= 10:
                self.tr(S, 2)
            if h < 10:
                self.tr(S, 3)
            if h in (5, 11):
                self.stamp(S, 2 if h == 5 else 3)
            rd = self.reads(h + 1, side) if h < 19 else []
            fl = []
            if f0 <= h <= f1:
                lo = (h - f0) * nf // (f1 - f0 + 1)
                hi = (h - f0 + 1) * nf // (f1 - f0 + 1)
                fl = fill1[lo:hi]
            mf = self.mfmas(h, side, epsq)
            last = a(AW + 40 * (h & 1) + 36, 4)
            if side == "B":
                mf[0] = [I(f"@need {last}"), mf[0]]
            else:
                mf[0] = [I(f"@need {a(AW + 40 * (h & 1) + 8, 4)}"), mf[0]]
                mf[6] = [I(f"@need {a(AW + 40 * (h & 1) + 20, 4)}"), mf[6]]
                mf[12] = [I(f"@need {last}"), mf[12]]
            if self.opt.get("ml2", 0) and len(q[h]) <= 8 and not fl:
                if side == "A":
                    mf = self.mfmas(h, side, epsq)
                    mf[0] = [I(f"@need {last}"), mf[0]]
                S.add(kstep(mf, rd, q[h], 1 if side == "B" else 2))
            else:
                S.add(interleave(mf, (rd, 0, 11 if side == "B" else self.opt.get("ardend", 18)), (q[h], 1, 19), (fl, 2, 19)))

    def xi_load(self, d):
        return mk(f"buffer_load_dwordx2 {v(d,2)}, {v(vXI+1)}, {s(SWS,4)}, 0 offen sc1")

    def xi_eval(self, d):
        t = f"""v_cmp_ne_u64 vcc, {v(d,2)}, {v(vXI+2,2)}
s_cmp_eq_u64 vcc, 0
s_cselect_b32 {s(sSAME)}, 1, 0"""
        if self.opt.get("nosame"):
            t += f"\ns_mov_b32 {s(sSAME)}, 0"
        return mk(t)

    def two_way(self, S, text, tag=None):
        l1, l2 = self.lab("wt"), self.lab("j")
        S(f"s_cmp_eq_u32 {s(sSAME)}, 0\ns_cbranch_scc1 {l1}")
        S(text.replace("@M", ""), tag=tag)
        S(f"s_branch {l2}\n{l1}:")
        S(text.replace("@M", " sc1"), tag="opaque")
        S(f"{l2}:")

    def flag_store(self, S, ad, r=4):
        if self.opt.get("pflag", 1):
            self.two_way(S, f"buffer_store_dword v{r}, {v(ad)}, {s(SWS,4)}, 0 offen@M")
        else:
            S(f"buffer_store_dword v{r}, {v(ad)}, {s(SWS,4)}, 0 offen sc1")

    def poll_flags(self, S, areg, nloads, dreg, step=0):
        lp, done = self.lab("poll"), self.lab("pdone")
        S(f"s_mov_b32 {s(sCNT)}, 0x40000\n{lp}:")
        for k in range(nloads):
            S(f"buffer_load_dword {v(dreg+k)}, {v(areg+k)}, {s(SWS,4)}, 0 offen sc1")
        S("s_waitcnt vmcnt(0)")
        S(f"v_xor_b32 {v(dreg)}, {s(sNON)}, {v(dreg)}")
        for k in range(1, nloads):
            S(f"v_xor_b32 {v(dreg+k)}, {s(sNON)}, {v(dreg+k)}\nv_or_b32 {v(dreg)}, {v(dreg)}, {v(dreg+k)}")
        S(f"""v_cmp_ne_u32 vcc, 0, {v(dreg)}
s_cbranch_vccz {done}
s_sub_u32 {s(sCNT)}, {s(sCNT)}, 1
s_cbranch_scc0 {lp}
{done}:""")

    def out_addrs(self, S, side, base, r0):
        S(f"""v_and_b32 v4, 15, v0
v_bfe_u32 v3, v0, 4, 2
s_mul_i32 {s(sHX1)}, {s(sW)}, 10752
s_add_u32 {s(sHX1)}, {s(sHX1)}, {base}
v_mul_u32_u24 v5, 336, v4
v_lshl_add_u32 v5, v3, 4, v5
v_add_u32 {v(r0)}, {s(sHX1)}, v5
s_lshl_b32 {s(sHW0)}, {s(sRB)}, 7
s_lshl_b32 {s(sHW1)}, {s(sW)}, 5
s_add_u32 {s(sHW0)}, {s(sHW0)}, {s(sHW1)}
s_mul_i32 {s(sHW0)}, {s(sHW0)}, 5120
s_mul_i32 {s(sHW1)}, {s(sCB)}, 320
s_add_u32 {s(sHW0)}, {s(sHW0)}, {s(sHW1)}
s_add_u32 {s(sHW0)}, {s(sHW0)}, {2560 if side == 'B' else 0}
v_and_b32 v3, 63, v0""")
        for m in range(5):
            S(f"""v_add_u32 v4, {64*m}, v3
v_mul_u32_u24 v5, 3277, v4
v_lshrrev_b32 v5, 16, v5
v_lshlrev_b32 v4, 4, v4
v_lshl_add_u32 v6, v5, 4, v4
v_add_u32 {v(r0+7+m)}, {s(sHX1)}, v6
v_mul_u32_u24 v5, 4800, v5
v_add3_u32 {v(r0+2+m)}, v5, v4, {s(sHW0)}""")
        S(f"s_mov_b32 {s(sHX0)}, {16*5120}")

    def store_out(self, S, acc, r0, tmp):
        m_ = {0: "", 1: " nt", 2: " sc1", 3: " sc0 sc1"}[self.opt.get("omod", 0)]
        for i in range(2):
            for n in range(5):
                S(f"ds_write_b128 {v(r0)}, {v(acc + (n*2+i)*4, 4)} offset:{64*n + 16*336*i}")
        for i in range(2):
            for m in range(5):
                S(f"ds_read_b128 {v(tmp + 4*(5*i+m), 4)}, {v(r0+7+m)} offset:{16*336*i}")
        for i in range(2):
            for m in range(5):
                S(f"buffer_store_dwordx4 {v(tmp + 4*(5*i+m), 4)}, {v(r0+2+m)}, {s(SO,4)}, {s(sHX0) if i else 0} offen{m_}")

    def side_B(self):
        S = Stream()
        self.cur = S
        S("L_sideB:")
        CST = 48
        CL8, CL128, CCF = 88, 90, 92
        vSCW, vSCC, vSCH, vEP, vTW, vTB, vHS, vHF, vHP = 25, 26, 27, 28, 29, 30, 32, 33, 34
        vSEG, vXS = 94, 95
        PRM = 136
        VE = 118
        VX = 96
        CW = 126
        vHW, vGRP, vDS = 128, 129, 131
        RC = 132
        XSA = 108
        BIG = 136
        S(f"""s_and_b32 {s(sT2)}, {s(sW)}, 1
s_lshl_b32 {s(sT1)}, {s(sT2)}, 6
v_xor_b32 v7, {s(sT1)}, v5
s_mul_i32 {s(sT2)}, {s(sT2)}, 40
s_mul_i32 {s(sT1)}, {s(sCB)}, 80
s_add_u32 {s(sT2)}, {s(sT2)}, {s(sT1)}
s_mul_i32 {s(sT2)}, {s(sT2)}, 1280
v_mul_u32_u24 v8, 1280, v2
v_add3_u32 {v(WA)}, v7, v8, {s(sT2)}
v_xor_b32 v8, 64, {v(WA)}""")
        for i in range(1, 5):
            S(f"v_add_u32 {v(WA+i)}, {8*i*1280 - 1024*(i & 3)}, {'v8' if i & 1 else v(WA)}")
        S(f"""s_cmp_ge_u32 {s(sW)}, 2
s_cselect_b32 {s(SW)}, s18, s16
s_cselect_b32 {s(SW+1)}, s19, s17
s_cselect_b32 {s(SC)}, s22, s20
s_cselect_b32 {s(SC+1)}, s23, s21
s_mov_b32 {s(SW+2)}, {640*1280}
s_mov_b32 {s(SW+3)}, 0x20000""")
        S.add(self.dma_w(16 * K, WA, SW, sT0, "st0", "", self.wmod))
        self.late_setup(S)
        S(f"""v_subrev_u32 {v(RW)}, {s(sMX)}, {v(RX)}
v_xor_b32 {v(RW+3)}, 64, {v(RW)}
v_add_u32 {v(RW+1)}, 0x10000, {v(RW)}
v_add_u32 {v(RW+4)}, 0x10000, {v(RW+3)}""")
        S(f"""s_mul_i32 {s(sT0)}, {s(sCB)}, 160
v_lshl_add_u32 v9, v4, 1, {s(sT0)}
v_min_u32 v11, 59, v1
v_mul_u32_u24 {v(vGRP)}, 205, v11
v_lshrrev_b32 {v(vGRP)}, 12, {v(vGRP)}
v_mul_u32_u24 v8, 20, {v(vGRP)}
v_sub_u32 v11, v11, v8
s_mul_i32 {s(sT1)}, {s(sW)}, 20
v_add_u32 v11, {s(sT1)}, v11
v_lshl_add_u32 v10, v11, 1, {s(sT0)}""")
        self.common_srds(S)
        S(f"s_mov_b32 {s(SC+2)}, {640*1280}\ns_mov_b32 {s(SC+3)}, 0x20000")
        self.srd(S, SP0, 12, 1280)
        self.srd(S, SP1, 14, 1280)
        self.srd(S, SP2, 24, 1280)
        self.srd(S, SP3, 26, 1280)
        early = []
        for t in range(6):
            for k, sp in enumerate((SP0, SP1, SP2)):
                ad, off = ("v9", 32 * t) if t < 5 else ("v10", 0)
                early += mk(f"buffer_load_ushort {v(PRM + 3*t + k)}, {ad}, {s(sp,4)}, 0 offen offset:{off}")

        F = []
        def f(t): F.extend(groups(t))
        F0, F1 = s(sF0), s(sF1)
        f(f"""s_lshl_b32 {F0}, {s(sW)}, 2
v_add_u32 {v(vSEG)}, {F0}, v3
v_mul_u32_u24 v2, 640, {v(vSEG)}
v_lshl_add_u32 v2, v4, 3, v2
v_add_u32 {v(vSCW)}, {SCAN}, v2
v_lshlrev_b32 v2, 3, v11
v_add_u32 {v(vSCC)}, {SCAN}, v2
v_mul_u32_u24 v5, 640, {v(vGRP)}
v_add_u32 {v(vHW)}, {v(vSCC)}, v5
v_lshlrev_b32 v2, 3, v4
v_add_u32 {v(vSCH)}, {SCAN + 10240}, v2
v_lshlrev_b32 {v(vSEG)}, 3, {v(vSEG)}
v_cvt_f32_u32 {v(vSEG)}, {v(vSEG)}""")
        f(f"""s_mul_i32 {F0}, {s(sCB)}, 1280
s_mul_i32 {F1}, {s(sRB)}, 10240
s_add_u32 {F0}, {F0}, {F1}
v_lshl_add_u32 v2, v11, 4, {F0}
v_mov_b32 v5, {OOB}
v_cmp_gt_u32 vcc, 20, v1
+v_cndmask_b32 {v(vEP)}, v5, v2, vcc
v_mul_u32_u24 v5, 51200, {v(vGRP)}
v_add_u32 v2, v2, v5""")
        for j in range(5):
            f(f"v_add_u32 {v(VE+j)}, {((j - 15) * 10240) & 0xffffffff:#x}, v2")
        f(f"""s_mul_i32 {F0}, {s(sW)}, 10240
s_add_u32 {F0}, {F0}, {TBUF}
v_bfe_u32 v2, v4, 1, 2
v_lshrrev_b32 v5, 3, v4
v_lshlrev_b32 v5, 1, v5
v_xor_b32 v2, v2, v5
v_xor_b32 v2, v2, v3
v_lshlrev_b32 v2, 4, v2
v_lshl_add_u32 v2, v4, 6, v2
v_add_u32 {v(vTW)}, {F0}, v2
v_and_b32 v2, 1, v3
v_bfe_u32 v5, v1, 2, 2
v_lshl_add_u32 v6, v2, 3, v5
v_lshlrev_b32 v6, 6, v6
v_lshrrev_b32 v5, 1, v5
v_bfe_u32 v7, v1, 1, 1
v_xor_b32 v5, v5, v7
v_lshl_add_u32 v5, v2, 1, v5
v_lshl_add_u32 v6, v5, 4, v6
v_and_b32 v5, 1, v1
v_lshl_add_u32 v6, v5, 3, v6
v_lshrrev_b32 v5, 1, v3
v_lshl_add_u32 v6, v5, 10, v6
v_add_u32 {v(vTB)}, {F0}, v6
v_xor_b32 {v(vTB+1)}, 32, {v(vTB)}""")
        f(f"""s_lshl_b32 {F0}, {s(sRB)}, 2
s_add_u32 {F0}, {F0}, {s(sW)}
s_mul_i32 {s(sAW)}, {F0}, 81920
s_add_u32 {s(sAW)}, {s(sAW)}, {WS_H}
s_mul_i32 {F1}, {s(sCB)}, 10240
s_add_u32 {F1}, {F1}, {s(sAW)}
v_add_u32 {v(vHS)}, {F1}, {v(vL16)}
s_lshl_b32 {F0}, {F0}, 10
s_add_u32 {F0}, {F0}, {WS_HF}
v_lshrrev_b32 v2, 3, v1
v_lshlrev_b32 v2, 7, v2
v_add_u32 {v(vHP)}, {F0}, v2
s_lshl_b32 {F1}, {s(sCB)}, 7
s_add_u32 {F0}, {F0}, {F1}
v_mov_b32 v2, {F0}
v_mov_b32 v5, {OOB}
v_cmp_eq_u32 vcc, 0, v1
+v_cndmask_b32 {v(vHF)}, v5, v2, vcc""")
        f(f"""v_and_b32 v2, 1, v3
v_lshrrev_b32 v5, 1, v4
v_xor_b32 v2, v2, v5
v_lshlrev_b32 v2, 4, v2
v_lshl_add_u32 v2, v4, 7, v2
v_lshrrev_b32 v5, 1, v3
v_mul_u32_u24 v5, 10240, v5
v_add_u32 {v(RC)}, v5, v2
v_xor_b32 {v(RC+1)}, 32, {v(RC)}
v_xor_b32 {v(RC+2)}, 64, {v(RC)}
v_xor_b32 {v(RC+3)}, 96, {v(RC)}""")
        f(f"""s_lshl_b32 {F0}, {s(sRB)}, 7
s_lshl_b32 {F1}, {s(sW)}, 5
s_add_u32 {F0}, {F0}, {F1}
s_mul_i32 {F0}, {F0}, 1280
s_mul_i32 {F1}, {s(sCB)}, 160
v_lshl_add_u32 {v(vDS)}, v3, 3, {F1}
s_add_u32 {F0}, {F0}, {F1}
s_mul_i32 {F1}, {s(sW)}, 5120
s_add_u32 {s(sAW+4)}, {F1}, {76*K}
v_mul_u32_u24 v2, 160, v4
v_lshl_add_u32 v2, v3, 3, v2
v_add_u32 {v(vXS)}, {s(sAW+4)}, v2""")
        for m in range(5):
            f(f"""v_add_u32 v2, {64*m}, v1
v_mul_u32_u24 v5, 6554, v2
v_lshrrev_b32 v5, 16, v5
v_mul_u32_u24 v5, 1120, v5
v_lshl_add_u32 v5, v2, 4, v5
v_add_u32 v5, {(-1024*(m & 3)) & 0xffffffff:#x}, v5
v_add_u32 {v(XSA+m)}, {F0}, v5""")

        n_pre = len(F)
        f(f"""s_lshr_b32 {F0}, s2, 3
s_mul_i32 {F0}, {F0}, 200
s_and_b32 {F1}, {s(sW)}, 1
s_mul_i32 {F1}, {F1}, 100
s_add_u32 {F0}, {F0}, {F1}
v_add_u32 v35, {F0}, v1
v_lshlrev_b32 v35, 7, v35
v_add_u32 v36, 8192, v35
s_and_b32 {F0}, {s(sXCD)}, 3
s_mul_i32 {F0}, {F0}, 3200
v_add_u32 v2, {F0}, v35
v_mov_b32 v5, {OOB}
v_cmp_gt_u32 vcc, 25, v1
+v_cndmask_b32 v37, v5, v2, vcc""")
        F = F[n_pre:] + F[:n_pre]
        F_addr = F
        F = []

        def power(n, dr, di):
            t = ""
            if n is None:
                t += "v_mov_b32 v12, v8\nv_mov_b32 v13, v9\n"
            else:
                t += f"v_mul_f32 v12, {n}, v8\nv_mul_f32 v13, {n}, v9\n"
            t += f"""v_exp_f32 v12, v12
v_fract_f32 v13, v13
v_cos_f32 v14, v13
v_sin_f32 v15, v13
v_mul_f32 {v(dr)}, v12, v14
v_mul_f32 {v(di)}, v12, v15"""
            return t
        for t in range(6):
            lr, li, ld = PRM + 3 * t, PRM + 3 * t + 1, PRM + 3 * t + 2
            c = CST + 8 * t
            f(f"""v_lshlrev_b32 {v(ld)}, 16, {v(ld)}
v_lshlrev_b32 {v(lr)}, 16, {v(lr)}
v_lshlrev_b32 {v(li)}, 16, {v(li)}
v_mul_f32 v2, {f2u(LOG2E)}, {v(ld)}
v_exp_f32 v2, v2
v_cvt_pk_bf16_f32 v2, v2, v2
v_and_b32 v2, 0xffff0000, v2
v_mul_f32 v8, v2, {v(lr)}
v_mul_f32 v9, v2, {v(li)}
v_mul_f32 v8, {f2u(LOG2E)}, v8
v_mul_f32 v9, 0.15915494, v9""")
            Lr, Li = (c, c + 2) if t < 5 else (6, 7)
            cf = c + 4 if t < 5 else CCF
            f(power(None, Lr, Li))
            f(f"""v_add_f32 v2, -1.0, {v(Lr)}
v_mul_f32 v5, {v(lr)}, {v(lr)}
v_fmac_f32 v5, {v(li)}, {v(li)}
v_rcp_f32 v5, v5
v_mul_f32 v10, v2, {v(lr)}
v_fmac_f32 v10, {v(Li)}, {v(li)}
v_add_f32 v5, v5, v5
v_mul_f32 {v(cf)}, v10, v5
v_mul_f32 v10, {v(Li)}, {v(lr)}
v_fma_f32 v10, -v2, {v(li)}, v10
v_mul_f32 {v(cf+1)}, v10, v5""")
            if t < 5:
                f(f"""v_mul_f32 v2, {v(Li)}, {v(Li)}
v_fma_f32 {v(c+1)}, {v(Lr)}, {v(Lr)}, -v2
v_mul_f32 v2, {v(Lr)}, {v(Li)}
v_add_f32 {v(c+3)}, v2, v2""")
                f(power(v(vSEG), c + 6, c + 7))
            else:
                f(power(f2u(8.0), CL8, CL8 + 1))
                f(power(f2u(128.0), CL128, CL128 + 1))
                f(f"""v_sub_u32 v10, 2, {v(vGRP)}
v_mul_u32_u24 v10, 640, v10
v_cvt_f32_u32 v10, v10""")
                f(power("v10", 6, 7))
                f(f"""v_mul_f32 {v(CW)}, {v(CCF)}, v6
v_mul_f32 {v(CW+1)}, {v(CCF)}, v7
v_fma_f32 {v(CW)}, -{v(CCF+1)}, v7, {v(CW)}
v_fmac_f32 {v(CW+1)}, {v(CCF+1)}, v6""")
        f(f"""s_add_u32 {s(SE)}, {s(SWS)}, {WS_E}
+s_addc_u32 {s(SE+1)}, {s(SWS+1)}, 0
s_mov_b32 {s(SE+2)}, 163840""")

        def cchunk(k):
            pre = f"""s_add_u32 {s(sT1)}, {s(sAW+2)}, {k}
s_sub_u32 {s(sT2)}, {s(sT1)}, 10
s_cselect_b32 {s(sT1)}, {s(sT1)}, {s(sT2)}
s_lshl_b32 {s(sT1)}, {s(sT1)}, 7
"""
            return self.dma_w(CH[k], WA, SC, sT1, f"c{k}", pre)
        S(f"s_mul_i32 {s(sAW+2)}, {s(sCB)}, 5\ns_lshr_b32 {s(sAW+2)}, {s(sAW+2)}, 2")
        pf = [mk(f"buffer_load_dword v{37+k}, v{35+k}, {s(SC,4)}, 0 offen") for k in range(2)]
        xs = []
        for m in range(5):
            pre = f"s_add_u32 m0, {s(sAW+4)}, {4096*(m >> 2)}\n" if (m & 3) == 0 else ""
            xs.append(mk(pre + f"buffer_load_dwordx4 {v(XSA+m)}, {s(SX,4)}, 0 offen offset:{1024*(m & 3)} lds", "xs"))
        F_addr += [mk(f"buffer_load_dwordx2 {a(240 + 2*n, 2)}, {v(vDS)}, {s(SP3,4)}, 0 offen offset:{32*n}") for n in range(5)]
        xr = [mk("@waittag xs")] + [mk(f"ds_read_b64 {a(2*(5*i+n), 2)}, {v(vXS)} offset:{32*n + 2560*i}") for i in range(2) for n in range(5)]
        pt = []
        if self.opt.get("pretouch", 1) or self.opt.get("selft"):
            F_addr += groups(f"""v_mul_u32_u24 v2, 112, v1
v_add_u32 v123, {v(vHS)}, v2
v_add_u32 v124, 8192, v123
v_mov_b32 v5, {OOB}
v_cmp_gt_u32 vcc, 16, v1
+v_cndmask_b32 v124, v5, v124, vcc""")
            if self.opt.get("pretouch", 1):
                pt = [mk(f"buffer_load_dword v{125+5*k}, v{123+k}, {s(SWS,4)}, 0 offen") for k in range(2)]
        mpf = [mk(f"buffer_load_dword v37, v37, {s(SC,4)}, 0 offen")] if self.opt.get("mpf", 1) else []
        ptpos = self.opt.get("ptpos", 1)
        self.mainloop(S, "B", early, F_addr, F, xs + pf + (pt if ptpos == 2 else []), xr, None, [], mpf)
        self.stamp(S, 4)

        re = lambda t, k: ACC + (t * 2 + (k >> 1)) * 4 + 2 * (k & 1)
        im = lambda t, k: ACC + ((t + 5) * 2 + (k >> 1)) * 4 + 2 * (k & 1)
        HI = "op_sel:[1,0,0] op_sel_hi:[1,1,1]"
        NEG = "neg_lo:[1,0,0] neg_hi:[1,0,0]"
        T0 = BIG
        cur = None
        for k in range(1, 4):
            dst = T0 if k & 1 else BIG + 20
            for t in range(5):
                c = CST + 8 * t
                sr, si = (re(t, 0), im(t, 0)) if k == 1 else (cur + 4 * t, cur + 4 * t + 2)
                S(f"v_pk_fma_f32 {v(dst+4*t,2)}, {v(c,2)}, {v(sr,2)}, {v(re(t,k),2)} {HI}")
                S(f"v_pk_fma_f32 {v(dst+4*t+2,2)}, {v(c,2)}, {v(si,2)}, {v(im(t,k),2)} {HI}")
            for t in range(5):
                c = CST + 8 * t
                sr, si = (re(t, 0), im(t, 0)) if k == 1 else (cur + 4 * t, cur + 4 * t + 2)
                S(f"v_pk_fma_f32 {v(dst+4*t,2)}, {v(c+2,2)}, {v(si,2)}, {v(dst+4*t,2)} {HI} {NEG}")
                S(f"v_pk_fma_f32 {v(dst+4*t+2,2)}, {v(c+2,2)}, {v(sr,2)}, {v(dst+4*t+2,2)} {HI}")
            cur = dst
        EE = BIG + 20
        for t in range(5):
            c, b = CST + 8 * t, cur + 4 * t
            S(f"v_fma_f32 {v(EE+2*t)}, {v(c)}, {v(b)}, {v(b+1)}\nv_fma_f32 {v(EE+2*t+1)}, {v(c)}, {v(b+2)}, {v(b+3)}")
        for t in range(5):
            c, b = CST + 8 * t, cur + 4 * t
            S(f"v_fma_f32 {v(EE+2*t)}, -{v(c+2)}, {v(b+2)}, {v(EE+2*t)}\nv_fmac_f32 {v(EE+2*t+1)}, {v(c+2)}, {v(b)}")
            S(f"ds_write_b64 {v(vSCW)}, {v(EE+2*t,2)} offset:{128*t}")
        S("@waitlgkm0\ns_barrier")
        ch = lambda j: BIG + 2 * j
        for j in range(16):
            S(f"ds_read_b64 {v(ch(j),2)}, {v(vSCC)} offset:{640*j}")
        for j in range(1, 16):
            p, c = ch(j - 1), ch(j)
            S(f"""v_fmac_f32 {v(c)}, {v(CL8)}, {v(p)}
v_fmac_f32 {v(c+1)}, {v(CL8)}, {v(p+1)}
v_fma_f32 {v(c)}, -{v(CL8+1)}, {v(p+1)}, {v(c)}
v_fmac_f32 {v(c+1)}, {v(CL8+1)}, {v(p)}""")
            if j == 1:
                S(f"v_mov_b32 {v(BIG+32)}, {s(sNON)}\nv_mov_b32 {v(BIG+33)}, {s(sNON)}")
        S(f"buffer_store_dwordx4 {v(BIG+30,4)}, {v(vEP)}, {s(SE,4)}, 0 offen sc1")
        self.stamp(S, 5)
        S_main = S
        S = Stream()
        S(f"v_mov_b32 v2, 0\nv_mov_b32 v3, 0\nds_write_b64 {v(vSCC)}, v[2:3]")
        for j in range(15):
            c = ch(j)
            d = 4 + 2 * (j & 3)
            S(f"""v_mul_f32 {v(d)}, {v(CCF)}, {v(c)}
v_mul_f32 {v(d+1)}, {v(CCF)}, {v(c+1)}
v_fma_f32 {v(d)}, -{v(CCF+1)}, {v(c+1)}, {v(d)}
v_fmac_f32 {v(d+1)}, {v(CCF+1)}, {v(c)}
ds_write_b64 {v(vSCC)}, {v(d,2)} offset:{640*(j+1)}""")
        LO = "op_sel:[0,0] op_sel_hi:[0,1]"
        for t in range(5):
            cf = CST + 8 * t + 4
            for k in range(4):
                d = 2 + 2 * (k & 1)
                S(f"""v_pk_mul_f32 {v(d,2)}, {v(cf,2)}, {v(re(t,k),2)} op_sel:[1,0] op_sel_hi:[1,1]
v_pk_mul_f32 {v(re(t,k),2)}, {v(cf,2)}, {v(re(t,k),2)} {LO}
v_pk_fma_f32 {v(re(t,k),2)}, {v(cf,2)}, {v(im(t,k),2)}, {v(re(t,k),2)} {HI} {NEG}
v_pk_fma_f32 {v(im(t,k),2)}, {v(cf,2)}, {v(im(t,k),2)}, {v(d,2)} op_sel:[0,0,0] op_sel_hi:[0,1,1]""")
        for x in range(7, 0, -1):
            for t in range(5):
                c = CST + 8 * t
                ur, ui = re(t, x >> 1) + (x & 1), im(t, x >> 1) + (x & 1)
                pr, pi = re(t, (x - 1) >> 1) + ((x - 1) & 1), im(t, (x - 1) >> 1) + ((x - 1) & 1)
                S(f"""v_fmac_f32 {v(ur)}, {v(c)}, {v(pr)}
v_fmac_f32 {v(ui)}, {v(c)}, {v(pi)}
v_fma_f32 {v(ur)}, -{v(c+2)}, {v(pi)}, {v(ur)}
v_fmac_f32 {v(ui)}, {v(c+2)}, {v(pr)}""")
        cq = [self.xi_load(36)] + [x for k in range(5) for x in cchunk(k)]
        S_main.add(interleave(S.items, (cq, 4, len(S.items) - 40)))
        S = S_main
        SL = 108
        S("@waitlgkm0\ns_barrier")
        for t in range(5):
            S(f"ds_read_b64 {v(SL+2*t,2)}, {v(vSCW)} offset:{128*t}")
        self.stamp(S, 6)
        S.add(self.xi_eval(36))
        S(f"v_mov_b32 v2, {s(sNON)}")
        for j in range(5):
            S(f"v_cmp_le_i32 vcc, 0, {v(VE+j)}\nv_cndmask_b32_e64 {v(VX+j)}, 0, v2, vcc")
        S("@waitlgkm0")
        lp, done = self.lab("epoll"), self.lab("edone")
        S(f"s_mov_b32 {s(sCNT)}, 0x40000\n{lp}:")
        for j in range(5):
            S(f"buffer_load_dwordx4 {v(BIG+4*j,4)}, {v(VE+j)}, {s(SE,4)}, 0 offen sc1")
        S("s_waitcnt vmcnt(0)")
        for j in range(5):
            d, hp = BIG + 4 * j, BIG + 4 * j - 4
            S(f"v_xor_b32 {v(d+2)}, {v(d+2)}, {v(VX+j)}")
            if j:
                S(f"""v_fmac_f32 {v(d)}, {v(CL128)}, {v(hp)}
v_fmac_f32 {v(d+1)}, {v(CL128)}, {v(hp+1)}
v_or_b32 {v(d+2)}, {v(d+2)}, {v(hp+2)}
v_fma_f32 {v(d)}, -{v(CL128+1)}, {v(hp+1)}, {v(d)}
v_fmac_f32 {v(d+1)}, {v(CL128+1)}, {v(hp)}""")
        hp = BIG + 16
        S(f"""v_cmp_ne_u32 vcc, 0, {v(hp+2)}
v_mul_f32 v4, {v(CW)}, {v(hp)}
v_mul_f32 v5, {v(CW)}, {v(hp+1)}
v_fma_f32 v4, -{v(CW+1)}, {v(hp+1)}, v4
v_fmac_f32 v5, {v(CW+1)}, {v(hp)}
s_cbranch_vccz {done}
s_sub_u32 {s(sCNT)}, {s(sCNT)}, 1
s_cbranch_scc0 {lp}
{done}:""")
        S(f"ds_write_b64 {v(vHW)}, v[4:5] offset:10240")
        if ptpos == 1:
            S.add(pt)
        S(f"""@waitlgkm0
s_barrier""")
        self.stamp(S, 7)
        HH = BIG
        for t in range(5):
            for g in range(3):
                S(f"ds_read_b64 {v(HH+10*g+2*t,2)}, {v(vSCH)} offset:{128*t + 640*g}")
        for g in (1, 2):
            for t in range(5):
                S(f"v_pk_add_f32 {v(HH+2*t,2)}, {v(HH+2*t,2)}, {v(HH+10*g+2*t,2)}")
        for t in range(5):
            ls, h_, sl = CST + 8 * t + 6, HH + 2 * t, SL + 2 * t
            S(f"""v_fmac_f32 {v(sl)}, {v(ls)}, {v(h_)}
v_fmac_f32 {v(sl+1)}, {v(ls)}, {v(h_+1)}
v_fma_f32 {v(sl)}, -{v(ls+1)}, {v(h_+1)}, {v(sl)}
v_fmac_f32 {v(sl+1)}, {v(ls+1)}, {v(h_)}""")
        for t in range(5):
            c, sl = CST + 8 * t, SL + 2 * t
            S(f"v_pk_fma_f32 {v(re(t,0),2)}, {v(c,2)}, {v(sl,2)}, {v(re(t,0),2)} op_sel:[0,0,0] op_sel_hi:[1,0,1]")
            S(f"v_pk_fma_f32 {v(im(t,0),2)}, {v(c,2)}, {v(sl,2)}, {v(im(t,0),2)} op_sel:[0,1,0] op_sel_hi:[1,1,1]")
        for t in range(5):
            c, sl = CST + 8 * t, SL + 2 * t
            S(f"v_pk_fma_f32 {v(re(t,0),2)}, {v(c+2,2)}, {v(sl,2)}, {v(re(t,0),2)} op_sel:[0,1,0] op_sel_hi:[1,1,1] {NEG}")
            S(f"v_pk_fma_f32 {v(im(t,0),2)}, {v(c+2,2)}, {v(sl,2)}, {v(im(t,0),2)} op_sel:[0,0,0] op_sel_hi:[1,0,1]")
        for k in range(1, 4):
            for t in range(5):
                c = CST + 8 * t
                S(f"v_pk_fma_f32 {v(re(t,k),2)}, {v(c,2)}, {v(re(t,k-1),2)}, {v(re(t,k),2)} {HI}")
                S(f"v_pk_fma_f32 {v(im(t,k),2)}, {v(c,2)}, {v(im(t,k-1),2)}, {v(im(t,k),2)} {HI}")
            for t in range(5):
                c = CST + 8 * t
                S(f"v_pk_fma_f32 {v(re(t,k),2)}, {v(c+2,2)}, {v(im(t,k-1),2)}, {v(re(t,k),2)} {HI} {NEG}")
                S(f"v_pk_fma_f32 {v(im(t,k),2)}, {v(c+2,2)}, {v(re(t,k-1),2)}, {v(im(t,k),2)} {HI}")
        CV = 48
        for t in range(5):
            for ri in range(2):
                d = CV + 4 * (2 * t + ri)
                for k in range(4):
                    r = re(t, k) if ri == 0 else im(t, k)
                    n = "" if ri == 0 else "-"
                    S(f"v_cvt_pk_bf16_f32 {v(d+k)}, {n}{v(r)}, {n}{v(r+1)}")
                S(f"ds_write_b128 {v(vTW)}, {v(d,4)} offset:{1024*(2*t+ri)}")
        HFR = ACC
        for t in range(5):
            for i in range(2):
                d = HFR + 4 * (2 * t + i)
                for j in range(2):
                    S(f"ds_read_b64_tr_b16 {v(d+2*j,2)}, {v(vTB + (i ^ j))} offset:{2048*t + 256*j}")
        S(f"v_add_u32 v2, 4096, {v(vHS)}\nv_add_u32 v3, 8192, {v(vHS)}")
        S("@waitlgkm0")
        self.two_way(S, "\n".join(f"buffer_store_dwordx4 {v(HFR+4*m,4)}, {[v(vHS), 'v2', 'v3'][m >> 2]}, {s(SWS,4)}, 0 offen offset:{1024*(m & 3)}@M" for m in range(10)), "hst")
        if self.opt.get("selft"):
            S.add([mk(f"buffer_load_dword v{125+5*k}, v{123+k}, {s(SWS,4)}, 0 offen") for k in range(2)])
        S("s_barrier")
        S_main = S
        S = Stream()
        XK, DK = 48, 68
        for x in range(30):
            S(f"v_accvgpr_read_b32 {v(XK + x)}, {a(x if x < 20 else 220 + x)}")
        AC2 = ACC + 40
        for n in range(5):
            S(f"""v_lshlrev_b32 v4, 16, {v(DK+2*n)}
v_and_b32 v5, 0xffff0000, {v(DK+2*n)}
v_lshlrev_b32 v6, 16, {v(DK+2*n+1)}
v_and_b32 v7, 0xffff0000, {v(DK+2*n+1)}""")
            for i in range(2):
                x = XK + 2 * (5 * i + n)
                c = AC2 + (n * 2 + i) * 4
                S(f"""v_lshlrev_b32 v8, 16, {v(x)}
v_and_b32 v9, 0xffff0000, {v(x)}
v_lshlrev_b32 v10, 16, {v(x+1)}
v_and_b32 v11, 0xffff0000, {v(x+1)}
v_pk_mul_f32 v[8:9], v[8:9], v[4:5]
v_pk_mul_f32 v[10:11], v[10:11], v[6:7]
v_cvt_pk_bf16_f32 v12, v8, v9
v_cvt_pk_bf16_f32 v13, v10, v11
v_lshlrev_b32 {v(c)}, 16, v12
v_and_b32 {v(c+1)}, 0xffff0000, v12
v_lshlrev_b32 {v(c+2)}, 16, v13
v_and_b32 {v(c+3)}, 0xffff0000, v13""")
        S(f"v_add_u32 v14, {s(sAW)}, {v(vL16)}\nv_add_u32 v15, 4096, v14")
        for k in range(3):
            for j in range(4):
                S(f"v_add_u32 {v(96 + 4*k + j)}, {k * 0x10000}, {v(RC + j)}")
        self.out_addrs(S, "B", 20 * K, 48)
        sh = S.items
        S = S_main
        nsh = self.opt.get("nsh", 150)
        S.add(sh[:nsh])
        S(f"v_mov_b32 v16, {s(sNON)}")
        S("@waittag hst")
        self.flag_store(S, vHF, 16)
        self.stamp(S, 8)
        S.add(interleave(sh[nsh:], ([x for k in (5, 6, 7) for x in cchunk(k)], 0, len(sh) - nsh - 60)))
        self.poll_flags(S, vHP, 1, 4)
        self.stamp(S, 9)
        DEPTH = self.opt.get("hdepth", 6)
        def hload(u):
            c, tl = u >> 2, u & 3
            L = []
            pre = ""
            if tl == 0:
                pre = f"""s_add_u32 {s(sT0)}, {s(sAW+2)}, {c}
s_sub_u32 {s(sAW+3)}, {s(sT0)}, 10
s_cselect_b32 {s(sT0)}, {s(sT0)}, {s(sAW+3)}
s_lshl_b32 {s(sT0)}, {s(sT0)}, 13
"""
            for i in range(2):
                off = tl * 2048 + i * 1024
                d = ((u % 32) * 2 + i) * 4
                L.append(mk(pre + f"buffer_load_dwordx4 {a(d,4)}, v{14 + (off >> 12)}, {s(SWS,4)}, {s(sT0)} offen offset:{off & 4095}{self.lmod}"))
                pre = ""
            return L
        CF = 108
        def creads(u):
            c, tl = u >> 2, u & 3
            L = []
            for n in range(5):
                off = CH[c] + 2048 * n
                L.append(I(f"ds_read_b128 {v(CF + 20*(u & 1) + 4*n, 4)}, {v(96 + 4*(off >> 16) + tl)} offset:{off & 0xffff}"))
            return L
        for u in range(DEPTH):
            S.add(hload(u))
        S("@waittag c0 c1 c2 c3 c4 c5 c6 c7\ns_barrier")
        S.add(creads(0))
        for u in range(40):
            pre = []
            if u % 4 == 0:
                self.tr(S, 1)
            if u == 7:
                S("@waitlgkm0\ns_barrier")
            if u == 31:
                S("@waittag c8 c9\ns_barrier")
            mf = []
            for n in range(5):
                for i in range(2):
                    c = AC2 + (n * 2 + i) * 4
                    mf.append(I(f"{MF} {v(c,4)}, {v(CF + 20*(u & 1) + 4*n, 4)}, {a(((u % 32)*2+i)*4, 4)}, {v(c,4)}"))
            ld = hload(u + DEPTH) if u + DEPTH < 40 else []
            if 8 <= u < 28 and not u & 1:
                ld = ld + [(cchunk(8) + cchunk(9))[(u - 8) >> 1]]
            rd = creads(u + 1) if u < 39 else []
            mf[0] = [I(f"@need {v(CF + 20*(u & 1) + 16, 4)} {a(((u % 32)*2+1)*4, 4)}"), mf[0]]
            S.add(kstep(mf, rd, ld))
        self.stamp(S, 10)
        self.store_out(S, AC2, 48, 176)
        self.stamp(S, 11)
        self.dump_stamps(S)
        S("s_endpgm")
        return S

    def phi_pairs(self, S, pairs, EPS, CPH):
        G = 4
        for b in range(0, len(pairs), G):
            blk = pairs[b:b + G]
            for x, (c, d) in enumerate(blk):
                S(f"v_pk_fma_f32 {v(2+2*x,2)}, {v(c,2)}, {v(CPH,2)}, {v(CPH,2)} op_sel:[0,0,1] op_sel_hi:[1,0,1]")
            for x, (c, d) in enumerate(blk):
                S(f"v_exp_f32 {v(2+2*x)}, {v(2+2*x)} clamp\nv_max_f32 {v(c)}, {v(EPS)}, {v(c)}")
                S(f"v_exp_f32 {v(3+2*x)}, {v(3+2*x)} clamp\nv_max_f32 {v(c+1)}, {v(EPS)}, {v(c+1)}")
            for x, (c, d) in enumerate(blk):
                S(f"v_pk_add_f32 {v(c,2)}, {v(c,2)}, {v(2+2*x,2)}")
            for x, (c, d) in enumerate(blk):
                S(f"v_cvt_pk_bf16_f32 {v(d)}, {v(c)}, {v(c+1)}")

    def side_A(self):
        S = Stream()
        self.cur = S
        EPSQ, CPH, EPSD = 48, 52, 56
        vXW, PKS, PKO, PKX, V0, V1O, V1X = 60, 61, 62, 63, 64, 65, 66
        PS, PO, P2, vRL, vBP, vKF, vKL, vOS, vOS2, vOL, vOF, vOP, vRX, vK3 = 67, 68, 69, 70, 71, 72, 73, 74, 75, 76, 77, 78, 79, 80
        SEL = 88
        UQ = 82
        sWO = SP0
        sC4K = SP0 + 5
        vB, vR, vC = UQ, UQ + 1, UQ + 2
        S(f"""v_lshrrev_b32 {v(vR)}, 2, v1
v_lshrrev_b32 v7, 5, v1
v_bfe_u32 {v(vB)}, v1, 1, 1
v_xor_b32 {v(vB)}, {v(vB)}, v7
v_and_b32 v7, 1, v1
v_lshlrev_b32 v7, 4, v7
v_lshl_add_u32 v7, {v(vB)}, 5, v7
s_mul_i32 {s(sT1)}, {s(sCB)}, 160
s_addk_i32 {s(sT1)}, 0x1000
v_add_u32 {v(vC)}, {s(sT1)}, v7
s_mul_i32 {s(sT2)}, {s(sW)}, {16*3840}
v_mul_u32_u24 v7, 3840, {v(vR)}
v_add3_u32 v7, v7, {v(vC)}, {s(sT2)}
v_add_u32 {v(WA)}, 1280, v7
v_add_u32 {v(WA+1)}, {1280 + 64 - 1024}, v7
v_mul_u32_u24 v8, 1120, {v(vB)}
v_add_u32 v9, {(1280 + 128 - 2048) & 0xffffffff:#x}, v7
v_add_u32 {v(WA+2)}, v8, v9
v_add_u32 {v(WA+3)}, {(1280 + 192 + 1120 - 3072) & 0xffffffff:#x}, v7
v_add_u32 {v(WA+4)}, {1280 + 256 + 1120}, v7
s_mul_i32 {s(sT1)}, {s(sT0)}, 1920""")
        self.srd_biased(S, SW, 6, 640 * 3840)
        S.add(self.dma_w(16 * K, WA, SW, sT1, "st0", "", self.wmod))
        self.late_setup(S)
        for c in range(5):
            S(f"s_mul_i32 {s(sAW+c)}, {s(sA128+c)}, 1920")
        S(f"s_mul_i32 {s(sHW0)}, {s(sHX0)}, 1920\ns_mul_i32 {s(sHW1)}, {s(sHX1)}, 1920")
        S(f"""v_bfe_u32 v7, v1, 2, 2
v_and_b32 v9, 1, v3
v_lshl_add_u32 v7, v9, 3, v7
v_lshlrev_b32 v7, 6, v7
v_and_b32 v8, 3, v1
v_lshl_add_u32 v7, v8, 3, v7
v_lshrrev_b32 v8, 1, v3
v_mul_u32_u24 v8, 5120, v8
v_add_u32 v7, v7, v8
v_lshl_add_u32 {v(RW)}, v9, 5, v7
v_xor_b32 {v(RW+3)}, 32, {v(RW)}
v_add_u32 {v(RW+1)}, 0x10000, {v(RW)}
v_add_u32 {v(RW+4)}, 0x10000, {v(RW+3)}""")
        for k in range(4):
            S(f"v_mov_b32 {v(EPSQ+k)}, {f2u(1e-6)}")
        self.common_srds(S)
        self.srd_biased(S, SC, 8, 640 * 1280)

        F = []
        def f(t): F.extend(groups(t))
        F0, F1 = s(sF0), s(sF1)
        HB = 320 * 3840
        f(f"""s_mul_i32 {F0}, {s(sW)}, {16*3840}
v_mul_u32_u24 v7, 3840, {v(vR)}
v_add3_u32 v7, v7, {v(vC)}, {F0}
s_mul_i32 {F0}, {s(sETA)}, {HB}
s_sub_u32 {F1}, {HB - 160}, {F0}
v_add_u32 v8, {F0}, v7
v_add_u32 v9, {F1}, v7
v_mov_b32 {v(WQ)}, v8
v_add_u32 {v(WQ+1)}, {(64 - 1024) & 0xffffffff:#x}, v8
v_cmp_eq_u32 vcc, 0, {v(vB)}
+v_cndmask_b32 v10, v9, v8, vcc
v_add_u32 {v(WQ+2)}, {(128 - 2048) & 0xffffffff:#x}, v10
v_add_u32 {v(WQ+3)}, {(192 - 3072) & 0xffffffff:#x}, v9
v_add_u32 {v(WQ+4)}, 256, v9""")
        H2 = 80 * 1280 - 160
        f(f"""s_lshl_b32 {F0}, {s(sW)}, 1
v_lshrrev_b32 v7, 3, {v(vR)}
v_add_u32 v7, {F0}, v7
v_and_b32 v7, 3, v7
v_mul_u32_u24 v7, 5, v7
v_and_b32 v8, 3, {v(vR)}
v_mul_u32_u24 v8, 20, v8
v_bfe_u32 v10, {v(vR)}, 2, 1
v_add3_u32 v7, v7, v8, v10
v_mul_u32_u24 v7, 1280, v7
v_add_u32 {v(WO)}, v7, {v(vC)}
v_add_u32 {v(WO+1)}, {(64 - 1024) & 0xffffffff:#x}, {v(WO)}
v_mul_u32_u24 v8, {H2}, {v(vB)}
v_add_u32 v9, {(128 - 2048) & 0xffffffff:#x}, {v(WO)}
v_add_u32 {v(WO+2)}, v8, v9
v_add_u32 {v(WO+3)}, {192 + H2 - 3072}, {v(WO)}
v_add_u32 {v(WO+4)}, {256 + H2}, {v(WO)}
v_mul_u32_u24 {v(UQ+3)}, {79*1280}, v10
v_mul_u32_u24 v8, {240*1280}, {v(vB)}
v_add_u32 {v(UQ+4)}, {v(UQ+3)}, v8
v_add_u32 {v(UQ+5)}, {240*1280}, {v(UQ+3)}""")
        f(f"s_lshr_b32 {F0}, {s(sW)}, 1\ns_mul_i32 {F1}, {F0}, 2560")
        for c in range(4):
            f(f"s_add_u32 {s(sWO+c)}, {F1}, {160*1280*c}")
        f(f"s_mul_i32 {F0}, {F0}, {160*1280}\ns_add_u32 {s(sWO+4)}, {F0}, {4*1280}")
        f(f"""s_movk_i32 {s(sC4K)}, 0x1000
s_movk_i32 {s(sC4K+1)}, 0x2000
v_mov_b32 {v(CPH)}, {f2u(LOG2E)}
v_mov_b32 {v(CPH+1)}, {f2u(-1e-6*LOG2E)}
v_mov_b32 {v(EPSD)}, 0
v_mov_b32 {v(EPSD+1)}, {f2u(1e-6)}
v_mov_b32 {v(EPSD+2)}, 0
v_mov_b32 {v(EPSD+3)}, {f2u(1e-6)}""")
        f(f"""s_mul_i32 {F0}, {s(sW)}, {XS}
s_add_u32 {F0}, {F0}, {XCH}
v_add_u32 {v(vXW)}, {F0}, {v(vL16)}
v_and_b32 v7, 1, v1
v_mul_u32_u24 v8, 0x3f80, v7
v_lshl_or_b32 v8, v8, 16, v8
v_lshl_add_u32 v35, v7, 4, {F0}
v_mov_b32 v54, v8""")
        def pk(dst, hh, aa):
            f(f"""{hh}
{aa}
v_mov_b32 v12, {XCH + 10240}
v_mov_b32 v7, {F1}
v_lshl_add_u32 v7, v7, 4, v4
v_mov_b32 v8, {F0}
v_lshlrev_b32 v9, 2, v8
v_sub_u32 v7, v7, v9
v_add_u32 v8, {F1}, v8
v_lshl_add_u32 v8, v8, 10, {v(vL16)}
v_add_u32 v8, {XCH}, v8
v_cmp_gt_u32 vcc, 20, v7
+v_cndmask_b32 {v(dst)}, v12, v8, vcc""")
        pk(PKS, f"s_mov_b32 {F0}, {s(sW)}", f"s_and_b32 {F1}, {s(sW)}, 1")
        pk(PKO, f"s_mov_b32 {F0}, {s(sW)}", f"s_andn2_b32 {F1}, 1, {s(sW)}")
        pk(PKX, f"s_xor_b32 {F0}, {s(sW)}, 1", f"s_and_b32 {F1}, {s(sW)}, 1")
        def coladdr(dst, col):
            return f"""v_lshrrev_b32 v9, 4, {col}
v_and_b32 v10, 15, {col}
v_lshlrev_b32 v10, 4, v10
v_lshl_add_u32 v10, v3, 8, v10
v_lshl_add_u32 v10, v9, 10, v10
v_add_u32 {dst}, {XCH + 5*1024}, v10"""
        f(f"""v_lshrrev_b32 v13, 2, v4
v_mul_u32_u24 v13, 5, v13
v_and_b32 v14, 3, v4
s_mul_i32 {F0}, {s(sW)}, 20
v_add3_u32 v7, v13, v14, {F0}
""" + coladdr(v(V0), "v7"))
        for dst, hh in ((V1O, f"s_mov_b32 {F0}, {s(sW)}"), (V1X, f"s_xor_b32 {F0}, {s(sW)}, 1")):
            f(f"""{hh}
s_and_b32 {F1}, {F0}, 1
s_lshl_b32 {F1}, {F1}, 1
s_mul_i32 {F0}, {F0}, 20
v_add3_u32 v7, v13, 4, {F0}
""" + coladdr("v8", "v7") + f"""
v_subrev_u32 v7, {F1}, v14
v_mov_b32 v9, {XCH + 10240}
v_mov_b32 v10, {XCH + 10256}
v_cmp_eq_u32 vcc, 1, v7
+v_cndmask_b32 v9, v9, v10, vcc
v_cmp_eq_u32 vcc, 0, v7
+v_cndmask_b32 {v(dst)}, v9, v8, vcc""")
        f(f"""s_lshl_b32 {F0}, {s(sCB)}, 2
s_add_u32 {F0}, {F0}, {s(sW)}
v_mov_b32 v12, {OOB}
v_bfe_u32 v7, v1, 2, 1
v_and_b32 v9, 3, v1
v_lshlrev_b32 v9, 4, v9
v_lshl_add_u32 v9, v7, 10, v9
s_lshl_b32 {F1}, {s(sRB)}, 6
v_add_u32 v9, {F1}, v9
s_lshl_b32 {F1}, {F0}, 11
s_add_u32 {F1}, {F1}, {WS_KV}
v_add_u32 v7, {F1}, v9
v_cmp_gt_u32 vcc, 8, v1
+v_cndmask_b32 {v(vKF)}, v12, v7, vcc
s_lshl_b32 {F0}, {F0}, 15
s_add_u32 {F0}, {F0}, {WS_P}
v_lshl_add_u32 v9, v3, 13, v9
v_add_u32 v7, {F0}, v9
v_cmp_gt_u32 vcc, 8, v4
+v_cndmask_b32 {v(vRL)}, v12, v7, vcc
+v_cndmask_b32_e64 {v(vRX)}, 0, -1, vcc
+v_add_u32 v7, 4096, v7
+v_cndmask_b32 {v(vBP)}, v12, v7, vcc
s_lshl_b32 {F1}, {s(sRB)}, 11
s_add_u32 {F0}, {F0}, {F1}
v_add_u32 v7, {F0}, {v(vL16)}
s_and_b32 {F1}, {s(sW)}, 1
s_lshl_b32 {F1}, {F1}, 10
v_add_u32 {v(PS)}, {F1}, v7
s_xor_b32 {F1}, {F1}, 1024
v_add_u32 {v(PO)}, {F1}, v7
s_lshl_b32 {F0}, {s(sCB)}, 13
s_add_u32 {F0}, {F0}, {WS_KV}
v_lshl_add_u32 {v(vKL)}, v1, 4, {F0}""")
        f(f"v_and_b32 v7, 1, v4\nv_lshlrev_b32 v7, 4, v7\nv_mov_b32 v8, 0x3f80\nv_lshlrev_b32 v7, v7, v8\nv_lshrrev_b32 v8, 1, v4")
        for k in range(2):
            f(f"v_cmp_eq_u32 vcc, {k}, v8\n+v_cndmask_b32_e64 {v(SEL+k)}, 0, v7, vcc")
        f(f"""v_mov_b32 {v(SEL+2)}, 0
v_mov_b32 {v(SEL+3)}, 0
v_mov_b32 {v(SEL+4)}, 0
v_mov_b32 {v(SEL+5)}, 0
v_mov_b32 {v(SEL+6)}, {v(SEL)}
v_mov_b32 {v(SEL+7)}, 0""")
        f(f"""s_lshl_b32 {F0}, {s(sRB)}, 2
s_add_u32 {F0}, {F0}, {s(sW)}
s_mul_i32 {F1}, {F0}, 40960
s_add_u32 {F1}, {F1}, {WS_PQ}
v_add_u32 {v(vOL)}, {F1}, {v(vL16)}
s_lshl_b32 {F0}, {F0}, 10
s_add_u32 {F0}, {F0}, {WS_AF}
v_lshrrev_b32 v7, 3, v1
v_lshl_add_u32 {v(vOP)}, v7, 7, {F0}
s_lshl_b32 {F1}, {s(sCB)}, 7
s_add_u32 {F0}, {F0}, {F1}
v_mov_b32 v7, {F0}
v_cmp_eq_u32 vcc, 0, v1
+v_cndmask_b32 {v(vOF)}, v12, v7, vcc
s_lshr_b32 {F0}, {s(sCB)}, 1
s_mul_i32 {F0}, {F0}, 10240
v_add_u32 v7, {F0}, {v(vOL)}
s_and_b32 {F0}, {s(sCB)}, 1
s_lshl_b32 {F1}, {F0}, 12
v_add_u32 {v(vOS)}, {F1}, v7
s_lshl_b32 {F0}, {F0}, 10
s_add_u32 {F0}, {F0}, 8192
v_lshlrev_b32 v8, 3, v1
v_sub_u32 v7, v7, v8
v_add_u32 {v(vOS2)}, {F0}, v7
v_sub_u32 v81, {v(vOL)}, v8
v_mul_u32_u24 v8, 112, v1
v_add_u32 v9, {v(vOS)}, v8
v_mul_u32_u24 v8, 120, v1
v_add3_u32 v8, v8, {v(vOS2)}, 0
v_add_u32 v8, {(-32*128) & 0xffffffff:#x}, v8
v_cmp_gt_u32 vcc, 32, v1
+v_cndmask_b32 v8, v8, v9, vcc
v_cmp_gt_u32 vcc, 40, v1
+v_cndmask_b32 v55, v12, v8, vcc""")

        n_pre = len(F)
        f(f"""s_lshr_b32 {F0}, s2, 3
s_lshl_b32 {F0}, {F0}, 2
s_add_u32 {F0}, {F0}, {s(sW)}
s_mul_i32 {F0}, {F0}, 50
v_add_u32 v7, {F0}, v1
v_lshlrev_b32 v37, 7, v7
v_add_u32 v37, 0x1000, v37
v_mul_u32_u24 v8, 6554, v7
v_lshrrev_b32 v8, 16, v8
v_mul_u32_u24 v8, 2560, v8
v_add_u32 v36, v37, v8
s_and_b32 {F1}, {s(sXCD)}, 3
s_mul_i32 {F1}, {F1}, 13
v_add_u32 v7, {F1}, v7
v_lshlrev_b32 v9, 7, v7
v_add_u32 v9, 0x1000, v9
v_mul_u32_u24 v8, 6554, v7
v_lshrrev_b32 v8, 16, v8
v_mul_u32_u24 v8, 2560, v8
v_add_u32 v8, v9, v8
v_mov_b32 v10, {OOB}
v_cmp_gt_u32 vcc, 13, v1
+v_cndmask_b32 v38, v10, v8, vcc
+v_cndmask_b32 v97, v10, v9, vcc""")
        F[:] = F[n_pre:] + F[:n_pre]
        mpf = [mk(f"buffer_load_dword v38, v38, {s(SW,4)}, 0 offen"), mk(f"buffer_load_dword v97, v97, {s(SC,4)}, 0 offen")] if self.opt.get("mpf", 1) else []
        pf = [mk(f"buffer_load_dword v38, v36, {s(SW,4)}, 0 offen"), mk(f"buffer_load_dword v97, v37, {s(SC,4)}, 0 offen")]
        qch = [self.dma_w(CH[c], WQ, SW, sAW + c, f"q{c}") for c in range(5)]
        n0 = self.opt.get("afill0", len(F))
        pt = [mk(f"buffer_load_dword v55, v55, {s(SWS,4)}, 0 offen")] if self.opt.get("pretouch", 1) else []
        apf = self.opt.get("apf", 0)
        if apf:
            self.mainloop(S, "A", [], F[:n0], F[n0:], pt, qch[0], EPSQ, pf)
        else:
            ptpos = self.opt.get("ptposa", 1)
            self.mainloop(S, "A", [], F[:n0], F[n0:], pf + (pt if ptpos == 2 else []), qch[0][:2], EPSQ, [], mpf)
            if ptpos == 2:
                pt = []
            qch[1] = qch[0][2:] + qch[1]
        self.stamp(S, 4)
        self.tr(S, 1)
        S("v_mov_b32 v12, v54\nv_mov_b32 v13, v54\nv_mov_b32 v14, v54\nv_mov_b32 v15, v54\nds_write_b128 v35, v[12:15] offset:10240")
        S_main = S
        S = Stream()
        FRG = 108
        self.phi_pairs(S, [(ACC + (n*2 + (k >> 1))*4 + 2*(k & 1), FRG + 4*n + k) for n in range(5) for k in range(4)], EPSQ, CPH)
        for n in range(5):
            S(f"ds_write_b128 {v(vXW)}, {v(FRG+4*n,4)} offset:{1024*n}")
        for n in range(5, 10):
            for k in range(4):
                c = ACC + (n*2 + (k >> 1))*4 + 2*(k & 1)
                S(f"v_cvt_pk_bf16_f32 {v(FRG+4*n+k)}, {v(c)}, {v(c+1)}")
            S(f"ds_write_b128 {v(vXW)}, {v(FRG+4*n,4)} offset:{1024*n}")
        S_main.add(interleave(S.items, (qch[1] + qch[2], 2, len(S.items) - 1)))
        S = S_main
        self.tr(S, 1)
        S("@waittag q0\n@waitlgkm0\ns_barrier")
        self.tr(S, 1)
        DS, DO, D2 = 144, 148, 152
        for r in (159, 163, 171):
            S(f"v_mov_b32 {v(r)}, {s(sNON)}")
        S(f"s_and_b32 {s(sT1)}, {s(sW)}, 1\ns_cmp_eq_u32 {s(sT1)}, 0\ns_cselect_b64 s[{SP2}:{SP2+1}], -1, 0")
        G = lambda ks, x: a(AW + 24 * (ks & 1) + 4 * x, 4)
        def grd(ks):
            return [I(f"ds_read_b128 {G(ks,x)}, {v(r)} offset:{ks*XS}") for x, r in enumerate((PKS, V0, PKO, V1O, PKX, V1X))]
        S.add(grd(0))
        S.add(grd(1))
        for ks in range(4):
            z = lambda d: "0" if ks == 0 else v(d, 4)
            S(f"""{MF} {v(DS,4)}, {G(ks,0)}, {G(ks,1)}, {z(DS)}
{MF} {v(DO,4)}, {G(ks,2)}, {G(ks,1)}, {z(DO)}
{MF} {v(D2,4)}, {G(ks,0)}, {G(ks,3)}, {z(D2)}
{MF} {v(D2,4)}, {G(ks,4)}, {G(ks,5)}, {v(D2,4)}""")
            if ks < 2:
                S.add(grd(ks + 2))
            S.add(qch[3][ks:ks + 1])
        QA = ACC
        def qreads(u):
            c, hf, kk = u >> 2, (u >> 1) & 1, u & 1
            L = []
            for n in range(5):
                L += self.tr_frag(208 + 20 * (u & 1) + 4 * n, CH[c] + kk * 10240, 5 * hf + n)
            return L
        self.tr(S, 1)
        S.add(qreads(0))
        S(f"""v_cvt_pk_bf16_f32 v156, {v(DS)}, {v(DS+1)}
v_cvt_pk_bf16_f32 v157, {v(DS+2)}, {v(DS+3)}
v_cvt_pk_bf16_f32 v160, {v(DO)}, {v(DO+1)}
v_cvt_pk_bf16_f32 v161, {v(DO+2)}, {v(DO+3)}
v_cvt_pk_bf16_f32 v164, {v(D2)}, {v(D2+1)}
v_cvt_pk_bf16_f32 v165, {v(D2+2)}, {v(D2+3)}
v_cndmask_b32_e64 v158, v165, v164, s[{SP2}:{SP2+1}]
v_cndmask_b32_e64 v162, v164, v165, s[{SP2}:{SP2+1}]
buffer_store_dwordx4 v[156:159], {v(PS)}, {s(SWS,4)}, 0 offen sc1
buffer_store_dwordx4 v[160:163], {v(PO)}, {s(SWS,4)}, 0 offen sc1""")
        S(f"v_and_b32 {v(vRX)}, {s(sNON)}, {v(vRX)}")
        self.stamp(S, 5)
        RB = 108
        KK = 108
        T1 = 140
        woch = [self.dma_w(CH[c], WO, SC, sWO + c, f"wo{c}") for c in range(5)]
        wofix = [mk(f"v_add_u32 {v(WO+i)}, {v(WO+i)}, {v(UQ + [3, 3, 4, 5, 5][i])}") for i in range(5)]
        def rloads():
            return [mk(f"buffer_load_dwordx4 {v(RB+4*x,4)}, {v([vRL, vBP][x >> 1])}, {s(SWS,4)}, 0 offen offset:{2048*(x & 1)} sc1") for x in range(4)]
        def rcheck():
            t = f"v_xor_b32 v14, {v(RB+3)}, {v(vRX)}\n"
            for x in range(1, 4):
                t += f"v_bitop3_b32 v14, v14, {v(RB+4*x+3)}, {v(vRX)} bitop3:0xf6\n"
            return t + "v_cmp_ne_u32 vcc, 0, v14"
        def kloads():
            return [mk(f"buffer_load_dwordx4 {v(KK+4*x,4)}, {[v(vKL), 'v15'][x >> 2]}, {s(SWS,4)}, 0 offen offset:{1024*(x & 3)} sc1") for x in range(8)]
        def kcheck():
            t = f"v_xor_b32 v14, {s(sNON)}, {v(KK+3)}\n"
            for x in range(1, 8):
                t += f"v_bitop3_b32 v14, v14, {v(KK+4*x+3)}, {s(sNON)} bitop3:0xf6\n"
            return t + "v_cmp_ne_u32 vcc, 0, v14"
        def retry(loads, check):
            lp, done = self.lab("rp"), self.lab("rd")
            S(check)
            S(f"s_cbranch_vccz {done}\ns_mov_b32 {s(sCNT)}, 0x40000\n{lp}:", tag="opaque")
            for x in loads:
                for y in x:
                    y.tag = "opaque"
            S.add(loads)
            S("s_waitcnt vmcnt(0)\n" + check + f"""
s_cbranch_vccz {done}
s_sub_u32 {s(sCNT)}, {s(sCNT)}, 1
s_cbranch_scc0 {lp}
{done}:""", tag="opaque")
        UR = self.opt.get("ur", 9)
        UC = self.opt.get("uc", 14)
        vq = {0: qch[3][4:] + qch[4][:1], 1: qch[4][1:3], 2: qch[4][3:], 3: [self.xi_load(12)] + woch[0][:1],
              4: woch[0][1:3], 5: woch[0][3:], 7: woch[1][:2], 8: woch[1][2:4],
              12: woch[1][4:] + woch[2][:1], 13: woch[2][1:3], 15: woch[2][3:], 16: woch[3][:2], 17: woch[3][2:4], 18: woch[3][4:],
              19: wofix + woch[4][:2]}
        for u in range(20):
            c, hf, kk = u >> 2, (u >> 1) & 1, u & 1
            st = c + 5 * hf
            ex = []
            if u in (0, 3, 7, 11, 14, 15, 19):
                self.tr(S, 1)
            if (u & 3) == 3:
                S(f"@waittag q{c+1}\n@waitlgkm0\ns_barrier")
            ex = list(vq.get(u, []))
            if u == UR:
                ex = ex + rloads() + pt
            if u == UC:
                retry(rloads(), rcheck())
                S("\n".join(f"v_mov_b32 {v(RB+4*x+3)}, 0" for x in range(4)))
                for x in range(4):
                    for k in range(2):
                        d = RB + 16 + 4 * k
                        S(f"{MF} {v(d,4)}, {v(SEL+4*k,4)}, {v(RB+4*x,4)}, {'0' if x == 0 else v(d,4)}")
            if u == UC + 1:
                ex = groups(f"""v_cvt_pk_bf16_f32 v168, {v(RB+16)}, {v(RB+17)}
v_cvt_pk_bf16_f32 v169, {v(RB+18)}, {v(RB+19)}
v_cvt_pk_bf16_f32 v170, {v(RB+20)}, {v(RB+21)}
buffer_store_dwordx4 v[168:171], {v(vKF)}, {s(SWS,4)}, 0 offen sc1""") + ex
            if u == UC + 2:
                ex = ex + [self.xi_eval(12)]
            mf = []
            for n in range(5):
                for i in range(2):
                    d = QA + (n * 2 + i) * 4
                    cin = v(EPSQ, 4) if u == 0 else v(d, 4)
                    mf.append(I(f"{MF} {v(d,4)}, {a(208 + 20*(u & 1) + 4*n, 4)}, {a(AX + ((2*st+kk)*2+i)*4, 4)}, {cin}"))
            mf[0] = [I(f"@need {a(208 + 20*(u & 1) + 16, 4)}"), mf[0]]
            S.add(kstep(mf, qreads(u + 1) if u < 19 else [], ex, 2))
        self.stamp(S, 6)
        PQR = 150
        S_main = S
        S = Stream()
        self.phi_pairs(S, [(QA + (n*2 + i)*4 + 2*k, PQR + 10*i + 2*n + k) for i in range(2) for n in range(5) for k in range(2)], EPSQ, CPH)
        S_main(f"v_add_u32 v15, 4096, {v(vKL)}")
        p0 = self.opt.get("kpos", 60)
        S_main.add(interleave(S.items, (woch[4][2:], 5, 45), (kloads(), p0, p0 + 30)))
        S = S_main
        retry(kloads(), kcheck())
        self.stamp(S, 7)
        for m in range(2):
            for x in range(4):
                S(f"v_mov_b32 {v(T1+4*m+x)}, {v(KK + 16*m + 8*(x >> 1) + 4*(x & 1) + 2)}")
        for h in range(4):
            S(f"v_mov_b32 {v(KK+8*h+2)}, {v(KK+8*h+4)}\nv_mov_b32 {v(KK+8*h+3)}, {v(KK+8*h+5)}")
        DT, OF = ACC, 82
        for i in range(2):
            for m in range(2):
                d = DT + 32 * i + 16 * m
                w0 = PQR + 10 * i + 4 * m
                S(f"""{MF} {v(d,4)}, {v(KK+16*m,4)}, {v(w0,4)}, 0
{MF} {v(d+4,4)}, {v(T1+4*m,4)}, {v(w0,4)}, {v(EPSD,4)}
{MF} {v(d+8,4)}, {v(KK+16*m+8,4)}, {v(w0+2,4)}, 0
{MF} {v(d+12,4)}, {v(T1+4*m,4)}, {v(w0+2,4)}, {v(EPSD,4)}""")
        for i in range(2):
            for m in range(2):
                d = DT + 32 * i + 16 * m
                S(f"v_rcp_f32 {v(d+5)}, {v(d+5)}\nv_rcp_f32 {v(d+15)}, {v(d+15)}")
            for m in range(2):
                d = DT + 32 * i + 16 * m
                S(f"""v_pk_mul_f32 {v(d,2)}, {v(d,2)}, {v(d+4,2)} op_sel:[0,1] op_sel_hi:[1,1]
v_pk_mul_f32 {v(d+8,2)}, {v(d+8,2)}, {v(d+14,2)} op_sel:[0,1] op_sel_hi:[1,1]
v_pk_mul_f32 {v(d+2,2)}, {v(d+2,2)}, {v(d+4,2)} op_sel:[0,1] op_sel_hi:[1,1]
v_pk_mul_f32 {v(d+10,2)}, {v(d+10,2)}, {v(d+14,2)} op_sel:[0,1] op_sel_hi:[1,1]
v_mul_f32 {v(d+4)}, {v(d+4)}, {v(d+5)}
v_mul_f32 {v(d+14)}, {v(d+14)}, {v(d+15)}""")
            for e in range(5):
                for m in range(2):
                    d = DT + 32 * i + 16 * m
                    ra, rb = (d + e, d + 8 + e) if e < 4 else (d + 4, d + 14)
                    S(f"v_cvt_pk_bf16_f32 {v(OF + 10*i + 2*e + m)}, {v(ra)}, {v(rb)}")
        t = ""
        for i in range(2):
            for fq in range(2):
                t += f"buffer_store_dwordx4 {v(OF+10*i+4*fq,4)}, {v(vOS)}, {s(SWS,4)}, 0 offen offset:{1024*(2*fq+i)}@M\n"
            t += f"buffer_store_dwordx2 {v(OF+10*i+8,2)}, {v(vOS2)}, {s(SWS,4)}, 0 offen offset:{512*i}@M\n"
        self.two_way(S, t, "ost")
        if self.opt.get("selft"):
            S(f"buffer_load_dword v55, v55, {s(SWS,4)}, 0 offen")
        S(f"v_mov_b32 v4, {s(sNON)}")
        S("@waittag ost wo4")
        self.flag_store(S, vOF)
        S("s_barrier")
        self.stamp(S, 8)
        AC2, WF = 216, 160
        def woreads(f):
            H, e = f // 5, f % 5
            c, rbk, hf = (H, e & 1, e >> 1) if e < 4 else (4, H & 1, H >> 1)
            L = []
            for n in range(5):
                L += self.tr_frag(WF + 20 * (f & 1) + 4 * n, CH[c] + rbk * 10240, 5 * hf + n)
            return L
        S.add(woreads(0))
        self.out_addrs(S, "A", 112 * K, 48)
        self.poll_flags(S, vOP, 1, 4)
        self.stamp(S, 9)
        def oload(x):
            pre = f"s_mov_b32 {s(sT1)}, {4096*(x >> 2)}\n" if (x & 3) == 0 else ""
            if x % 10 >= 8:
                o = 1024 * ((x & 3) & 2) + 512 * (x & 1)
                return mk(pre + f"""buffer_load_dwordx2 {a(4*x,2)}, v81, {s(SWS,4)}, {s(sT1)} offen offset:{o}{self.lmod}
buffer_load_dwordx2 {a(4*x+2,2)}, v81, {s(SWS,4)}, {s(sT1)} offen offset:{o+1024}{self.lmod}""")
            return mk(pre + f"buffer_load_dwordx4 {a(4*x,4)}, {v(vOL)}, {s(SWS,4)}, {s(sT1)} offen offset:{1024*(x & 3)}{self.lmod}")
        DEPTH = self.opt.get("odepth", 5)
        for x in range(2 * DEPTH):
            S.add(oload(x))
        for f_ in range(20):
            mf = []
            for n in range(5):
                for i in range(2):
                    c = AC2 + (n * 2 + i) * 4
                    mf.append(I(f"{MF} {v(c,4)}, {a(WF + 20*(f_ & 1) + 4*n, 4)}, {a((f_*2+i)*4, 4)}, {'0' if f_ == 0 else v(c,4)}"))
            ld = [oload(2 * (f_ + DEPTH) + i) for i in range(2)] if f_ + DEPTH < 20 else []
            mf[0] = [I(f"@need {a(WF + 20*(f_ & 1) + 16, 4)} {a((f_*2+1)*4, 4)}"), mf[0]]
            S.add(kstep(mf, woreads(f_ + 1) if f_ < 19 else [], ld, 2))
        self.stamp(S, 10)
        self.store_out(S, AC2, 48, 176)
        self.stamp(S, 11)
        self.dump_stamps(S)
        S("s_endpgm")
        return S


    def build(self):
        P = Stream()
        self.prologue(P)
        A = self.side_A()
        B = self.side_B()
        out = []
        tot = 0
        np_ = len(P.items)
        SA = Stream(); SA.items = P.items + A.items
        ia, na = finalize(SA)
        SB = Stream(); SB.items = P.items + B.items
        ib, nb = finalize(SB)
        k = next(i for i, x in enumerate(ib) if x.text == "L_sideB:")
        ka = next(i for i, x in enumerate(ia) if x.text.startswith("s_cbranch_scc1 L_sideB"))
        assert [x.text for x in ia[:ka + 1]] == [x.text for x in ib[:k]], "prologue mismatch"
        body = ia + ib[k:]
        hdr = open("concat_heads__linear_attn_block__ssm_conv_s5__prompt.s.ref").read().split("\n")
        hdr = [l for l in hdr if l.startswith(";") and "@launch" not in l]
        txt = "\n".join(hdr) + "\n; @launch grid=(256,1,1) block=(256,1,1) lds=163840\n"
        txt += f""".amdgcn_target "amdgcn-amd-amdhsa--gfx950"
.text
.globl {KN}
.p2align 8
.type {KN},@function
{KN}:
"""
        for x in body:
            txt += (x.text if x.kind == "label" else "    " + x.text) + "\n"
        txt += f"""L_end:
    s_endpgm
.section .rodata,"a"
.p2align 6
.amdhsa_kernel {KN}
  .amdhsa_next_free_vgpr 512
  .amdhsa_next_free_sgpr 102
  .amdhsa_accum_offset 256
  .amdhsa_group_segment_fixed_size 0
  .amdhsa_kernarg_size 120
  .amdhsa_user_sgpr_count 2
  .amdhsa_user_sgpr_kernarg_segment_ptr 1
  .amdhsa_system_sgpr_workgroup_id_x 1
.end_amdhsa_kernel
"""
        print(f"instructions: A {len(ia)} (nops {na}), B {len(ib)} (nops {nb})", file=sys.stderr)
        return txt


if __name__ == "__main__":
    import argparse
    ap = argparse.ArgumentParser()
    ap.add_argument("out")
    ap.add_argument("--ts", action="store_true")
    ap.add_argument("-o", action="append", default=[])
    ar = ap.parse_args()
    opt = {}
    for o in ar.o:
        k_, _, v_ = o.partition("=")
        opt[k_] = int(v_) if v_ else 1
    open(ar.out, "w").write(Gen(ar.ts, opt).build())
```
